```python
import torch

def _softmax(x, axis=-1):
    return torch.softmax(x, dim=axis)
def _gelu(x):
    return torch.nn.functional.gelu(x, approximate="tanh")
def _silu(x):
    return torch.nn.functional.silu(x)
def _sigmoid(x):
    return torch.sigmoid(x)
def _layernorm(x, axis=-1, eps=1e-5):
    m = x.mean(dim=axis, keepdim=True)
    v = x.var(dim=axis, keepdim=True, unbiased=False)
    return (x - m) / torch.sqrt(v + eps)
def _scatter_add(tgt, idx, src, axis=0):
    return tgt.clone().index_add_(axis, idx, src)
def _segment_sum(src, seg, n):
    out = torch.zeros((n,) + src.shape[1:], dtype=src.dtype)
    return out.index_add_(0, seg, src)
def _pad(x, pw):
    flat = tuple(v for pair in reversed(pw) for v in pair)
    return torch.nn.functional.pad(x, flat)

kernel_name = 'sequential_preLN__linear_attn_block__glu_gated_geglu__prompt'

def setup_inputs():

    _w = (lambda a: (lambda t: t.to(torch.bfloat16) if t.is_floating_point() else t)(torch.as_tensor(a)))
    def _A_setup():
        B, S, D = 1, 2048, 448
        return {
            "x": _w((lambda *s: torch.randn(*s, dtype=torch.bfloat16) * 0.05)(B, S, D)),
            "wqkv": _w((lambda *s: torch.randn(*s, dtype=torch.bfloat16) * 0.1)(D, 3 * D)),
            "wo": _w((lambda *s: torch.randn(*s, dtype=torch.bfloat16) * 0.05)(D, D)),
        }
    _A_in = _A_setup()

    def _B_setup():
        B, S, Dm, Df = 1, 2048, 448, 1792
        return {
            "x": _w((lambda *s: torch.randn(*s, dtype=torch.bfloat16) * 0.05)(B, S, Dm)),
            "w_gate": _w((lambda *s: torch.randn(*s, dtype=torch.bfloat16) * 0.4)(Dm, Df) * (Dm ** -0.5)),
            "w_up": _w((lambda *s: torch.randn(*s, dtype=torch.bfloat16) * 0.4)(Dm, Df) * (Dm ** -0.5)),
            "w_down": _w((lambda *s: torch.randn(*s, dtype=torch.bfloat16) * 0.4)(Df, Dm) * (Df ** -0.5)),
        }
    _B_in = _B_setup()

    return {
        "A_x": _A_in["x"],
        "A_wqkv": _A_in["wqkv"],
        "A_wo": _A_in["wo"],
        "B_x": _B_in["x"],
        "B_w_gate": _B_in["w_gate"],
        "B_w_up": _B_in["w_up"],
        "B_w_down": _B_in["w_down"],
    }

def reference(A_x, A_wqkv, A_wo, B_x, B_w_gate, B_w_up, B_w_down):
    def _A_ref(x, wqkv, wo):
        B, S, D = x.shape
        H = 16; Dh = D // H
        qkv = (lambda x, *d: x.permute(*d))((x @ wqkv).reshape(B, S, 3, H, Dh), 2, 0, 3, 1, 4)
        q, k, v = qkv[0], qkv[1], qkv[2]
        phi = lambda t: torch.where(t > 0, t + 1, torch.exp(t)) + 1e-6
        pq, pk = phi(q), phi(k)
        kv = torch.einsum("bhsd,bhse->bhde", pk, v)
        z = torch.einsum("bhsd->bhd", pk)
        num = torch.einsum("bhqd,bhde->bhqe", pq, kv)
        den = torch.einsum("bhqd,bhd->bhq", pq, z)[..., None] + 1e-6
        o = num / den
        return (lambda x, *d: x.permute(*d))(o, 0, 2, 1, 3).reshape(B, S, D) @ wo

    def _B_ref(x, w_gate, w_up, w_down):
        g = torch.einsum("bsd,df->bsf", x, w_gate)
        u = torch.einsum("bsd,df->bsf", x, w_up)
        h = _gelu(g) * u
        return torch.einsum("bsf,fd->bsd", h, w_down)

    x = A_x
    h = x + _A_ref(_layernorm(x, axis=-1), A_wqkv, A_wo)
    h2 = h + _B_ref(_layernorm(h, axis=-1), B_w_gate, B_w_up, B_w_down)
    return h2
```

```python
import re

class Asm:
    def __init__(self):
        self.lines = []
        self.vm = []
        self.lg = []
        self.nlabel = 0
    def __call__(self, s):
        for l in s.split("\n"):
            l = l.strip()
            if l: self.lines.append(l)
    def label(self, base="L"):
        self.nlabel += 1
        return f"{base}_{self.nlabel}"
    def vmem(self, s, tag):
        self(s); self.vm.append(tag)
    def lds(self, s, tag):
        self(s); self.lg.append(tag)
    def _cnt(self, q, tags):
        if isinstance(tags, str): tags = [tags]
        last = -1
        for i, t in enumerate(q):
            if t in tags: last = i
        return last
    def wait(self, vm=None, lg=None):
        parts = []
        if vm is not None:
            if vm == "all":
                parts.append("vmcnt(0)"); self.vm = []
            else:
                last = self._cnt(self.vm, vm)
                if last >= 0:
                    n = len(self.vm) - 1 - last
                    n2 = min(n, 63)
                    parts.append(f"vmcnt({n2})"); self.vm = self.vm[len(self.vm)-n2:] if n2 else []
        if lg is not None:
            if lg == "all":
                parts.append("lgkmcnt(0)"); self.lg = []
            else:
                last = self._cnt(self.lg, lg)
                if last >= 0:
                    n = len(self.lg) - 1 - last
                    n2 = min(n, 15)
                    parts.append(f"lgkmcnt({n2})"); self.lg = self.lg[len(self.lg)-n2:] if n2 else []
        if parts: self("s_waitcnt " + " ".join(parts))

def v(b, n=1): return f"v{b}" if n == 1 else f"v[{b}:{b+n-1}]"
def a(b, n=1): return f"a{b}" if n == 1 else f"a[{b}:{b+n-1}]"
def s(b, n=1): return f"s{b}" if n == 1 else f"s[{b}:{b+n-1}]"
def r(x, n=1):
    return v(x, n) if x < 256 else a(x-256, n)

REG = re.compile(r"^(-|abs\(|\|)?([vas])(?:(\d+)|\[(\d+):(\d+)\])\)?\|?$")
def regs_of(op):
    op = op.strip()
    if op in ("vcc",): return {("s", "vcc")}
    if op == "exec": return {("s", "exec")}
    if op == "m0": return {("s", "m0")}
    m = REG.match(op)
    if not m: return set()
    k = m.group(2)
    if m.group(3) is not None: lo = hi = int(m.group(3))
    else: lo, hi = int(m.group(4)), int(m.group(5))
    return {(k, i) for i in range(lo, hi+1)}

TRANS = ("v_exp_f32", "v_log_f32", "v_rcp_f32", "v_rsq_f32", "v_sqrt_f32", "v_sin_f32", "v_cos_f32")
class Ins:
    def __init__(self, text):
        self.text = text
        t = text.split(";")[0].strip()
        self.label = t.endswith(":")
        self.directive = t.startswith(".") or t == ""
        self.op = ""; self.w = set(); self.r = set(); self.kind = "other"
        self.srcc = set(); self.srcab = set(); self.sdata = set()
        if self.label or self.directive: return
        sp = t.split(None, 1)
        self.op = op = sp[0]
        rest = sp[1] if len(sp) > 1 else ""
        ops = []; cur = ""; d = 0
        for ch in rest:
            if ch == "[": d += 1
            if ch == "]": d -= 1
            if ch == "," and d == 0: ops.append(cur.strip()); cur = ""
            else: cur += ch
        if cur.strip(): ops.append(cur.strip())
        mods = ""
        if ops:
            lastp = ops[-1].split(None, 1)
            ops[-1] = lastp[0]; mods = lastp[1] if len(lastp) > 1 else ""
        self.ops = ops; self.mods = mods
        R = [regs_of(o) for o in ops]
        U = lambda l: set().union(*l) if l else set()
        if op.startswith("v_mfma"):
            self.kind = "mfma"; self.w = R[0]; self.srcab = R[1] | R[2]; self.srcc = R[3]; self.r = self.srcab | self.srcc
            self.passes = 8 if "32x32x16" in op else 4
        elif op == "v_nop":
            self.kind = "other"
        elif op.startswith("v_"):
            self.kind = "valu"
            if op.startswith("v_cmp"):
                self.w = R[0]; self.r = U(R[1:])
            elif op.startswith("v_permlane") and "swap" in op:
                self.w = R[0] | R[1]; self.r = R[0] | R[1]
            elif op.startswith("v_readfirstlane") or op.startswith("v_readlane"):
                self.w = R[0]; self.r = U(R[1:])
            elif "_co_" in op:
                self.w = R[0] | R[1]; self.r = U(R[2:])
            else:
                self.w = R[0]; self.r = U(R[1:])
                if op.startswith(("v_fmac", "v_dot2c", "v_writelane")) or "_dpp" in op or "sdwa" in op: self.r |= R[0]
            if op == "v_nop": self.kind = "other"
        elif op.startswith("buffer_") or op.startswith("global_"):
            self.kind = "vmem"
            if " lds" in (" " + mods) or "load_lds" in op:
                self.r = U(R) | {("s", "m0")}; self.dma = True
            elif "load" in op:
                self.w = R[0]; self.r = U(R[1:])
            else:
                self.r = U(R)
                di = 0 if op.startswith("buffer_") else 1
                if "x3" in op or "x4" in op: self.sdata = R[di]
                if "atomic" in op and "sc0" in mods: self.w = R[0]
        elif op.startswith("ds_"):
            self.kind = "ds"
            if "read" in op or "permute" in op or "swizzle" in op:
                self.w = R[0]; self.r = U(R[1:])
            else: self.r = U(R)
        elif op.startswith("s_"):
            self.kind = "salu"
            if op.startswith(("s_cmp", "s_bitcmp", "s_cbranch", "s_branch", "s_waitcnt", "s_barrier", "s_nop", "s_endpgm", "s_setprio", "s_sleep")):
                self.r = U(R)
            else:
                self.w = R[0] if R else set(); self.r = U(R[1:])
    def states(self):
        if self.label or self.directive: return 0
        if self.op == "s_nop": return int(self.ops[0]) + 1
        return 1

def vec(x): return {q for q in x if q[0] in "va"}
def sca(x): return {q for q in x if q[0] == "s"}

def need(p, c):
    n = 0
    pv = p.kind == "valu"
    if pv and c.kind == "mfma" and vec(p.w) & c.r: n = max(n, 2)
    if p.kind == "mfma":
        big = {8: 12, 4: 8}[p.passes]; ovl = {8: 10, 4: 6}[p.passes]; war = {8: 7, 4: 3}[p.passes]
        if c.kind == "mfma":
            if p.w & c.srcab: n = max(n, big)
            if p.w & c.srcc and not (p.w == c.srcc and p.passes == c.passes): n = max(n, ovl)
            if p.w & c.w and not (p.w == c.w and p.w == c.srcc): n = max(n, ovl)
        elif c.kind in ("valu", "vmem", "ds"):
            if p.w & (c.r | c.w): n = max(n, big)
            if p.srcc & c.w: n = max(n, war)
    if pv:
        if p.op.startswith(TRANS) and c.kind in ("valu", "mfma", "vmem", "ds") and p.w & c.r: n = max(n, 1)
        if c.op.startswith("v_permlane") and vec(p.w) & c.r: n = max(n, 2)
        if "_dpp" in c.op and vec(p.w) & c.r: n = max(n, 2)
        if c.op.startswith(("v_readfirstlane", "v_readlane")) and vec(p.w) & c.r: n = max(n, 1)
        if c.kind == "valu" and sca(p.w) & c.r: n = max(n, 4 if c.op.startswith(("v_readlane", "v_writelane")) else 2)
        if c.kind == "vmem" and sca(p.w) & c.r: n = max(n, 5)
        if c.kind == "salu" and sca(p.w) & c.r: n = max(n, 1)
        if p.op.startswith("v_dot2") and (p.w & (c.r | c.w)):
            if not (c.op == p.op and not (p.w & (set().union(*[regs_of(o) for o in c.ops[1:]])))): n = max(n, 3)
        if ("sdwa" in p.op or "op_sel" in p.mods and not p.op.startswith("v_pk")) and c.kind == "valu" and p.w & (c.r | c.w): n = max(n, 1)
    if p.kind == "vmem" and p.sdata and (p.sdata & c.w): n = max(n, 2)
    if p.kind == "salu" and ("s", "m0") in p.w and c.kind == "vmem" and ("s", "m0") in c.r: n = max(n, 1)
    if p.kind == "salu" and ("s", "exec") in p.w and "_dpp" in c.op: n = max(n, 1)
    return n

def fix_hazards(lines, verbose=False):
    ins = [Ins(l) for l in lines]
    MAXD = 13
    total = 0
    i = 0
    def build(ins):
        lab = {x.text.split(";")[0].strip()[:-1]: k for k, x in enumerate(ins) if x.label}
        br = {}
        for k, x in enumerate(ins):
            if x.op.startswith(("s_cbranch", "s_branch")): br.setdefault(lab[x.ops[0]], []).append(k)
        return br
    changed = True
    while changed:
        changed = False
        br = build(ins)
        out = []
        add = {}
        for i, c in enumerate(ins):
            if c.label or c.directive or c.kind == "other" and not c.op: continue
            worst = 0
            stack = [(i-1, 0)]; seen = set()
            while stack:
                k, d = stack.pop()
                while k >= 0 and d < MAXD:
                    if (k, d) in seen: break
                    seen.add((k, d))
                    p = ins[k]
                    if p.label:
                        for b in br.get(k, []): stack.append((b, d))
                        k -= 1
                        kk = k
                        while kk >= 0 and (ins[kk].directive): kk -= 1
                        if kk >= 0 and ins[kk].op in ("s_branch", "s_endpgm"): break
                        continue
                    if p.directive: k -= 1; continue
                    nn = need(p, c)
                    if nn > d:
                        if nn - d > worst: worst = nn - d; why = p.text
                    d += p.states() + add.get(k, 0)
                    k -= 1
            if worst:
                add[i] = worst
                if verbose: print(f"nop {worst} before [{c.text}] due to [{why}]")
        if add:
            changed = True
            new = []
            for i, c in enumerate(ins):
                if i in add:
                    new.append(Ins(f"s_nop {add[i]-1}")); total += add[i]
                new.append(c)
            ins = new
    return [x.text for x in ins], total
```

```python
import sys
from asmlib import *

NAME = "sequential_preLN__linear_attn_block__glu_gated_geglu__prompt"
OPT = dict(ts=0, stop="", spin=200000)
for arg in sys.argv[2:]:
    k_, v_ = arg.split("=")
    OPT[k_] = int(v_) if v_.lstrip("-").isdigit() else v_

KVP = 0
OO = 1 << 20
HH_ = 3 << 20
ST = 5 << 20
GG = 6 << 20
TSB = 14 << 20
WS_BYTES = 16 << 20

XR = 0
WKV = 96 * 1024
MISC = 152 * 1024
LDS_BYTES = 160 * 1024

sW = 3
SX, SQKV, SWO, SWG, SWU, SWD, SOUT, SWS, SDBG = 8, 12, 16, 20, 24, 28, 32, 36, 40
sRB, sP, sHEAD, sCB, sFB, sIDLE, sC, sC0 = 44, 45, 46, 47, 48, 49, 50, 51
sXB, sW4K, sONES, sT0, sT1, sT2, sT3, sSPIN = 52, 53, 54, 4, 5, 6, 7, 55
sL2E, sEPS = 56, 58
sKVPW, sOW, sHW, sSTW = 60, 61, 62, 63
sM = 64
sGW, sCWK, sDWK = 96, 97, 98
sTS = 100
sUP = 0

vLANE = 1
vXO = 2
vWO = 6
vXR = 7
vWR = 11
vWR0 = 12
vL16 = 13
vSUM, vSQ = 14, 15
vCSK, vCSV = 16, 17
vMEAN, vRSTD = 18, 19
vT = 20
vCSQ = 30
vTS = 31

A = Asm()


def stamp(i):
    if not OPT["ts"]:
        return
    A(f"s_memrealtime {s(sTS,2)}")
    A.wait(lg="all")
    A(f"v_writelane_b32 {v(vTS)}, {s(sTS)}, {i}")


def srd(base, nbytes):
    A(f"s_mov_b32 {s(base+2)}, {nbytes}")
    A(f"s_mov_b32 {s(base+3)}, 0x20000")


def dma(voff, sr, soff, imm, tag, flags=""):
    o = f" offset:{imm}" if imm else ""
    A.vmem(f"buffer_load_dwordx4 {v(voff)}, {s(sr,4)}, {soff} offen{o}{flags} lds", tag)


def mfma(d, x, y, c=None):
    cc = r(d, 16) if c is None else c
    A(f"v_mfma_f32_32x32x16_bf16 {r(d,16)}, {r(x,4)}, {r(y,4)}, {cc}")


def halves_sum(reg, tmp):
    A(f"v_mov_b32 {v(tmp)}, {v(reg)}")
    A(f"v_permlane32_swap_b32 {v(reg)}, {v(tmp)}")
    A(f"v_add_f32 {v(reg)}, {v(reg)}, {v(tmp)}")


def finish():
    if OPT["ts"]:
        stamp(63)
        A(f"s_lshl_b32 {s(sT0)}, s2, 2")
        A(f"s_add_u32 {s(sT0)}, {s(sT0)}, {s(sW)}")
        A(f"s_lshl_b32 {s(sT0)}, {s(sT0)}, 8")
        A(f"s_add_u32 {s(sT0)}, {s(sT0)}, {TSB}")
        A(f"v_lshlrev_b32 {v(vT)}, 2, {v(vLANE)}")
        A(f"buffer_store_dword {v(vTS)}, {v(vT)}, {s(SWS,4)}, {s(sT0)} offen")
    A("s_waitcnt vmcnt(0) lgkmcnt(0)")
    A("s_endpgm")


def gather(name, groups, after_issue=None, pre_wait=None):
    n = len(groups)
    sMASK = sM
    vCHK = vT
    for g, G in enumerate(groups):
        for txt in G["loads"]:
            A.vmem(txt, f"{name}{g}")
    if after_issue:
        after_issue()
    if pre_wait:
        pre_wait()
    A(f"s_mov_b32 {s(sMASK)}, {(1 << n) - 1}")
    A(f"s_mov_b32 {s(sSPIN)}, 0")
    top = A.label("G_top")
    done = A.label("G_done")
    A(f"{top}:")
    for g, G in enumerate(groups):
        skip = A.label("G_skip")
        A.wait(vm=f"{name}{g}")
        A(f"s_bitcmp0_b32 {s(sMASK)}, {g}")
        A(f"s_cbranch_scc1 {skip}")
        regs = G["regs"]
        A(f"v_max3_u32 {v(vCHK)}, {v(regs[0])}, {v(regs[1])}, {v(regs[min(2, len(regs)-1)])}")
        rest = regs[3:]
        while rest:
            x0 = rest[0]
            x1 = rest[1] if len(rest) > 1 else rest[0]
            A(f"v_max3_u32 {v(vCHK)}, {v(vCHK)}, {v(x0)}, {v(x1)}")
            rest = rest[2:]
        A(f"v_cmp_eq_u32 vcc, -1, {v(vCHK)}")
        A(f"s_cbranch_vccnz {skip}")
        A(f"s_bitset0_b32 {s(sMASK)}, {g}")
        if G.get("compute"):
            G["compute"]()
        A(f"{skip}:")
    A(f"s_cmp_eq_u32 {s(sMASK)}, 0")
    A(f"s_cbranch_scc1 {done}")
    A(f"s_add_u32 {s(sSPIN)}, {s(sSPIN)}, 1")
    A(f"s_cmp_gt_u32 {s(sSPIN)}, {OPT['spin']}")
    A(f"s_cbranch_scc1 {done}")
    for g, G in enumerate(groups):
        skip = A.label("G_rs")
        A(f"s_bitcmp0_b32 {s(sMASK)}, {g}")
        A(f"s_cbranch_scc1 {skip}")
        for txt in G["loads"]:
            A(txt)
        A(f"{skip}:")
    A("s_waitcnt vmcnt(0)")
    A(f"s_branch {top}")
    A(f"{done}:")


def prologue():
    A("s_cmp_ge_u32 s2, 256")
    A("s_cbranch_scc1 L_exit")
    for sr_, off in ((SX, 0), (SQKV, 8), (SWS, 72), (SWO, 16), (SWG, 32), (SWU, 40), (SWD, 48), (SOUT, 56), (SDBG, 64)):
        A(f"s_load_dwordx2 {s(sr_,2)}, s[0:1], {off}")
    A(f"s_getpc_b64 {s(sT0,2)}")
    A(f"s_lshr_b32 {s(sT2)}, s2, 3")
    A(f"s_lshl_b32 {s(sT3)}, {s(sT2)}, 10")
    A(f"v_lshl_add_u32 {v(vT)}, v0, 2, {s(sT3)}")
    A(f"v_min_u32 {v(vT)}, CODE_BYTES, {v(vT)}")
    A.vmem(f"global_load_dword v255, {v(vT)}, {s(sT0,2)}", "code")
    if OPT["ts"]:
        A(f"v_mov_b32 {v(vTS)}, 0")
    A(f"v_lshrrev_b32 {v(vT+2)}, 6, v0")
    A(f"v_and_b32 {v(vLANE)}, 63, v0")
    A(f"v_readfirstlane_b32 {s(sW)}, {v(vT+2)}")
    A(f"s_and_b32 {s(sP)}, s2, 1")
    A(f"s_bfe_u32 {s(sRB)}, s2, 0x20001")
    A(f"s_lshl_b32 {s(sRB)}, {s(sRB)}, 2")
    A(f"s_lshr_b32 {s(sT3)}, s2, 6")
    A(f"s_add_u32 {s(sRB)}, {s(sRB)}, {s(sT3)}")
    A(f"s_and_b32 {s(sT2)}, {s(sT2)}, 7")
    A(f"s_lshl_b32 {s(sHEAD)}, {s(sP)}, 3")
    A(f"s_add_u32 {s(sHEAD)}, {s(sHEAD)}, {s(sT2)}")
    A(f"s_lshl_b32 {s(sC0)}, {s(sT3)}, 1")
    A(f"s_add_u32 {s(sC0)}, {s(sC0)}, {s(sT2)}")
    A(f"s_sub_u32 {s(sC)}, {s(sC0)}, 7")
    A(f"s_cmp_ge_u32 {s(sC0)}, 7")
    A(f"s_cselect_b32 {s(sC0)}, {s(sC)}, {s(sC0)}")
    A(f"s_sub_u32 {s(sT3)}, 4, {s(sP)}")
    A(f"s_cmp_eq_u32 {s(sT2)}, {s(sT3)}")
    A(f"s_cselect_b32 {s(sIDLE)}, 1, 0")
    A(f"s_cmp_gt_u32 {s(sT2)}, {s(sT3)}")
    A(f"s_cselect_b32 {s(sT3)}, 1, 0")
    A(f"s_sub_u32 {s(sCB)}, {s(sT2)}, {s(sT3)}")
    A(f"s_mul_i32 {s(sFB)}, {s(sP)}, 7")
    A(f"s_add_u32 {s(sFB)}, {s(sFB)}, {s(sCB)}")
    srd(SX, 2048 * 896)
    srd(SQKV, 448 * 2688)
    A(f"s_lshl_b32 {s(sW4K)}, {s(sW)}, 12")
    A(f"s_lshl_b32 {s(sXB)}, {s(sRB)}, 2")
    A(f"s_add_u32 {s(sXB)}, {s(sXB)}, {s(sW)}")
    A(f"s_mul_i32 {s(sXB)}, {s(sXB)}, {32*896}")
    A(f"v_lshrrev_b32 {v(vT+2)}, 3, {v(vLANE)}")
    A(f"v_mul_u32_u24 {v(vT+2)}, 896, {v(vT+2)}")
    A(f"v_lshrrev_b32 {v(vT+3)}, 4, {v(vLANE)}")
    A(f"v_and_b32 {v(vT+4)}, 7, {v(vLANE)}")
    A(f"v_xor_b32 {v(vT+3)}, {v(vT+3)}, {v(vT+4)}")
    A(f"v_lshl_add_u32 {v(vXO)}, {v(vT+3)}, 4, {v(vT+2)}")
    A(f"v_xor_b32 {v(vT+3)}, 4, {v(vT+3)}")
    A(f"v_lshl_add_u32 {v(vXO+1)}, {v(vT+3)}, 4, {v(vT+2)}")
    A(f"v_add_u32 {v(vXO+1)}, {7168-1024}, {v(vXO+1)}")
    A(f"v_add_u32 {v(vXO+2)}, {2*(7168-1024)}, {v(vXO)}")
    A(f"v_add_u32 {v(vXO+3)}, {2*(7168-1024)}, {v(vXO+1)}")
    A(f"s_mul_i32 {s(sT2)}, {s(sW)}, {16*2688}")
    A(f"s_mul_i32 {s(sT3)}, {s(sHEAD)}, 56")
    A(f"s_add_u32 {s(sT2)}, {s(sT2)}, {s(sT3)}")
    A(f"v_lshrrev_b32 {v(vT+2)}, 2, {v(vLANE)}")
    A(f"v_mul_u32_u24 {v(vT+2)}, 2688, {v(vT+2)}")
    A(f"v_and_b32 {v(vT+3)}, 3, {v(vLANE)}")
    A(f"v_lshlrev_b32 {v(vT+3)}, 4, {v(vT+3)}")
    A(f"v_min_u32 {v(vT+3)}, 40, {v(vT+3)}")
    A(f"v_add3_u32 {v(vWO)}, {v(vT+2)}, {v(vT+3)}, {s(sT2)}")
    A(f"s_mov_b32 {s(sC)}, {s(sC0)}")
    A.wait(lg="all")
    stamp(0)


def next_chunk():
    A(f"s_add_u32 {s(sC)}, {s(sC)}, 1")
    A(f"s_cmp_eq_u32 {s(sC)}, 7")
    A(f"s_cselect_b32 {s(sC)}, 0, {s(sC)}")


def issue_w(t):
    A(f"s_lshr_b32 {s(sT0)}, {s(sW4K)}, 1")
    A(f"s_add_u32 m0, {s(sT0)}, {WKV + t*8192}")
    A(f"s_mul_i32 {s(sT0)}, {s(sC)}, {64*2688}")
    A(f"s_add_u32 {s(sT1)}, {s(sT0)}, 896")
    A(f"s_add_u32 {s(sT0)}, {s(sT0)}, {1792-1024}")
    dma(vWO, SQKV, s(sT1), 0, f"c{t}")
    dma(vWO, SQKV, s(sT0), 1024, f"c{t}")


def issue_x(t):
    A(f"s_add_u32 m0, {s(sW4K)}, {XR + (t % 6)*16384}")
    A(f"s_lshl_b32 {s(sT0)}, {s(sC)}, 7")
    A(f"s_add_u32 {s(sT0)}, {s(sT0)}, {s(sXB)}")
    for i in range(4):
        dma(vXO + i, SX, s(sT0), 1024 * i, f"c{t}")


XF = 32
WT = 144
ACK, ACV, ACQ = 176, 192, 208
BM, BR = 224, 240


def phi_pack(acc, cs_op, mean_op, r_op, dst, tmp):
    def sel(ops):
        lo = [1 if (o[2] and o[1]) else 0 for o in ops]
        hi = [(1 if o[1] else 0) if o[2] else 1 for o in ops]
        return lo, hi
    for i in range(8):
        pa = (v(acc + 2*i, 2), 0, False)
        lo, hi = sel([mean_op(i), cs_op(i), pa])
        A(f"v_pk_fma_f32 {pa[0]}, {mean_op(i)[0]}, {cs_op(i)[0]}, {pa[0]} op_sel:{lo} op_sel_hi:{hi} neg_lo:[1,0,0] neg_hi:[1,0,0]".replace(" ", " ").replace(", 0", ",0").replace(", 1", ",1"))
    for i in range(8):
        pa = (v(acc + 2*i, 2), 0, False)
        lo, hi = sel([pa, r_op(i)])
        A(f"v_pk_mul_f32 {pa[0]}, {pa[0]}, {r_op(i)[0]} op_sel:{lo} op_sel_hi:{hi}".replace(", 0", ",0").replace(", 1", ",1"))
    if tmp is None:
        for i in range(8):
            A(f"v_cvt_pk_bf16_f32 {v(dst+i)}, {v(acc+2*i)}, {v(acc+2*i+1)}")
        return
    for i in range(8):
        A(f"v_pk_mul_f32 {v(tmp+2*i,2)}, {v(acc+2*i,2)}, {s(sL2E,2)}")
    for i in range(16):
        A(f"v_exp_f32 {v(tmp+i)}, {v(tmp+i)} clamp")
        A(f"v_max_f32 {v(acc+i)}, 0, {v(acc+i)}")
    for i in range(8):
        A(f"v_pk_add_f32 {v(acc+2*i,2)}, {v(acc+2*i,2)}, {v(tmp+2*i,2)}")
    for i in range(8):
        A(f"v_pk_add_f32 {v(acc+2*i,2)}, {v(acc+2*i,2)}, {s(sEPS,2)}")
    for i in range(8):
        A(f"v_cvt_pk_bf16_f32 {v(dst+i)}, {v(acc+2*i)}, {v(acc+2*i+1)}")


vPOI = 224


def phaseA():
    for t in range(6):
        issue_w(t)
        issue_x(t)
        next_chunk()
        if t == 0:
            srd(SWS, WS_BYTES)
            A(f"v_lshlrev_b32 {v(vL16)}, 4, {v(vLANE)}")
            for k in range(4):
                A(f"v_mov_b32 {v(vPOI+k)}, -1")
            A(f"s_lshl_b32 {s(sKVPW)}, {s(sHEAD)}, 4")
            A(f"s_add_u32 {s(sKVPW)}, {s(sKVPW)}, {s(sRB)}")
            A(f"s_lshl_b32 {s(sKVPW)}, {s(sKVPW)}, 2")
            A(f"s_add_u32 {s(sKVPW)}, {s(sKVPW)}, {s(sW)}")
            A(f"s_lshl_b32 {s(sKVPW)}, {s(sKVPW)}, 10")
            A(f"s_lshl_b32 {s(sOW)}, {s(sRB)}, 2")
            A(f"s_add_u32 {s(sOW)}, {s(sOW)}, {s(sW)}")
            A(f"s_lshl_b32 {s(sOW)}, {s(sOW)}, 4")
            A(f"s_add_u32 {s(sOW)}, {s(sOW)}, {s(sHEAD)}")
            A(f"s_lshl_b32 {s(sOW)}, {s(sOW)}, 11")
            A(f"s_add_u32 {s(sOW)}, {s(sOW)}, {OO}")
        if t == 1:
            A.vmem(f"buffer_store_dwordx4 {v(vPOI,4)}, {v(vL16)}, {s(SWS,4)}, {s(sKVPW)} offen sc1", "c2")
            A.vmem(f"buffer_store_dwordx4 {v(vPOI,4)}, {v(vL16)}, {s(SWS,4)}, {s(sOW)} offen sc1", "c2")
            A.vmem(f"buffer_store_dwordx4 {v(vPOI,4)}, {v(vL16)}, {s(SWS,4)}, {s(sOW)} offen offset:1024 sc1", "c2")
    issue_w(6)
    A(f"v_and_b32 {v(vT)}, 31, {v(vLANE)}")
    A(f"v_lshrrev_b32 {v(vT+1)}, 5, {v(vLANE)}")
    A(f"v_bfe_u32 {v(vT+2)}, {v(vLANE)}, 1, 3")
    A(f"v_xor_b32 {v(vT+2)}, {v(vT+2)}, {v(vT+1)}")
    A(f"v_lshlrev_b32 {v(vT+2)}, 4, {v(vT+2)}")
    A(f"v_lshl_add_u32 {v(vT+2)}, {v(vT)}, 7, {v(vT+2)}")
    A(f"v_add_u32 {v(vXR)}, {s(sW4K)}, {v(vT+2)}")
    for j in range(1, 4):
        A(f"v_xor_b32 {v(vXR+j)}, {32*j}, {v(vXR)}")
    A(f"v_bfe_u32 {v(vT+2)}, {v(vLANE)}, 2, 2")
    A(f"v_lshl_add_u32 {v(vT+2)}, {v(vT+1)}, 3, {v(vT+2)}")
    A(f"v_lshlrev_b32 {v(vT+2)}, 6, {v(vT+2)}")
    A(f"v_bfe_u32 {v(vT+3)}, {v(vLANE)}, 4, 1")
    A(f"v_and_b32 {v(vT+4)}, 3, {v(vLANE)}")
    A(f"v_lshl_add_u32 {v(vT+3)}, {v(vT+3)}, 2, {v(vT+4)}")
    A(f"v_cmp_lt_u32 vcc, 5, {v(vT+3)}")
    A(f"v_xor_b32 {v(vT+4)}, 1, {v(vT+3)}")
    A(f"v_cndmask_b32 {v(vT+3)}, {v(vT+3)}, {v(vT+4)}, vcc")
    A(f"v_lshl_add_u32 {v(vWR0)}, {v(vT+3)}, 3, {v(vT+2)}")
    A(f"v_add_u32 {v(vWR)}, {WKV}, {v(vWR0)}")
    for reg in (vSUM, vSQ, vCSK, vCSV, vCSQ):
        A(f"v_mov_b32 {v(reg)}, 0")
    A(f"s_mov_b32 {s(sONES)}, 0x3f803f80")
    A(f"s_mov_b32 {s(sL2E)}, 0x3fb8aa3b")
    A(f"s_mov_b32 {s(sL2E+1)}, 0x3fb8aa3b")
    A(f"s_mov_b32 {s(sEPS)}, 0x358637bd")
    A(f"s_mov_b32 {s(sEPS+1)}, 0x358637bd")
    A(f"s_mov_b32 {s(sUP)}, 0")
    A(f"s_mov_b32 {s(sUP+1)}, -1")
    srd(SDBG, 256)
    srd(SWO, 448 * 896)
    srd(SWG, 448 * 3584)
    srd(SWU, 448 * 3584 + 2048)
    A(f"s_sub_u32 {s(SWU)}, {s(SWU)}, 2048")
    A(f"s_subb_u32 {s(SWU+1)}, {s(SWU+1)}, 0")
    srd(SWD, 1792 * 896)
    srd(SOUT, 2048 * 896)
    for t in range(7):
        A.wait(vm=f"c{t}")
        A("s_barrier")
        if t == 0:
            stamp(1)
        if t == 2:
            lab = A.label("L_cnt")
            A(f"s_cmp_lg_u32 {s(sW)}, 0")
            A(f"s_cbranch_scc1 {lab}")
            A(f"s_and_b32 {s(sT0)}, s2, 63")
            A(f"s_lshl_b32 {s(sT0)}, {s(sT0)}, 2")
            A(f"v_mov_b32 {v(vT)}, 1")
            A(f"v_mov_b32 {v(vT+1)}, 0")
            A("s_mov_b64 exec, 1")
            A(f"buffer_atomic_add {v(vT)}, {v(vT+1)}, {s(SDBG,4)}, {s(sT0)} offen sc1")
            A("s_mov_b64 exec, -1")
            A(f"{lab}:")
        if t == 4:
            for j in range(4):
                A(f"v_add_u32 {v(vXR+j)}, 0x10000, {v(vXR+j)}")
        if t == 6:
            for j in range(4):
                A(f"v_subrev_u32 {v(vXR+j)}, 0x10000, {v(vXR+j)}")
        xo = ((t % 6) * 16384) & 0xffff
        for j in range(4):
            A.lds(f"ds_read_b128 {v(XF + (4*t+j)*4, 4)}, {v(vXR+j)} offset:{xo}", f"s{j}")
            for m in range(2):
                for rd in range(2):
                    A.lds(f"ds_read_b64_tr_b16 {v(WT + j*8 + m*4 + rd*2, 2)}, {v(vWR)} offset:{t*8192 + j*2048 + m*1024 + rd*256}", f"s{j}")
        for j in range(4):
            A.wait(lg=f"s{j}")
            if j == 3 and t == 0:
                issue_x(6)
            if j == 3 and t == 2:
                A(f"s_mov_b32 {s(sC)}, {s(sC0)}")
                for tq in range(7):
                    A(f"s_add_u32 m0, {s(sW4K)}, {16384 + (tq >> 2)*16384 + (tq & 3)*1024}")
                    A(f"s_mul_i32 {s(sT0)}, {s(sC)}, {64*2688}")
                    dma(vWO, SQKV, s(sT0), 0, "wq")
                    if tq < 6:
                        next_chunk()
            x = XF + (4*t+j)*4
            first = (t == 0 and j == 0)
            mfma(ACK, x, WT + j*8, "0" if first else None)
            for k in range(4):
                A(f"v_dot2c_f32_bf16 {v(vSUM)}, {s(sONES)}, {v(x+k)}")
                A(f"v_dot2c_f32_bf16 {v(vSQ)}, {v(x+k)}, {v(x+k)}")
            mfma(ACV, x, WT + j*8 + 4, "0" if first else None)
            for k in range(4):
                A(f"v_dot2c_f32_bf16 {v(vCSK)}, {s(sONES)}, {v(WT+j*8+k)}")
                A(f"v_dot2c_f32_bf16 {v(vCSV)}, {s(sONES)}, {v(WT+j*8+4+k)}")
    stamp(2)
    for i, reg in enumerate((vSUM, vSQ, vCSK, vCSV)):
        A(f"v_mov_b32 {v(vT+i)}, {v(reg)}")
    for i, reg in enumerate((vSUM, vSQ, vCSK, vCSV)):
        A(f"v_permlane32_swap_b32 {v(reg)}, {v(vT+i)}")
    for i, reg in enumerate((vSUM, vSQ, vCSK, vCSV)):
        A(f"v_add_f32 {v(reg)}, {v(reg)}, {v(vT+i)}")
    A(f"v_mul_f32 {v(vMEAN)}, 0x3b124925, {v(vSUM)}")
    A(f"v_mul_f32 {v(vT)}, 0x3b124925, {v(vSQ)}")
    A(f"v_fma_f32 {v(vT)}, -{v(vMEAN)}, {v(vMEAN)}, {v(vT)}")
    A(f"v_max_f32 {v(vT)}, 0, {v(vT)}")
    A(f"v_add_f32 {v(vT)}, 0x3727c5ac, {v(vT)}")
    A(f"v_rsq_f32 {v(vRSTD)}, {v(vT)}")
    A(f"s_lshl_b32 {s(sT0)}, {s(sW)}, 8")
    A(f"s_add_u32 {s(sT0)}, {s(sT0)}, {MISC}")
    A(f"v_lshl_add_u32 {v(vT+1)}, {v(vLANE)}, 2, {s(sT0)}")
    A(f"v_cndmask_b32 {v(vT+2)}, {v(vMEAN)}, {v(vRSTD)}, {s(sUP,2)}")
    A.lds(f"ds_write_b32 {v(vT+1)}, {v(vT+2)}", "st")
    A(f"v_lshrrev_b32 {v(vT+3)}, 5, {v(vLANE)}")
    A(f"v_lshl_add_u32 {v(vT+9)}, {v(vT+3)}, 4, {s(sT0)}")
    A.wait(lg="st")
    for q in range(4):
        A.lds(f"ds_read_b128 {v(BM+4*q,4)}, {v(vT+9)} offset:{32*q}", "bm")
    for q in range(4):
        A.lds(f"ds_read_b128 {v(BR+4*q,4)}, {v(vT+9)} offset:{128+32*q}", "br")
    A(f"v_and_b32 {v(vT)}, 31, {v(vLANE)}")
    A(f"v_cmp_eq_u32 vcc, 28, {v(vT)}")
    A(f"v_mov_b32 {v(vT+8)}, {s(sONES)}")
    A.wait(lg="br")
    PK, PV = WT, WT + 8
    phi_pack(ACK, lambda i: (v(vCSK, 2), 0, True), lambda i: (v(BM+2*i, 2), 0, False), lambda i: (v(BR+2*i, 2), 0, False), PK, ACQ)
    phi_pack(ACV, lambda i: (v(vCSK, 2), 1, True), lambda i: (v(BM+2*i, 2), 0, False), lambda i: (v(BR+2*i, 2), 0, False), PV, None)
    for i in range(8):
        A(f"v_cndmask_b32 {v(PV+i)}, {v(PV+i)}, {v(vT+8)}, vcc")
    KV = ACK
    mfma(KV, PK, PV, "0")
    mfma(KV, PK + 4, PV + 4)
    A(f"v_add_u32 {v(vT)}, {s(sW4K)}, {v(vL16)}")
    A(f"s_lshl_b32 {s(sT0)}, {s(sW)}, 10")
    A(f"v_add_u32 {v(vT+1)}, {s(sT0)}, {v(vL16)}")
    for q in range(4):
        A.lds(f"ds_write_b128 {v(vT)}, {v(KV+4*q,4)} offset:{49152 + q*1024}", "kw")
    A.wait(lg="kw")
    A("s_barrier")
    for w in range(4):
        A.lds(f"ds_read_b128 {v(ACV+4*w,4)}, {v(vT+1)} offset:{49152 + w*4096}", f"kr{w}")
    A.wait(lg="kr1")
    for k in (0, 2):
        A(f"v_pk_add_f32 {v(ACV+k,2)}, {v(ACV+k,2)}, {v(ACV+4+k,2)}")
    A.wait(lg="kr3")
    for k in (0, 2):
        A(f"v_pk_add_f32 {v(ACV+8+k,2)}, {v(ACV+8+k,2)}, {v(ACV+12+k,2)}")
    for k in (0, 2):
        A(f"v_pk_add_f32 {v(ACV+k,2)}, {v(ACV+k,2)}, {v(ACV+8+k,2)}")
    A.vmem(f"buffer_store_dwordx4 {v(ACV,4)}, {v(vL16)}, {s(SWS,4)}, {s(sKVPW)} offen sc1", "kvst")
    stamp(3)


vRO = 2
vCO = 224
XRES = 22


def setup_late():
    A(f"v_lshrrev_b32 {v(vT)}, 3, {v(vLANE)}")
    A(f"v_mul_u32_u24 {v(vT)}, 896, {v(vT)}")
    A(f"v_bfe_u32 {v(vT+1)}, {v(vLANE)}, 4, 1")
    A(f"v_lshlrev_b32 {v(vT+1)}, 2, {v(vT+1)}")
    A(f"v_and_b32 {v(vRO)}, 7, {v(vLANE)}")
    A(f"v_xor_b32 {v(vT+1)}, {v(vT+1)}, {v(vRO)}")
    A(f"s_lshl_b32 {s(sT0)}, {s(sCB)}, 7")
    A(f"v_lshl_add_u32 {v(vWO)}, {v(vRO)}, 4, {v(vT)}")
    A(f"v_lshl_add_u32 {v(vRO)}, {v(vT+1)}, 4, {v(vT)}")
    A(f"v_add_u32 {v(vRO)}, {s(sT0)}, {v(vRO)}")
    for i in range(1, 4):
        A(f"v_add_u32 {v(vRO+i)}, {i*(7168-1024)}, {v(vRO)}")
    A(f"s_lshl_b32 {s(sHW)}, {s(sRB)}, 2")
    A(f"s_add_u32 {s(sHW)}, {s(sHW)}, {s(sP)}")
    A(f"s_lshl_b32 {s(sHW)}, {s(sHW)}, 2")
    A(f"s_add_u32 {s(sHW)}, {s(sHW)}, {s(sW)}")
    A(f"s_mul_i32 {s(sHW)}, {s(sHW)}, {8*896}")
    A(f"s_add_u32 {s(sHW)}, {s(sHW)}, {s(sT0)}")
    A(f"s_mul_i32 {s(sSTW)}, {s(sRB)}, 7")
    A(f"s_add_u32 {s(sSTW)}, {s(sSTW)}, {s(sCB)}")
    A(f"s_lshl_b32 {s(sSTW)}, {s(sSTW)}, 1")
    A(f"s_add_u32 {s(sSTW)}, {s(sSTW)}, {s(sP)}")
    A(f"s_lshl_b32 {s(sSTW)}, {s(sSTW)}, 2")
    A(f"s_add_u32 {s(sSTW)}, {s(sSTW)}, {s(sW)}")
    A(f"s_lshl_b32 {s(sSTW)}, {s(sSTW)}, 7")
    A(f"s_add_u32 {s(sSTW)}, {s(sSTW)}, {ST}")
    A(f"s_mul_i32 {s(sGW)}, {s(sRB)}, 448")
    A(f"s_lshl_b32 {s(sT1)}, {s(sFB)}, 3")
    A(f"s_add_u32 {s(sGW)}, {s(sGW)}, {s(sT1)}")
    A(f"s_lshl_b32 {s(sT1)}, {s(sW)}, 1")
    A(f"s_add_u32 {s(sGW)}, {s(sGW)}, {s(sT1)}")
    A(f"s_lshl_b32 {s(sGW)}, {s(sGW)}, 10")
    A(f"s_add_u32 {s(sGW)}, {s(sGW)}, {GG}")


vRM = vWO
vCW = 7
vCR = 14


def setup_cw():
    A(f"s_lshl_b32 {s(sT0)}, {s(sFB)}, 2")
    A(f"s_add_u32 {s(sT0)}, {s(sT0)}, {s(sW)}")
    A(f"s_lshl_b32 {s(sT0)}, {s(sT0)}, 6")
    A(f"v_lshrrev_b32 {v(vT)}, 2, {v(vLANE)}")
    A(f"v_mul_u32_u24 {v(vT)}, 3584, {v(vT)}")
    A(f"v_and_b32 {v(vT+1)}, 3, {v(vLANE)}")
    A(f"v_lshlrev_b32 {v(vT+1)}, 4, {v(vT+1)}")
    A(f"v_add3_u32 {v(vCW)}, {v(vT)}, {v(vT+1)}, {s(sT0)}")
    A(f"v_add_u32 {v(vCW+1)}, {16*3584-1024}, {v(vCW)}")
    A(f"v_xor_b32 {v(vCW+2)}, 32, {v(vCW)}")
    A(f"v_add_u32 {v(vCW+3)}, {16*3584-1024}, {v(vCW+2)}")
    A(f"v_bfe_u32 {v(vT)}, {v(vLANE)}, 2, 2")
    A(f"v_lshrrev_b32 {v(vT+1)}, 5, {v(vLANE)}")
    A(f"v_lshl_add_u32 {v(vT)}, {v(vT+1)}, 3, {v(vT)}")
    A(f"v_lshlrev_b32 {v(vT)}, 6, {v(vT)}")
    A(f"v_bfe_u32 {v(vT+1)}, {v(vLANE)}, 4, 1")
    A(f"v_mul_u32_u24 {v(vT+1)}, {2048+32}, {v(vT+1)}")
    A(f"v_add3_u32 {v(vT)}, {v(vT)}, {v(vT+1)}, {s(sW4K)}")
    A(f"v_and_b32 {v(vT+1)}, 3, {v(vLANE)}")
    A(f"v_lshl_add_u32 {v(vCR)}, {v(vT+1)}, 3, {v(vT)}")
    A(f"v_xor_b32 {v(vCR+1)}, 32, {v(vCR)}")
    A(f"v_add_u32 {v(vCR+2)}, 0x10000, {v(vCR)}")
    A(f"v_add_u32 {v(vCR+3)}, 0x10000, {v(vCR+1)}")


CW = 256
CSA = 256 + 224
vONE = 28


def cw_issue(P, slot):
    A(f"s_add_u32 m0, {s(sW4K)}, {XR + slot*16384}")
    A(f"s_mov_b32 {s(sT0)}, {P*32*3584}")
    dma(vCW, SWG, s(sT0), 0, f"cw{P}")
    dma(vCW + 1, SWG, s(sT0), 1024, f"cw{P}")
    dma(vCW + 2, SWU, s(sT0), 2048, f"cw{P}")
    dma(vCW + 3, SWU, s(sT0), 3072, f"cw{P}")


def cw_read(P, slot):
    A.wait(vm=f"cw{P}")
    base = slot * 16384
    hi = 2 if base >= 65536 else 0
    for ks in range(2):
        for t in range(2):
            for rd in range(2):
                A.lds(f"ds_read_b64_tr_b16 {r(CW + ((2*P+ks)*2+t)*4 + rd*2, 2)}, {v(vCR+hi+t)} offset:{(base & 0xffff) + ks*1024 + rd*256}", f"cr{P}")


def cw_colsum(P, ones):
    A.wait(lg=f"cr{P}")
    for ks in range(2):
        for t in range(2):
            mfma(CSA + 16*t, CW + ((2*P+ks)*2+t)*4, ones, "0" if (P == 0 and ks == 0) else None)


G1 = 32
PQ = 144
ACN = 176


def phaseQ():
    setup_late()
    A(f"s_mul_i32 {s(sT1)}, {s(sW)}, {112*896}")
    A(f"s_mul_i32 {s(sT2)}, {s(sW)}, {14*1024}")
    A(f"s_add_u32 {s(sT2)}, {s(sT2)}, {WKV}")
    for g in range(4):
        A(f"s_add_u32 m0, {s(sT2)}, {g*4096}")
        if g:
            A(f"s_add_u32 {s(sT1)}, {s(sT1)}, {32*896}")
        else:
            A("s_nop 0")
        for i in range(4 if g < 3 else 2):
            dma(vRO + i, SWO, s(sT1), 1024 * i, "wo")
    for k in range(4):
        A(f"v_mov_b32 {v(vPOI+k)}, -1")
    A(f"s_add_u32 {s(sT1)}, {s(sHW)}, {64*896}")
    A.vmem(f"buffer_load_dwordx4 {v(BR,4)}, {v(vRM)}, {s(SX,4)}, {s(sHW)} offen", "xres")
    A.vmem(f"buffer_load_dwordx4 {v(BR+4,4)}, {v(vRM)}, {s(SX,4)}, {s(sT1)} offen", "xres")
    A(f"s_add_u32 {s(sT0)}, {s(sHW)}, {HH_}")
    A(f"s_add_u32 {s(sT1)}, {s(sT1)}, {HH_}")
    A.vmem(f"buffer_store_dwordx4 {v(vPOI,4)}, {v(vRM)}, {s(SWS,4)}, {s(sT0)} offen sc1", "poi")
    A.vmem(f"buffer_store_dwordx4 {v(vPOI,4)}, {v(vRM)}, {s(SWS,4)}, {s(sT1)} offen sc1", "poi")
    A("s_mov_b64 exec, 0xff")
    A.vmem(f"buffer_store_dwordx4 {v(vPOI,4)}, {v(vL16)}, {s(SWS,4)}, {s(sSTW)} offen sc1", "poi")
    A("s_mov_b64 exec, -1")
    for rt in range(4):
        A(f"s_add_u32 {s(sT0)}, {s(sGW)}, {rt*112*1024}")
        A.vmem(f"buffer_store_dwordx4 {v(vPOI,4)}, {v(vL16)}, {s(SWS,4)}, {s(sT0)} offen sc1", "poi")
        A.vmem(f"buffer_store_dwordx4 {v(vPOI,4)}, {v(vL16)}, {s(SWS,4)}, {s(sT0)} offen offset:1024 sc1", "poi")
    setup_cw()
    A.wait(vm="wq")
    A("s_barrier")
    stamp(4)
    def rdq(n):
        t, j = divmod(n, 4)
        for rd in range(2):
            A.lds(f"ds_read_b64_tr_b16 {v(WT + (n % 8)*4 + rd*2, 2)}, {v(vWR0)} offset:{16384 + (t >> 2)*16384 + j*4096 + (t & 3)*1024 + rd*256}", f"q{n}")
    for n in range(6):
        rdq(n)
    for n in range(28):
        if n + 6 < 28:
            rdq(n + 6)
        A.wait(lg=f"q{n}")
        w_ = WT + (n % 8) * 4
        mfma(ACQ, w_, XF + n*4, "0" if n == 0 else None)
        for k in range(4):
            A(f"v_dot2c_f32_bf16 {v(vCSQ)}, {s(sONES)}, {v(w_+k)}")
    stamp(5)
    top = A.label("L_pc")
    ok = A.label("L_pk")
    A(f"v_lshlrev_b32 {v(vT+1)}, 2, {v(vLANE)}")
    A(f"s_mov_b32 {s(sSPIN)}, 0")
    A(f"{top}:")
    A(f"buffer_load_dword {v(vT)}, {v(vT+1)}, {s(SDBG,4)}, 0 offen sc1")
    A.wait(vm="all")
    A(f"v_cmp_ne_u32 vcc, 4, {v(vT)}")
    A(f"s_cbranch_vccz {ok}")
    A(f"s_add_u32 {s(sSPIN)}, {s(sSPIN)}, 1")
    A(f"s_cmp_lt_u32 {s(sSPIN)}, {OPT['spin']}")
    A(f"s_cbranch_scc1 {top}")
    A(f"{ok}:")
    stamp(6)

    def q_epilogue():
        halves_sum(vCSQ, vT)
        A(f"s_lshl_b32 {s(sT0)}, {s(sW)}, 8")
        A(f"s_add_u32 {s(sT0)}, {s(sT0)}, {MISC}")
        A(f"v_lshl_add_u32 {v(vT+1)}, {v(vLANE)}, 2, {s(sT0)}")
        A.lds(f"ds_write_b32 {v(vT+1)}, {v(vCSQ)}", "st")
        A.wait(lg="st")
        for q in range(4):
            A.lds(f"ds_read_b128 {v(BM+4*q,4)}, {v(vT+9)} offset:{32*q}", "bm")
        A.wait(lg="bm")
        phi_pack(ACQ, lambda i: (v(BM+2*i, 2), 0, False), lambda i: (v(vMEAN, 2), 0, True), lambda i: (v(vMEAN, 2), 1, True), PQ, ACK)
        for i in (6, 7):
            A(f"v_cndmask_b32 {v(PQ+i)}, {v(PQ+i)}, 0, {s(sUP,2)}")
        for k in range(8):
            A(f"v_mov_b32 {v(XRES+k)}, {v(BR+k)}")

    A(f"s_lshl_b32 {s(sT3)}, {s(sHEAD)}, 16")
    A(f"s_lshl_b32 {s(sT0)}, {s(sW)}, 10")
    A(f"s_add_u32 {s(sT3)}, {s(sT3)}, {s(sT0)}")
    for g in range(16):
        A(f"s_add_u32 {s(sM+1+g)}, {s(sT3)}, {KVP + g*4096}")
    groups = [dict(loads=[f"buffer_load_dwordx4 {v(G1+4*g,4)}, {v(vL16)}, {s(SWS,4)}, {s(sM+1+g)} offen sc1"],
                   regs=list(range(G1+4*g, G1+4*g+4))) for g in range(16)]

    def after():
        cw_issue(0, 0)
        cw_issue(1, 4)
    gather("g1", groups, after_issue=after, pre_wait=q_epilogue)
    stamp(7)
    n = 16
    while n > 1:
        n //= 2
        for g in range(n):
            for k in (0, 2):
                A(f"v_pk_add_f32 {v(G1+4*g+k,2)}, {v(G1+4*g+k,2)}, {v(G1+4*(g+n)+k,2)}")
    A(f"v_cvt_pk_bf16_f32 {v(G1)}, {v(G1)}, {v(G1+1)}")
    A(f"v_cvt_pk_bf16_f32 {v(G1+1)}, {v(G1+2)}, {v(G1+3)}")
    A(f"s_lshr_b32 {s(sT0)}, {s(sW)}, 1")
    A(f"s_lshl_b32 {s(sT0)}, {s(sT0)}, 10")
    A(f"s_and_b32 {s(sT1)}, {s(sW)}, 1")
    A(f"s_lshl_b32 {s(sT1)}, {s(sT1)}, 3")
    A(f"s_add_u32 {s(sT0)}, {s(sT0)}, {s(sT1)}")
    A(f"v_add_u32 {v(vT+1)}, {MISC + 1024}, {v(vL16)}")
    A(f"v_add_u32 {v(vT)}, {s(sT0)}, {v(vT+1)}")
    A.lds(f"ds_write_b64 {v(vT)}, {v(G1,2)}", "kf")
    A.wait(lg="kf")
    A("s_barrier")
    A.lds(f"ds_read_b128 {v(G1+4,4)}, {v(vT+1)}", "k0")
    A.lds(f"ds_read_b128 {v(G1+8,4)}, {v(vT+1)} offset:1024", "k1")
    A.wait(lg="k0")
    mfma(ACN, G1 + 4, PQ, "0")
    A.wait(lg="k1")
    mfma(ACN, G1 + 8, PQ + 4)
    A(f"v_mov_b32 {v(vT)}, {v(ACN+12)}")
    A(f"v_mov_b32 {v(vT+1)}, {v(ACN+12)}")
    A(f"v_permlane32_swap_b32 {v(vT)}, {v(vT+1)}")
    A(f"v_add_f32 {v(vT+1)}, {s(sEPS)}, {v(vT+1)}")
    A(f"v_rcp_f32 {v(vT)}, {v(vT+1)}")
    for i in range(8):
        A(f"v_pk_mul_f32 {v(ACN+2*i,2)}, {v(ACN+2*i,2)}, {v(vT,2)} op_sel_hi:[1,0]")
    for i in range(8):
        A(f"v_cvt_pk_bf16_f32 {v(PQ+i)}, {v(ACN+2*i)}, {v(ACN+2*i+1)}")
    for i in (6, 7):
        A(f"v_cndmask_b32 {v(PQ+i)}, {v(PQ+i)}, 0, {s(sUP,2)}")
    A.vmem(f"buffer_store_dwordx4 {v(PQ,4)}, {v(vL16)}, {s(SWS,4)}, {s(sOW)} offen sc1", "ost")
    A.vmem(f"buffer_store_dwordx4 {v(PQ+4,4)}, {v(vL16)}, {s(SWS,4)}, {s(sOW)} offen offset:1024 sc1", "ost")
    stamp(8)
    A(f"s_cmp_eq_u32 {s(sIDLE)}, 1")
    A("s_cbranch_scc1 L_fin")


WOF = 96
ACB = 224
vTR = 11
vTRP = 18
HRES = 144
RED = WKV


def red_addrs(wa, ra, widx_sgpr_expr):
    A(f"v_and_b32 {v(wa)}, 31, {v(vLANE)}")
    A(f"v_lshrrev_b32 {v(wa+1)}, 5, {v(vLANE)}")
    A(f"v_and_b32 {v(wa+2)}, 7, {v(vLANE)}")
    A(f"v_xor_b32 {v(wa+1)}, {v(wa+1)}, {v(wa+2)}")
    A(f"v_lshlrev_b32 {v(wa+1)}, 4, {v(wa+1)}")
    A(f"v_lshl_add_u32 {v(wa)}, {v(wa)}, 8, {v(wa+1)}")
    A(f"v_add_u32 {v(wa)}, {widx_sgpr_expr}, {v(wa)}")
    A(f"v_lshrrev_b32 {v(ra)}, 3, {v(vLANE)}")
    A(f"v_lshlrev_b32 {v(wa+2)}, 1, {v(wa+2)}")
    A(f"v_xor_b32 {v(wa+2)}, {v(wa+2)}, {v(ra)}")
    A(f"v_lshlrev_b32 {v(wa+2)}, 4, {v(wa+2)}")
    A(f"v_lshl_add_u32 {v(ra)}, {v(ra)}, 8, {v(wa+2)}")
    A(f"s_lshl_b32 {s(sT1)}, {s(sW)}, 11")
    A(f"s_add_u32 {s(sT1)}, {s(sT1)}, {RED}")
    A(f"v_add_u32 {v(ra)}, {s(sT1)}, {v(ra)}")
    A(f"v_xor_b32 {v(ra+1)}, 16, {v(ra)}")
    for q in range(1, 4):
        A(f"v_xor_b32 {v(wa+q)}, {32*q}, {v(wa)}")


def phaseB():
    for P, slot in ((2, 5), (3, 3), (4, 1), (5, 2)):
        cw_issue(P, slot)
    A(f"v_bfe_u32 {v(vT)}, {v(vLANE)}, 2, 2")
    A(f"v_lshlrev_b32 {v(vTRP)}, 7, {v(vT)}")
    A(f"v_lshrrev_b32 {v(vT)}, 1, {v(vT)}")
    A(f"v_lshl_add_u32 {v(vTRP)}, {v(vT)}, 6, {v(vTRP)}")
    A(f"v_bfe_u32 {v(vT)}, {v(vLANE)}, 4, 1")
    A(f"v_lshl_add_u32 {v(vTRP)}, {v(vT)}, 5, {v(vTRP)}")
    A(f"v_and_b32 {v(vT)}, 3, {v(vLANE)}")
    A(f"v_lshl_add_u32 {v(vTRP)}, {v(vT)}, 3, {v(vTRP)}")
    A(f"s_and_b32 {s(sT0)}, {s(sW)}, 1")
    A(f"s_mul_i32 {s(sT0)}, {s(sT0)}, {224*128}")
    A(f"s_add_u32 {s(sT0)}, {s(sT0)}, {WKV}")
    A(f"v_add_u32 {v(vTRP)}, {s(sT0)}, {v(vTRP)}")
    A(f"v_lshrrev_b32 {v(vT)}, 5, {v(vLANE)}")
    A(f"v_lshl_add_u32 {v(vTR)}, {v(vT)}, 9, {v(vTRP)}")
    A(f"v_xor_b32 {v(vTR+1)}, 64, {v(vTR)}")
    A(f"v_xor_b32 {v(vTRP+1)}, 64, {v(vTRP)}")
    for h in range(8):
        for st in range(2):
            for nt in range(2):
                for rd in range(2):
                    ad = vTRP if (st == 1 and rd == 1) else vTR
                    A.lds(f"ds_read_b64_tr_b16 {v(WOF + ((h*2+st)*2+nt)*4 + rd*2, 2)}, {v(ad+nt)} offset:{(28*h + 16*st + 8*rd)*128}", "wr")
    A(f"v_subrev_u32 {v(vTR)}, {s(sT0)}, {v(vTR)}")
    A(f"v_subrev_u32 {v(vTR+1)}, {s(sT0)}, {v(vTR+1)}")
    ONES = ACB
    for k in range(4):
        A(f"v_mov_b32 {v(G1+60+k)}, {s(sONES)}")
    cw_read(0, 0)
    cw_read(1, 4)
    cw_colsum(0, G1 + 60)
    cw_colsum(1, G1 + 60)
    for k in range(32):
        A(f"v_mov_b32 {v(ACB+k)}, 0")
    A.wait(lg="all")
    A("s_barrier")
    stamp(9)
    A(f"s_lshr_b32 {s(sT0)}, {s(sW)}, 1")
    A(f"s_lshl_b32 {s(sT0)}, {s(sT0)}, 1")
    A(f"s_add_u32 {s(sT0)}, {s(sT0)}, {s(sP)}")
    A(f"s_lshl_b32 {s(sT1)}, {s(sRB)}, 2")
    A(f"s_add_u32 {s(sT0)}, {s(sT0)}, {s(sT1)}")
    A(f"s_lshl_b32 {s(sT0)}, {s(sT0)}, 1")
    A(f"s_and_b32 {s(sT1)}, {s(sW)}, 1")
    A(f"s_add_u32 {s(sT0)}, {s(sT0)}, {s(sT1)}")
    A(f"s_lshl_b32 {s(sT0)}, {s(sT0)}, 14")
    for g in range(4):
        A(f"s_add_u32 {s(sM+1+g)}, {s(sT0)}, {OO + g*4096}")

    def mk(h):
        def comp():
            for st in range(2):
                for nt in range(2):
                    mfma(ACB + 16*nt, WOF + ((h*2+st)*2+nt)*4, G1 + (h*2+st)*4)
        return dict(loads=[f"buffer_load_dwordx4 {v(G1+(h*2+st)*4,4)}, {v(vL16)}, {s(SWS,4)}, {s(sM+1+(h >> 1))} offen offset:{((h & 1)*2+st)*1024} sc1" for st in range(2)],
                    regs=list(range(G1+h*8, G1+h*8+8)), compute=comp)

    def after():
        cw_issue(6, 0)
        cw_issue(7, 4)

    def pre():
        for P, slot in ((2, 5), (3, 3), (4, 1), (5, 2)):
            cw_read(P, slot)
        A.wait(lg="cr2")
        cw_issue(8, 5)
    gather("g2", [mk(h) for h in range(8)], after_issue=after, pre_wait=pre)
    stamp(10)
    WA, RA = G1, G1 + 4
    A(f"s_and_b32 {s(sT0)}, {s(sW)}, 1")
    A(f"s_lshl_b32 {s(sT0)}, {s(sT0)}, 1")
    A(f"s_lshr_b32 {s(sT1)}, {s(sW)}, 1")
    A(f"s_add_u32 {s(sT0)}, {s(sT0)}, {s(sT1)}")
    A(f"s_lshl_b32 {s(sT0)}, {s(sT0)}, 13")
    A(f"s_add_u32 {s(sT0)}, {s(sT0)}, {RED}")
    red_addrs(WA, RA, s(sT0))
    for nt in range(2):
        for q in range(4):
            A.lds(f"ds_write_b128 {v(WA+q)}, {v(ACB+16*nt+4*q,4)} offset:{128*nt}", "bw")
    A.wait(lg="all")
    A("s_barrier")
    T0 = G1 + 8
    for rtl in range(2):
        for kh in range(2):
            for b in range(2):
                A.lds(f"ds_read_b128 {v(T0 + rtl*16 + kh*8 + b*4, 4)}, {v(RA+b)} offset:{(kh*2+rtl)*8192}", f"br{rtl}")
    XU = G1 + 40
    for rtl in range(2):
        for k in range(4):
            A(f"v_lshlrev_b32 {v(XU+rtl*8+2*k)}, 16, {v(XRES+rtl*4+k)}")
            A(f"v_and_b32 {v(XU+rtl*8+2*k+1)}, 0xffff0000, {v(XRES+rtl*4+k)}")
    A(f"s_add_u32 {s(sT0)}, {s(sHW)}, {HH_}")
    A(f"s_add_u32 {s(sT1)}, {s(sT0)}, {64*896}")
    for rtl in range(2):
        A.wait(lg=f"br{rtl}")
        for k in range(4):
            A(f"v_pk_add_f32 {v(XU+rtl*8+2*k,2)}, {v(XU+rtl*8+2*k,2)}, {v(T0+rtl*16+2*k,2)}")
        for k in range(4):
            A(f"v_pk_add_f32 {v(XU+rtl*8+2*k,2)}, {v(XU+rtl*8+2*k,2)}, {v(T0+rtl*16+8+2*k,2)}")
        for k in range(4):
            A(f"v_cvt_pk_bf16_f32 {v(HRES+rtl*4+k)}, {v(XU+rtl*8+2*k)}, {v(XU+rtl*8+2*k+1)}")
        A.vmem(f"buffer_store_dwordx4 {v(HRES+rtl*4,4)}, {v(vRM)}, {s(SWS,4)}, {s(sT0+rtl)} offen sc1", "hst")
    S0 = G1 + 56
    for k in range(4):
        A(f"v_mov_b32 {v(S0+k)}, 0")
    for k in range(4):
        for rtl in range(2):
            A(f"v_dot2c_f32_bf16 {v(S0+2*rtl)}, {s(sONES)}, {v(HRES+rtl*4+k)}")
            A(f"v_dot2c_f32_bf16 {v(S0+2*rtl+1)}, {v(HRES+rtl*4+k)}, {v(HRES+rtl*4+k)}")
    for pat in ("quad_perm:[1,0,3,2]", "quad_perm:[2,3,0,1]", "row_half_mirror"):
        for k in range(4):
            A(f"v_add_f32_dpp {v(S0+k)}, {v(S0+k)}, {v(S0+k)} {pat} row_mask:0xf bank_mask:0xf")
    A(f"v_lshlrev_b32 {v(vT)}, 1, {v(vLANE)}")
    A("s_mov_b32 exec_lo, 0x01010101")
    A("s_mov_b32 exec_hi, 0x01010101")
    A.vmem(f"buffer_store_dwordx4 {v(S0,4)}, {v(vT)}, {s(SWS,4)}, {s(sSTW)} offen sc1", "hst")
    A("s_mov_b64 exec, -1")
    stamp(11)


AC0, AC1 = 32, 64
CS = 96
BRG = 128
SC = 152
ET = 168
SP = 176
vHR = 7
vHG = 20
vHWR = 21
vDR = 22
DWE = [256 + 224 + 8*i for i in range(4)] + [SP + 8*i for i in range(10)]
DWL = [256 + 8*i for i in range(14)]
DW = DWE + DWL


def hpiece(rt, c):
    base = (WKV + rt*28672) if rt < 2 else (rt-2)*28672
    return base + c*4096


def dw_place(ks):
    return DWP[ks]


DWP = {}
for i_, ks_ in enumerate(range(0, 5)): DWP[ks_] = ("A", i_)
for i_, ks_ in enumerate(range(5, 10)): DWP[ks_] = ("A", i_)
for i_, ks_ in enumerate(range(10, 14)): DWP[ks_] = ("A", i_)
for i_, ks_ in enumerate(range(14, 17)): DWP[ks_] = ("B", i_)
for i_, ks_ in enumerate(range(17, 20)): DWP[ks_] = ("C", i_)
for i_, ks_ in enumerate(range(20, 25)): DWP[ks_] = ("A", i_)
for i_, ks_ in enumerate(range(25, 28)): DWP[ks_] = ("D", i_)
sDA, sD7 = sM + 20, sM + 21
AREA = {"B": WKV, "C": WKV + 28672, "D": 0}


def dw_issue_ops(ks):
    area, i = DWP[ks]
    ops = []
    if area == "A":
        ops.append(("s", f"s_add_u32 m0, {s(sDA)}, {i*2048}"))
    else:
        ops.append(("s", f"s_add_u32 m0, {s(sD7)}, {AREA[area] + i*2048}"))
    ops.append(("s", f"s_add_u32 {s(sT2)}, {s(sDWK)}, {ks*16*896}"))
    for j in range(2):
        o = f" offset:{1024*j}" if j else ""
        ops.append(("vm", f"buffer_load_dwordx4 {v(vRO+j)}, {s(SWD,4)}, {s(sT2)} offen{o} lds", f"dw{ks}"))
    return ops


def dw_read_ops(ks):
    area, i = DWP[ks]
    ops = [("wvm", f"dw{ks}")]
    for nt in range(2):
        for rd in range(2):
            if area == "A":
                ad, off = vDR, i*2048
            elif area == "D":
                ad, off = vDR + 4, i*2048
            else:
                ad, off = vDR + 2, AREA[area] - WKV + i*2048
            ops.append(("lds", f"ds_read_b64_tr_b16 {r(DW[ks] + nt*4 + rd*2, 2)}, {v(ad+nt)} offset:{off + rd*1024}", f"dr{ks}"))
    return ops


def emit_op(op):
    k = op[0]
    if k in ("s", "v"):
        A(op[1])
    elif k == "vm":
        A.vmem(op[1], op[2])
    elif k == "lds":
        A.lds(op[1], op[2])
    elif k == "wvm":
        A.wait(vm=op[1])
    elif k == "wlg":
        A.wait(lg=op[1])
    elif k == "fn":
        op[1]()


def cost(op):
    if op[0] == "v" and op[1].startswith(("v_exp", "v_rcp")):
        return 2
    if op[0] in ("fn",):
        return op[2]
    return 1


OOL = []


def epilogue_ops(acc, rt):
    mean, k1, k2, vp = SC + 4*rt, SC + 4*rt + 1, SC + 4*rt + 2, SC + 4*rt + 3
    ops = []
    for t in range(2):
        for half in range(2):
            idx = [4*half + i for i in range(4)]
            g = [acc + 16*t + i for i in idx]
            u = [acc + 16*t + 8 + i for i in idx]
            cg = [CS + 16*t + i for i in idx]
            cu = [CS + 16*t + 8 + i for i in idx]
            T = [ET + 4*((2*t+half) & 1) + i for i in range(4)]
            for i in range(4): ops.append(("v", f"v_fma_f32 {v(g[i])}, -{v(mean)}, {v(cg[i])}, {v(g[i])}"))
            for i in range(4): ops.append(("v", f"v_mul_f32 {v(T[i])}, {v(g[i])}, {v(g[i])}"))
            for i in range(4): ops.append(("v", f"v_fma_f32 {v(T[i])}, {v(T[i])}, {v(k2)}, {v(k1)}"))
            for i in range(4): ops.append(("v", f"v_mul_f32 {v(T[i])}, {v(T[i])}, {v(g[i])}"))
            for i in range(4):
                ops.append(("v", f"v_exp_f32 {v(T[i])}, {v(T[i])}"))
                ops.append(("v", f"v_fma_f32 {v(u[i])}, -{v(mean)}, {v(cu[i])}, {v(u[i])}"))
            for i in range(4): ops.append(("v", f"v_fma_f32 {v(T[i])}, {v(T[i])}, {v(vp)}, {v(vp)}"))
            for i in range(4):
                ops.append(("v", f"v_rcp_f32 {v(T[i])}, {v(T[i])}"))
                ops.append(("v", f"v_mul_f32 {v(u[i])}, {v(u[i])}, {v(g[i])}"))
            for i in range(4): ops.append(("v", f"v_mul_f32 {v(u[i])}, {v(u[i])}, {v(T[i])}"))
            for i in range(2): ops.append(("v", f"v_cvt_pk_bf16_f32 {v(acc+16*t+2*half+i)}, {v(u[2*i])}, {v(u[2*i+1])}"))
        if t == 0:
            ops.append(("s", f"s_add_u32 {s(sT3)}, {s(sGW)}, {rt*112*1024}"))
        o = " offset:1024" if t else ""
        ops.append(("vm", f"buffer_store_dwordx4 {v(acc+16*t,4)}, {v(vL16)}, {s(SWS,4)}, {s(sT3)} offen{o} sc1", "gst"))
    return ops


def phaseC():
    for P, slot in ((9, 3), (10, 1), (11, 2)):
        cw_issue(P, slot)
    ONES = BRG
    for k in range(4):
        A(f"v_mov_b32 {v(ONES+k)}, {s(sONES)}")
    for P, slot in ((6, 0), (7, 4), (8, 5)):
        cw_read(P, slot)
    A.wait(lg="cr7")
    cw_issue(12, 0)
    cw_issue(13, 4)
    A(f"s_and_b32 {s(sT0)}, {s(sW)}, 1")
    A(f"s_lshl_b32 {s(sT0)}, {s(sT0)}, 2")
    A(f"v_lshrrev_b32 {v(vHR)}, 4, {v(vLANE)}")
    A(f"v_add_u32 {v(vHR)}, {s(sT0)}, {v(vHR)}")
    A(f"v_lshlrev_b32 {v(vHR)}, 4, {v(vHR)}")
    A(f"v_lshrrev_b32 {v(vHR+1)}, 3, {v(vLANE)}")
    A(f"v_mul_u32_u24 {v(vHR+1)}, 896, {v(vHR+1)}")
    A(f"v_and_b32 {v(vHR+2)}, 0x70, {v(vL16)}")
    A(f"v_xor_b32 {v(vHR)}, {v(vHR)}, {v(vHR+2)}")
    A(f"v_add_u32 {v(26)}, {v(vHR)}, {v(vHR+1)}")
    A(f"s_lshl_b32 {s(sT0)}, {s(sW)}, 10")
    A(f"v_add_u32 {v(27)}, {s(sT0)}, {v(vL16)}")
    A(f"v_add_u32 {v(28)}, {WKV}, {v(27)}")
    HG, HWL, HWH = 26, 27, 28
    A(f"v_and_b32 {v(vT)}, 31, {v(vLANE)}")
    A(f"v_lshrrev_b32 {v(vT+1)}, 5, {v(vLANE)}")
    A(f"v_bfe_u32 {v(vHR)}, {v(vLANE)}, 1, 3")
    A(f"v_xor_b32 {v(vHR)}, {v(vHR)}, {v(vT+1)}")
    A(f"v_lshlrev_b32 {v(vHR)}, 4, {v(vHR)}")
    A(f"v_lshl_add_u32 {v(vHR)}, {v(vT)}, 7, {v(vHR)}")
    A(f"v_add_u32 {v(vHR)}, {WKV}, {v(vHR)}")
    for j in range(1, 4):
        A(f"v_xor_b32 {v(vHR+j)}, {32*j}, {v(vHR)}")
    for P in range(2, 9):
        cw_colsum(P, ONES)
    A("s_barrier")
    stamp(12)
    A(f"s_lshl_b32 {s(sT0)}, {s(sRB)}, 4")
    A(f"s_add_u32 {s(sT0)}, {s(sT0)}, {s(sW)}")
    A(f"s_mul_i32 {s(sT0)}, {s(sT0)}, {8*896}")
    for rt in range(4):
        A(f"s_add_u32 {s(sM+1+rt)}, {s(sT0)}, {HH_ + rt*32*896}")
    HB = {0: AC0, 1: AC1, 2: SP, 3: SP + 28}
    STR = SP + 56

    def hload(rt, c):
        o = f" offset:{c*128}" if c else ""
        return f"buffer_load_dwordx4 {v(HB[rt]+4*c,4)}, {v(HG)}, {s(SWS,4)}, {s(sM+1+rt)} offen{o} sc1"

    def hwrite(rt, c):
        if rt < 2:
            return f"ds_write_b128 {v(HWH)}, {v(HB[rt]+4*c,4)} offset:{hpiece(rt,c) - WKV}"
        return f"ds_write_b128 {v(HWL)}, {v(HB[rt]+4*c,4)} offset:{hpiece(rt,c)}"

    A(f"s_mul_i32 {s(sT0)}, {s(sRB)}, 7")
    A(f"s_lshl_b32 {s(sT1)}, {s(sW)}, 1")
    A(f"s_add_u32 {s(sT2)}, {s(sT1)}, 1")
    A(f"s_min_u32 {s(sT2)}, {s(sT2)}, 6")
    A(f"s_add_u32 {s(sT1)}, {s(sT1)}, {s(sT0)}")
    A(f"s_add_u32 {s(sT2)}, {s(sT2)}, {s(sT0)}")
    A(f"s_lshl_b32 {s(sT1)}, {s(sT1)}, 10")
    A(f"s_lshl_b32 {s(sT2)}, {s(sT2)}, 10")
    A(f"s_add_u32 {s(sM+5)}, {s(sT1)}, {ST}")
    A(f"s_add_u32 {s(sM+6)}, {s(sT2)}, {ST}")
    stl = [f"buffer_load_dwordx4 {v(STR+4*i,4)}, {v(vL16)}, {s(SWS,4)}, {s(sM+5+i)} offen sc1" for i in range(2)]

    def mk(c):
        return dict(loads=[hload(0, c)], regs=list(range(HB[0]+4*c, HB[0]+4*c+4)), compute=lambda: A(hwrite(0, c)))

    def after():
        for c in range(7):
            A.vmem(hload(1, c), "h1")
        for t_ in stl:
            A.vmem(t_, "h1")
        for rt in (2, 3):
            for c in range(7):
                A.vmem(hload(rt, c), f"h{rt}")

    def pre():
        for P, slot in ((9, 3), (10, 1), (11, 2), (12, 0), (13, 4)):
            cw_read(P, slot)
        for P in range(9, 14):
            cw_colsum(P, ONES)
        A(f"s_mul_i32 {s(sDA)}, {s(sW)}, 10240")
        A(f"s_add_u32 {s(sDA)}, {s(sDA)}, {56*1024}")
        A(f"s_mul_i32 {s(sD7)}, {s(sW)}, 7168")
        A(f"s_mul_i32 {s(sDWK)}, {s(sW)}, {448*896}")
    gather("g3", [mk(c) for c in range(7)], after_issue=after, pre_wait=pre)
    A.wait(lg="all")
    A("s_barrier")
    stamp(13)

    def check_ops(tag, regs, loads):
        lab = A.label("L_chk")
        back = A.label("L_bk")
        ops = [("wvm", tag)]
        chk = []
        chk.append(f"v_max3_u32 {v(vT)}, {v(regs[0])}, {v(regs[1])}, {v(regs[2])}")
        rest = regs[3:]
        while rest:
            x1 = rest[1] if len(rest) > 1 else rest[0]
            chk.append(f"v_max3_u32 {v(vT)}, {v(vT)}, {v(rest[0])}, {v(x1)}")
            rest = rest[2:]
        chk.append(f"v_cmp_eq_u32 vcc, -1, {v(vT)}")
        ops += [("v", c_) for c_ in chk]
        ops.append(("fn", lambda: (A(f"s_cbranch_vccnz {lab}"), A(f"{back}:")), 1))
        blk = [f"{lab}:", f"s_mov_b32 {s(sSPIN)}, 0", f"{lab}_t:"] + loads + ["s_waitcnt vmcnt(0)"] + chk
        blk += [f"s_cbranch_vccz {back}", f"s_add_u32 {s(sSPIN)}, {s(sSPIN)}, 1", f"s_cmp_lt_u32 {s(sSPIN)}, {OPT['spin']}",
                f"s_cbranch_scc1 {lab}_t", f"s_branch {back}"]
        OOL.append(blk)
        return ops

    def tile(rt, fill):
        acc = AC0 if rt % 2 == 0 else AC1
        def rd(n):
            c, j = divmod(n, 4)
            off = hpiece(rt, c) - (WKV if rt < 2 else 0)
            A.lds(f"ds_read_b128 {v(BRG + (n % 4)*4, 4)}, {v(vHR+j)} offset:{off}", f"b{n}")
        for n in range(3):
            rd(n)
        tot = sum(cost(o) for o in fill)
        done = 0
        fi = 0
        for n in range(28):
            for t in range(2):
                if t == 0:
                    A.wait(lg=f"b{n}")
                mfma(acc + 16*t, CW + (n*2+t)*4, BRG + (n % 4)*4, "0" if n == 0 else None)
                if t == 0 and n + 3 < 28:
                    rd(n + 3)
                target = tot * (2*n + t + 1) / 54.0
                while fi < len(fill) and done < target:
                    emit_op(fill[fi]); done += cost(fill[fi]); fi += 1
        while fi < len(fill):
            emit_op(fill[fi]); fi += 1

    f0 = []
    f0 += [("v", f"v_add_u32 {v(vDR)}, {s(sDA)}, {v(vTR)}"), ("v", f"v_add_u32 {v(vDR+1)}, {s(sDA)}, {v(vTR+1)}")]
    for ks in range(0, 5):
        f0 += dw_issue_ops(ks)
    f0 += [("v", f"v_accvgpr_read_b32 {v(CS+k)}, {r(CSA+k)}") for k in range(32)]
    f0 += check_ops("h1", list(range(HB[1], HB[1]+28)) + list(range(STR, STR+8)), [hload(1, c) for c in range(7)] + stl)
    f0 += [("lds", hwrite(1, c), "hw") for c in range(7)]
    f0 += [("s", f"s_cmp_eq_u32 {s(sW)}, 3"), ("s", f"s_cselect_b32 {s(sT0)}, 0, 1.0")]
    f0 += [("v", f"v_fma_f32 {v(STR+k)}, {v(STR+4+k)}, {s(sT0)}, {v(STR+k)}") for k in range(4)]
    f0 += [("lds", f"ds_write_b128 {v(HWH)}, {v(STR,4)} offset:{MISC + 4096 - WKV}", "hw")]
    for rt in (2, 3):
        f0 += check_ops(f"h{rt}", list(range(HB[rt], HB[rt]+28)), [hload(rt, c) for c in range(7)])
        f0 += [("lds", hwrite(rt, c), "hw") for c in range(7)]
    tile(0, f0)
    A.wait(lg="all")
    A("s_barrier")
    stamp(14)
    f1 = []
    SR = SP + 64
    f1 += [("v", f"v_add_u32 {v(vT+1)}, {MISC + 4096}, {v(vL16)}")]
    f1 += [("lds", f"ds_read_b128 {v(SR+4*w,4)}, {v(vT+1)} offset:{w*1024}", "sr") for w in range(4)]
    f1 += [("v", f"v_add_u32 {v(24)}, {s(sD7)}, {v(vTR)}"), ("v", f"v_add_u32 {v(25)}, {s(sD7)}, {v(vTR+1)}")]
    f1 += [("v", f"v_mov_b32 {v(26)}, {v(24)}"), ("v", f"v_mov_b32 {v(27)}, {v(25)}")]
    f1 += [("v", f"v_add_u32 {v(24)}, {WKV}, {v(24)}"), ("v", f"v_add_u32 {v(25)}, {WKV}, {v(25)}")]
    f1 += [("wlg", "sr")]
    for k in range(4):
        f1 += [("v", f"v_add_f32 {v(SR+k)}, {v(SR+k)}, {v(SR+4+k)}"), ("v", f"v_add_f32 {v(SR+8+k)}, {v(SR+8+k)}, {v(SR+12+k)}")]
    for k in range(4):
        f1 += [("v", f"v_add_f32 {v(SR+k)}, {v(SR+k)}, {v(SR+8+k)}")]
    C1 = -2.0 * 0.7978845608028654 * 1.4426950408889634
    C2 = C1 * 0.044715
    import struct as _st
    fh = lambda x: "0x%08x" % _st.unpack("<I", _st.pack("<f", x))[0]
    for b in range(2):
        d = SC + 8*b
        f1 += [("v", f"v_mul_f32 {v(d)}, 0x3b124925, {v(SR+2*b)}"),
               ("v", f"v_mul_f32 {v(d+3)}, 0x3b124925, {v(SR+2*b+1)}"),
               ("v", f"v_fma_f32 {v(d+3)}, -{v(d)}, {v(d)}, {v(d+3)}"),
               ("v", f"v_max_f32 {v(d+3)}, 0, {v(d+3)}"),
               ("v", f"v_add_f32 {v(d+3)}, 0x3727c5ac, {v(d+3)}"),
               ("v", f"v_rsq_f32 {v(d+1)}, {v(d+3)}"),
               ("v", f"v_mov_b32 {v(d+4)}, {v(d)}"),
               ("v", f"v_mul_f32 {v(d+2)}, {v(d+1)}, {v(d+1)}"),
               ("v", f"v_mul_f32 {v(d+2)}, {v(d+2)}, {v(d+1)}"),
               ("v", f"v_mul_f32 {v(d+2)}, {fh(C2)}, {v(d+2)}"),
               ("v", f"v_mul_f32 {v(d+1)}, {fh(C1)}, {v(d+1)}"),
               ("v", f"v_mov_b32 {v(d+7)}, {v(d+3)}"),
               ("v", f"v_mov_b32 {v(d+6)}, {v(d+2)}"),
               ("v", f"v_mov_b32 {v(d+5)}, {v(d+1)}")]
        f1 += [("v", f"v_permlane32_swap_b32 {v(d+k)}, {v(d+4+k)}") for k in range(4)]
    for ks in range(14, 17):
        f1 += dw_issue_ops(ks)
    for ks in range(0, 5):
        f1 += dw_read_ops(ks)
    f1 += [("wlg", "dr4")]
    for ks in range(5, 10):
        f1 += dw_issue_ops(ks)
    f1 += epilogue_ops(AC0, 0)
    tile(1, f1)
    for j in range(4):
        A(f"v_subrev_u32 {v(vHR+j)}, {WKV}, {v(vHR+j)}")
    A.wait(lg="all")
    A("s_barrier")
    stamp(15)
    f2 = []
    for ks in range(17, 20):
        f2 += dw_issue_ops(ks)
    for ks in range(5, 10):
        f2 += dw_read_ops(ks)
    f2 += [("wlg", "dr9")]
    for ks in range(10, 14):
        f2 += dw_issue_ops(ks)
    f2 += epilogue_ops(AC1, 1)
    tile(2, f2)
    A.wait(lg="all")
    A("s_barrier")
    stamp(16)
    f3 = []
    for ks in range(25, 28):
        f3 += dw_issue_ops(ks)
    for ks in range(10, 14):
        f3 += dw_read_ops(ks)
    f3 += [("wlg", "dr13")]
    for ks in range(20, 25):
        f3 += dw_issue_ops(ks)
    f3 += epilogue_ops(AC0, 2)
    tile(3, f3)
    stamp(17)
    for op in epilogue_ops(AC1, 3):
        emit_op(op)
    stamp(18)


def phaseD():
    GB = 32
    ACD = 256 + 112
    WA, RA = 152, 156
    T0 = 32
    A(f"s_lshl_b32 {s(sT0)}, {s(sRB)}, 2")
    A(f"s_add_u32 {s(sT0)}, {s(sT0)}, {s(sP)}")
    A(f"s_lshl_b32 {s(sT0)}, {s(sT0)}, 2")
    A(f"s_add_u32 {s(sT0)}, {s(sT0)}, {s(sW)}")
    A(f"s_mul_i32 {s(sT0)}, {s(sT0)}, {28*1024}")
    for g in range(7):
        A(f"s_add_u32 {s(sM+1+g)}, {s(sT0)}, {GG + g*4096}")

    def mk(g, acc):
        def comp():
            for k in range(4):
                for nt in range(2):
                    mfma(acc + 16*nt, DW[g*4+k] + nt*4, GB + (g*4+k)*4)
        return dict(loads=[f"buffer_load_dwordx4 {v(GB+(g*4+k)*4,4)}, {v(vL16)}, {s(SWS,4)}, {s(sM+1+g)} offen offset:{k*1024} sc1" for k in range(4)],
                    regs=list(range(GB+g*16, GB+g*16+16)), compute=comp)

    def pre0():
        for ks in range(14, 28):
            for op in dw_read_ops(ks):
                emit_op(op)
        for k in range(64):
            A(f"v_accvgpr_write_b32 {r(ACD+k)}, 0")
        A(f"s_lshl_b32 {s(sT0)}, {s(sW)}, 13")
        A(f"s_add_u32 {s(sT0)}, {s(sT0)}, {RED}")
        red_addrs(WA, RA, s(sT0))
        A.wait(lg="all")
        A("s_barrier")

    def red_write(acc):
        for nt in range(2):
            for q in range(4):
                A.lds(f"ds_write_b128 {v(WA+q)}, {r(acc+16*nt+4*q,4)} offset:{128*nt}", "dwr")
        A.wait(lg="all")
        A("s_barrier")

    def red_finish(rtl):
        X = 160
        for k in range(4):
            A(f"v_lshlrev_b32 {v(X+2*k)}, 16, {v(HRES+rtl*4+k)}")
            A(f"v_and_b32 {v(X+2*k+1)}, 0xffff0000, {v(HRES+rtl*4+k)}")
        TT = [168, 22] if rtl == 0 else [32, 40, 48, 56]
        if rtl == 0:
            for w in range(4):
                tt = TT[w & 1]
                for b in range(2):
                    A.lds(f"ds_read_b128 {v(tt+4*b,4)}, {v(RA+b)} offset:{w*8192}", f"rr{w}")
                if w >= 1:
                    A.wait(lg=f"rr{w-1}")
                    for k in range(4):
                        A(f"v_pk_add_f32 {v(X+2*k,2)}, {v(X+2*k,2)}, {v(TT[(w-1) & 1]+2*k,2)}")
            A.wait(lg="rr3")
            for k in range(4):
                A(f"v_pk_add_f32 {v(X+2*k,2)}, {v(X+2*k,2)}, {v(TT[1]+2*k,2)}")
        else:
            for w in range(4):
                for b in range(2):
                    A.lds(f"ds_read_b128 {v(TT[w]+4*b,4)}, {v(RA+b)} offset:{w*8192}", f"rr{w}")
            for w in range(4):
                A.wait(lg=f"rr{w}")
                for k in range(4):
                    A(f"v_pk_add_f32 {v(X+2*k,2)}, {v(X+2*k,2)}, {v(TT[w]+2*k,2)}")
        for k in range(4):
            A(f"v_cvt_pk_bf16_f32 {v(X+k)}, {v(X+2*k)}, {v(X+2*k+1)}")
        A(f"s_add_u32 {s(sT0)}, {s(sHW)}, {rtl*64*896}")
        A.vmem(f"buffer_store_dwordx4 {v(X,4)}, {v(vRM)}, {s(SOUT,4)}, {s(sT0)} offen", "out")

    gather("g4", [mk(g, ACD) for g in range(7)], pre_wait=pre0)
    stamp(19)
    for g in range(7):
        A(f"s_add_u32 {s(sM+1+g)}, {s(sM+1+g)}, {2*112*1024}")

    def pre1():
        red_write(ACD)
        red_finish(0)
    gather("g5", [mk(g, ACD + 32) for g in range(7)], pre_wait=pre1)
    stamp(20)
    A("s_barrier")
    red_write(ACD + 32)
    red_finish(1)
    stamp(21)


def main():
    prologue()
    phaseA()
    if OPT["stop"] != "A":
        phaseQ()
        if OPT["stop"] != "Q":
            phaseB()
            if OPT["stop"] != "B":
                phaseC()
                if OPT["stop"] != "C":
                    phaseD()
    A("L_fin:")
    finish()
    for blk in OOL:
        for l in blk:
            A(l)
    A("L_exit:")
    A("s_endpgm")
    lines, nn = fix_hazards(A.lines, verbose=bool(OPT.get("v")))
    hdr = open("cdna_kernels/" + NAME + ".s.ref").read().split("; Override launch")[0]
    out = hdr + f"; @launch grid=(256,1,1) block=(256,1,1) lds={LDS_BYTES}\n"
    out += '.amdgcn_target "amdgcn-amd-amdhsa--gfx950"\n.text\n'
    out += f".globl {NAME}_kernel\n.p2align 8\n.type {NAME}_kernel,@function\n{NAME}_kernel:\n"
    out += "\n".join(("" if l.endswith(":") else "    ") + l for l in lines) + "\n"
    out += f"L_code_end:\n.set CODE_BYTES, L_code_end - {NAME}_kernel - 128\n"
    out += f'.section .rodata,"a"\n.p2align 6\n.amdhsa_kernel {NAME}_kernel\n'
    out += "  .amdhsa_next_free_vgpr 512\n  .amdhsa_next_free_sgpr 102\n  .amdhsa_accum_offset 256\n"
    out += "  .amdhsa_group_segment_fixed_size 0\n  .amdhsa_kernarg_size 80\n  .amdhsa_user_sgpr_count 2\n"
    out += "  .amdhsa_user_sgpr_kernarg_segment_ptr 1\n  .amdhsa_system_sgpr_workgroup_id_x 1\n"
    out += "  .amdhsa_float_denorm_mode_32 3\n.end_amdhsa_kernel\n"
    open(sys.argv[1], "w").write(out)
    print(f"wrote {sys.argv[1]}: {len(lines)} lines, {nn} nop states inserted")


main()
```

```python
from collections import deque
from asmlib import *

A = Asm()
OOL = []

class Clock:
    t = 0
    mf = 0
    bgn = 0

CK = Clock()
BG = deque()
SEEN, WAITED, SEENL = set(), set(), set()
V = lambda t: ("v", t)
S = lambda t: ("s", t)
BAR = ("bar",)
WV = lambda t: ("wvm", t)
WL = lambda t: ("wlg", t)
FN = lambda f, c=0: ("fn", f, c)

def opcost(op):
    k = op[0]
    if k == "v":
        t = op[1]
        if t.startswith(("v_exp", "v_rcp", "v_rsq")): return 8
        return 5 if t.startswith(("v_fma_", "v_pk", "v_cvt_pk", "v_max3", "v_accvgpr", "v_lshl_add", "v_add3", "v_bfe", "v_perm", "v_and_or")) else 4
    if k == "fn": return op[2]
    if k == "lds" and op[1].startswith("ds_write_b128"): return 16
    return 4

DROP = []
def E(op):
    k = op[0]
    if k == "vm" and any(op[2].startswith(d[0]) and d[1] in op[1] for d in DROP):
        SEEN.add(op[2]); return
    if k == "M" or k == "m":
        A(op[1])
        t = max(CK.t, CK.mf)
        CK.mf = t + (32 if k == "M" else 16)
        CK.t = t + 8
        return
    n0 = len(A.lines)
    if k in ("s", "v"): A(op[1])
    elif k == "vm":
        if op[2] in WAITED: print("WARNING: vm op issued after its tag was waited:", op)
        SEEN.add(op[2]); A.vmem(op[1], op[2])
    elif k == "lds":
        SEENL.add(op[2]); A.lds(op[1], op[2])
    elif k == "wvm":
        tags = [op[1]] if isinstance(op[1], str) else op[1]
        while any(o[0] == "vm" and o[2] in tags for u in BG for o in u["ops"]):
            print("note: forcing background for", tags)
            bg_emit()
        for t_ in tags:
            assert t_ in SEEN or t_ == "all", ("wait on unseen tag", t_)
            WAITED.add(t_)
        n0 = len(A.lines)
        A.wait(vm=op[1])
    elif k == "wlg":
        assert op[1] in SEENL or op[1] == "all", ("wait on unseen lds tag", op[1])
        A.wait(lg=op[1])
    elif k == "bar": A("s_barrier")
    elif k == "fn": op[1]()
    elif k == "bg":
        for _ in range(op[1]):
            if BG: bg_emit()
        return
    else: raise ValueError(op)
    if k in ("wvm", "wlg") and len(A.lines) == n0: return
    CK.t += opcost(op)

def bg_emit():
    u = BG.popleft()
    for o in u["ops"]: E(o)
    CK.bgn = max(CK.bgn, CK.t - 16) + u["ta"]

def bg_try():
    if BG and CK.t >= CK.bgn: bg_emit()

def bg_force(n=None):
    while BG and (n is None or n > 0):
        bg_emit()
        if n is not None: n -= 1
    CK.t = max(CK.t, CK.bgn - 128)

def bg_now(delay=0): CK.bgn = CK.t + delay

def unit(ops, lines): return dict(ops=ops, ta=lines * 8)

def run(ops, bg=True):
    for o in ops:
        E(o)
        if bg and o[0] in ("v", "M", "m", "lds"): bg_try()

def cap(fn):
    keep = A.lines; A.lines = []
    fn()
    got = A.lines; A.lines = keep
    return [("v", l) if l.startswith("v_") else ("s", l) for l in got]

def weave(main, streams=(), small=False, report=None):
    st = [dict(ops=deque(s_["ops"]), g0=s_["g0"], g1=s_["g1"], greedy=s_.get("greedy", False),
               tot=max(1, sum(opcost(o) for o in s_["ops"])), done=0, end=None) for s_ in streams]
    MEM = ("vm", "lds", "wvm", "wlg", "s", "bar", "bg")
    i = 0; g = 0; n = len(main); tstart = max(CK.t, CK.mf)
    while i < n:
        o = main[i]; E(o); i += 1
        if o[0] not in ("M", "m"): continue
        while i < n and main[i][0] in ("lds", "vm"):
            E(main[i]); i += 1
        if o[0] == "m" and not small: continue
        bg_try()
        g += 1
        j = i; res = 0
        while j < n and main[j][0] not in ("M", "m"):
            res += opcost(main[j]); j += 1
        def behind(s_):
            frac = (g - s_["g0"]) / max(1, s_["g1"] - s_["g0"])
            return s_["done"] < s_["tot"] * frac
        def late(s_):
            frac = (g - s_["g0"]) / max(1, s_["g1"] - s_["g0"])
            return frac >= 1 or s_["done"] < s_["tot"] * frac - 24
        def ok(s_):
            if not s_["ops"] or g <= s_["g0"]: return False
            fits = CK.t + opcost(s_["ops"][0]) + res <= CK.mf + 1
            return late(s_) or (fits and (s_["greedy"] or behind(s_)))
        for phase in (0, 1):
            for s_ in st:
                while ok(s_) and ((s_["ops"][0][0] in MEM) if phase == 0 else (s_["ops"][0][0] not in ("vm", "lds") or g >= s_["g1"])):
                    x = s_["ops"].popleft(); E(x); s_["done"] += opcost(x)
                    if not s_["ops"]: s_["end"] = g
    for s_ in st:
        while s_["ops"]: E(s_["ops"].popleft())
    if report: print(f"weave {report}: est {max(CK.t, CK.mf) - tstart} clk, {g} gaps, stream ends {[s_['end'] for s_ in st]}, bg left {len(BG)}")

def M32(d, x, y, zero=False):
    return ("M", f"v_mfma_f32_32x32x16_bf16 {r(d,16)}, {r(x,4)}, {r(y,4)}, {'0' if zero else r(d,16)}")
def M16(d, x, y, zero=False):
    return ("m", f"v_mfma_f32_16x16x32_bf16 {r(d,4)}, {r(x,4)}, {r(y,4)}, {'0' if zero else r(d,4)}")
def off(i): return f" offset:{i}" if i else ""
def DMA(voff, sr, soff, imm, tag):
    return ("vm", f"buffer_load_dwordx4 {v(voff)}, {s(sr,4)}, {soff} offen{off(imm)} lds", tag)
def TR(dst, addr, o, tag): return ("lds", f"ds_read_b64_tr_b16 {r(dst,2)}, {v(addr)}{off(o)}", tag)
def RD128(dst, addr, o, tag): return ("lds", f"ds_read_b128 {r(dst,4)}, {v(addr)}{off(o)}", tag)
def WR128(addr, src, o, tag): return ("lds", f"ds_write_b128 {v(addr)}, {r(src,4)}{off(o)}", tag)

def pkop(name, d, srcs, neg0=False):
    lo = ",".join("1" if m == 1 else "0" for _, m in srcs)
    hi = ",".join("0" if m == 0 else "1" for _, m in srcs)
    t = f"{name} {d}, " + ", ".join(x for x, _ in srcs) + f" op_sel:[{lo}] op_sel_hi:[{hi}]"
    if neg0:
        z = ",".join(["1"] + ["0"] * (len(srcs) - 1))
        t += f" neg_lo:[{z}] neg_hi:[{z}]"
    return V(t)

def max_lines(regs, tmp, first=True):
    out = []
    rest = list(regs)
    if first:
        out.append(f"v_max3_u32 {v(tmp)}, {v(rest[0])}, {v(rest[1])}, {v(rest[min(2, len(rest)-1)])}")
        rest = rest[3:]
    while rest:
        x1 = rest[1] if len(rest) > 1 else rest[0]
        out.append(f"v_max3_u32 {v(tmp)}, {v(tmp)}, {v(rest[0])}, {v(x1)}")
        rest = rest[2:]
    return out

def mix(a_, b_):
    out = []
    a_, b_ = list(a_), list(b_)
    while a_ or b_:
        if a_: out.append(a_.pop(0))
        if b_: out.append(b_.pop(0))
    return out
```

```python
import sys, struct
from sched import *

NAME = "sequential_preLN__linear_attn_block__glu_gated_geglu__prompt"
OPT = dict(ts=0, spin=200000, warm=1, slp=1, look=12, rep=0)
for arg in sys.argv[2:]:
    k_, v_ = arg.split("=")
    OPT[k_] = int(v_) if v_.lstrip("-").isdigit() else v_
fh = lambda x: "0x%08x" % struct.unpack("<I", struct.pack("<f", x))[0]
if OPT.get("xdw"): DROP.append(("dw", ""))
if OPT.get("xst"): DROP.append(("gst", ""))
if OPT.get("xpoi"): DROP.append(("c6", "store"))
if OPT.get("xcw"): DROP.append(("cw", ""))
REP = lambda n: n if OPT["rep"] else None

KVP = 0
OO = 1 << 20
HH_ = 3 << 20
ST = 5 << 20
FLG = (5 << 20) + (1 << 19)
HFL = FLG + 32768
EPO = FLG + 4 * 32768
GG = 6 << 20
TSB = 14 << 20
WS_BYTES = 16 << 20

K = 1024
WKL = 112 * K
HI = 96 * K
XIMG = 24 * K
MISC = 152 * K
LDS_BYTES = 160 * K

sUP = 0
sW = 3
sT0, sT1, sT2, sT3 = 4, 5, 6, 7
SX, SQKV, SWO, SWG, SWU, SWD, SOUT, SWS = 8, 12, 16, 20, 24, 28, 32, 36
sTAG, sFL, sDBG, sG1 = 40, 41, 42, 43
sRB, sP, sHEAD, sCB, sFB, sIDLE, sW1K, sC0 = 44, 45, 46, 47, 48, 49, 50, 51
sXB, sW4K, sONES, sSPIN = 52, 53, 54, 55
sL2E, sEPS = 56, 58
sKVPW, sOW, sHW, sSTW = 60, 61, 62, 63
sM = 64
sG2 = 79
sKH = 87
sB0, sB1 = 88, 89
sHF, sGW, sDWK, sCA, sCB2 = 90, 91, 92, 93, 94
sOUTW, sWOL, sW7K = 95, 96, 97
sMK = 98
sTS = 100

vLANE, vL16 = 1, 15
vXO = 2
vWO = 6
vXR = 7
vWR = 11
vRO = 16
vMEAN = 18
vT = 20
vCW = 24
vCR = 26
vBC = 30
vTS = 31
CW = 256
STASH = 256 + 200
SEL = 256 + 224
CSA = 256 + 228
AS = 256 + 236
ACS = 256 + 240


def stamp(i):
    if not OPT["ts"]:
        return
    A(f"s_memrealtime {s(sTS,2)}")
    A.wait(lg="all")
    A(f"v_writelane_b32 {v(vTS)}, {s(sTS)}, {i}")
    if OPT["ts"] == 2 and i < 30:
        A(f"s_memtime {s(sTS,2)}")
        A.wait(lg="all")
        A(f"v_writelane_b32 {v(vTS)}, {s(sTS)}, {32+i}")


ST_ = lambda i: FN(lambda: stamp(i))
NOOL = [0]


def dbg_mark(name):
    i = NOOL[0]
    NOOL[0] += 1
    if OPT["rep"]:
        print("ool bit", i, name)
    return [f"s_bitset1_b32 {s(sDBG)}, {i}"] if OPT["ts"] else []


def srd(base, nbytes):
    A(f"s_mov_b32 {s(base+2)}, {nbytes}")
    A(f"s_mov_b32 {s(base+3)}, 0x20000")


def spin_tail(loop, back):
    return [f"s_add_u32 {s(sSPIN)}, {s(sSPIN)}, 1", f"s_cmp_lt_u32 {s(sSPIN)}, {OPT['spin']}", f"s_cbranch_scc1 {loop}", f"s_branch {back}"]


def check_ops(tag, regs, reloads, tmp=vT):
    lab = A.label("L_chk")
    back = A.label("L_bk")
    chk = max_lines(regs, tmp) + [f"v_cmp_eq_u32 vcc, -1, {v(tmp)}"]
    ops = [WV(tag)] + [V(c_) for c_ in chk] + [FN(lambda: (A(f"s_cbranch_vccnz {lab}"), A(f"{back}:")), 4)]
    OOL.append([f"{lab}:"] + dbg_mark(tag) + [f"s_mov_b32 {s(sSPIN)}, 0", f"{lab}_t:"] + reloads + ["s_waitcnt vmcnt(0)"] + chk +
               [f"s_cbranch_vccz {back}"] + spin_tail(f"{lab}_t", back))
    return ops


def flag_check(tag, reg, addr, so):
    lab = A.label("L_cc")
    back = A.label("L_cb")
    ld = f"buffer_load_dword {v(reg)}, {v(addr)}, {s(SWS,4)}, {so} offen sc1"
    chk = f"v_cmp_ne_u32 vcc, {s(sTAG)}, {v(reg)}"
    ops = [WV(tag), V(chk), FN(lambda: (A(f"s_cbranch_vccnz {lab}"), A(f"{back}:")), 4)]
    OOL.append([f"{lab}:"] + dbg_mark(tag) + [f"s_mov_b32 {s(sSPIN)}, 0", f"{lab}_t:", f"s_sleep {OPT['slp']}", ld, "s_waitcnt vmcnt(0)", chk,
                f"s_cbranch_vccz {back}"] + spin_tail(f"{lab}_t", back))
    return ("vm", ld, tag), ops


def refresh(name, groups):
    top = A.label("R_top")
    ool = A.label("R_ool")
    done = A.label("R_done")
    blk = [f"{ool}:"] + dbg_mark(name) + [f"{ool}_t:", "s_waitcnt vmcnt(0)", f"s_mov_b32 {s(sM)}, 0"]
    for G in groups:
        skip = A.label("R_s")
        blk += max_lines(G["regs"], vT) + [f"v_cmp_eq_u32 vcc, -1, {v(vT)}", f"s_cbranch_vccz {skip}"] + G["loads"] + [f"s_mov_b32 {s(sM)}, 1", f"{skip}:"]
    blk += [f"s_add_u32 {s(sSPIN)}, {s(sSPIN)}, 1", f"s_cmp_ge_u32 {s(sSPIN)}, {OPT['spin']}", f"s_cbranch_scc1 {ool}_x",
            f"s_cmp_eq_u32 {s(sM)}, 0", f"s_cbranch_scc1 {top}", f"s_branch {ool}_t", f"{ool}_x:", "s_waitcnt vmcnt(0)", f"s_branch {done}"]
    OOL.append(blk)
    return ([S(f"s_mov_b32 {s(sSPIN)}, 0"), FN(lambda: A(f"{top}:"))],
            [FN(lambda: (A(f"s_cbranch_vccnz {ool}"), A(f"{done}:")), 4)])


def gather_finish(name, groups):
    n = len(groups)
    A(f"s_mov_b32 {s(sM)}, {(1 << n) - 1}")
    A(f"s_mov_b32 {s(sSPIN)}, 0")
    top, done, retry = A.label("G_top"), A.label("G_done"), A.label("G_retry")
    A(f"{top}:")
    for g, G in enumerate(groups):
        skip = A.label("G_skip")
        E(WV(f"{name}{g}"))
        for l in max_lines(G["regs"], vT):
            A(l)
        A(f"v_cmp_eq_u32 vcc, -1, {v(vT)}")
        A(f"s_bitcmp0_b32 {s(sM)}, {g}")
        A(f"s_cbranch_scc1 {skip}")
        A(f"s_cbranch_vccnz {skip}")
        for o in G["compute"]:
            A(o[1])
        A(f"s_bitset0_b32 {s(sM)}, {g}")
        A(f"{skip}:")
    A(f"s_cmp_lg_u32 {s(sM)}, 0")
    A(f"s_cbranch_scc1 {retry}")
    A(f"{done}:")
    blk = [f"{retry}:"] + dbg_mark(name) + [f"s_sleep {OPT['slp']}", f"s_add_u32 {s(sSPIN)}, {s(sSPIN)}, 1", f"s_cmp_gt_u32 {s(sSPIN)}, {OPT['spin']}", f"s_cbranch_scc1 {done}"]
    for g, G in enumerate(groups):
        skip = A.label("G_rs")
        blk += [f"s_bitcmp0_b32 {s(sM)}, {g}", f"s_cbranch_scc1 {skip}"] + G["loads"] + [f"{skip}:"]
    blk += ["s_waitcnt vmcnt(0)", f"s_branch {top}"]
    OOL.append(blk)


def gather_loads(name, groups):
    return [("vm", t, f"{name}{g}") for g, G in enumerate(groups) for t in G["loads"]]


def prologue():
    A("s_cmp_ge_u32 s2, 256")
    A("s_cbranch_scc1 L_exit")
    for sr_, o_ in ((SX, 0), (SQKV, 8), (SWS, 72), (SWO, 16), (SWG, 32), (SWU, 40), (SWD, 48), (SOUT, 56)):
        A(f"s_load_dwordx2 {s(sr_,2)}, s[0:1], {o_}")
    A(f"s_getpc_b64 {s(sT0,2)}")
    A(f"s_lshr_b32 {s(sT2)}, s2, 3")
    A(f"s_lshl_b32 {s(sT3)}, {s(sT2)}, 11")
    A(f"v_lshl_add_u32 {v(vT)}, v0, 3, {s(sT3)}")
    A(f"v_min_u32 {v(vT)}, CODE_BYTES, {v(vT)}")
    A.vmem(f"global_load_dword v255, {v(vT)}, {s(sT0,2)}", "code")
    if OPT["ts"]:
        A(f"v_mov_b32 {v(vTS)}, 0")
        A(f"s_mov_b32 {s(sDBG)}, 0")
    A(f"v_lshrrev_b32 {v(vT+2)}, 6, v0")
    A(f"v_and_b32 {v(vLANE)}, 63, v0")
    A(f"v_readfirstlane_b32 {s(sW)}, {v(vT+2)}")
    A(f"s_and_b32 {s(sP)}, s2, 1")
    A(f"s_bfe_u32 {s(sRB)}, s2, 0x20001")
    A(f"s_lshl_b32 {s(sRB)}, {s(sRB)}, 2")
    A(f"s_lshr_b32 {s(sT3)}, s2, 6")
    A(f"s_add_u32 {s(sRB)}, {s(sRB)}, {s(sT3)}")
    A(f"s_and_b32 {s(sT2)}, {s(sT2)}, 7")
    A(f"s_lshl_b32 {s(sHEAD)}, {s(sP)}, 3")
    A(f"s_add_u32 {s(sHEAD)}, {s(sHEAD)}, {s(sT2)}")
    A(f"s_lshl_b32 {s(sC0)}, {s(sT3)}, 1")
    A(f"s_add_u32 {s(sC0)}, {s(sC0)}, {s(sT2)}")
    A(f"s_sub_u32 {s(sT3)}, {s(sC0)}, 7")
    A(f"s_cselect_b32 {s(sC0)}, {s(sC0)}, {s(sT3)}")
    srd(SX, 2048 * 896)
    srd(SQKV, 448 * 2688)
    A(f"s_lshl_b32 {s(sW4K)}, {s(sW)}, 12")
    A(f"s_lshl_b32 {s(sW1K)}, {s(sW)}, 10")
    A(f"s_lshl_b32 {s(sXB)}, {s(sRB)}, 2")
    A(f"s_add_u32 {s(sXB)}, {s(sXB)}, {s(sW)}")
    A(f"s_mul_i32 {s(sXB)}, {s(sXB)}, {32*896}")
    A(f"v_lshrrev_b32 {v(vT+2)}, 3, {v(vLANE)}")
    A(f"v_mul_u32_u24 {v(vT+2)}, 896, {v(vT+2)}")
    A(f"v_lshrrev_b32 {v(vT+3)}, 4, {v(vLANE)}")
    A(f"v_and_b32 {v(vT+1)}, 7, {v(vLANE)}")
    A(f"v_xor_b32 {v(vT+3)}, {v(vT+3)}, {v(vT+1)}")
    A(f"v_lshl_add_u32 {v(vXO)}, {v(vT+3)}, 4, {v(vT+2)}")
    A(f"v_xor_b32 {v(vT+3)}, 4, {v(vT+3)}")
    A(f"v_lshl_add_u32 {v(vXO+1)}, {v(vT+3)}, 4, {v(vT+2)}")
    A(f"v_add_u32 {v(vXO+1)}, {7168-1024}, {v(vXO+1)}")
    A(f"v_add_u32 {v(vXO+2)}, {2*(7168-1024)}, {v(vXO)}")
    A(f"v_add_u32 {v(vXO+3)}, {2*(7168-1024)}, {v(vXO+1)}")
    A(f"s_mul_i32 {s(sB0)}, {s(sW)}, {16*2688}")
    A(f"s_mul_i32 {s(sT3)}, {s(sHEAD)}, 56")
    A(f"s_add_u32 {s(sT3)}, {s(sT3)}, {s(sB0)}")
    A(f"v_lshrrev_b32 {v(vT+2)}, 2, {v(vLANE)}")
    A(f"v_mul_u32_u24 {v(vT+2)}, 2688, {v(vT+2)}")
    A(f"v_and_b32 {v(vT+3)}, 3, {v(vLANE)}")
    A(f"v_lshlrev_b32 {v(vT+3)}, 4, {v(vT+3)}")
    A(f"v_min_u32 {v(vT+3)}, 40, {v(vT+3)}")
    A(f"v_add3_u32 {v(vWO)}, {v(vT+2)}, {v(vT+3)}, {s(sT3)}")
    chunk_tab(0)
    A.wait(lg="all")
    stamp(0)


def chunk_tab(t):
    if t:
        A(f"s_add_u32 {s(sC0)}, {s(sC0)}, 1")
        A(f"s_cmp_eq_u32 {s(sC0)}, 7")
        A(f"s_cselect_b32 {s(sC0)}, 0, {s(sC0)}")
    A(f"s_mul_i32 {s(sM+1+t)}, {s(sC0)}, {64*2688}")
    A(f"s_lshl_b32 {s(sM+8+t)}, {s(sC0)}, 7")
    A(f"s_add_u32 {s(sM+8+t)}, {s(sM+8+t)}, {s(sXB)}")


def u_x(t, extra=((), ())):
    return [unit([S(f"s_add_u32 m0, {s(sW4K)}, {t*16*K}")] + (list(extra[0]) or [S("s_nop 0")]) +
                 [DMA(vXO, SX, s(sM+8+t), 0, f"c{t}"), DMA(vXO+1, SX, s(sM+8+t), 1024, f"c{t}")], 16),
            unit(list(extra[1]) + [DMA(vXO+2, SX, s(sM+8+t), 2048, f"c{t}"), DMA(vXO+3, SX, s(sM+8+t), 3072, f"c{t}")], 16)]


def u_w(kind, t, lines=32):
    m = {"k": f"s_add_u32 m0, {s(sW1K)}, {WKL + t*4096}",
         "v": f"s_add_u32 m0, {s(sW4K)}, {(t >> 2)*16*K + (t & 3)*1024}",
         "q": f"s_add_u32 m0, {s(sW4K)}, {32*K + (t >> 2)*16*K + (t & 3)*1024}"}[kind]
    return unit([S(m), S(f"s_add_u32 {s(sB0)}, {s(sM+1+t)}, {dict(q=0, k=896, v=1792)[kind]}"),
                 DMA(vWO, SQKV, s(sB0), 0, dict(k="c", v="v", q="q")[kind] + str(t))], lines)


XF = 32
WT = 144
ACK, ACV = 176, 192
PK, PV = 208, 216
BM, BR = 224, 240
vPOI = 160
vCS = 164
vCC = 166
vCSA, vCSR, vBW, vL8, vFA = 167, 172, 173, 174, 175


def phi_ops(acc, cs, mean, rs, dst, tmp):
    o = []
    P = lambda b, i: v(b + 2*i, 2)
    o += [pkop("v_pk_fma_f32", P(acc, i), [mean(i), cs(i), (P(acc, i), None)], neg0=True) for i in range(8)]
    o += [pkop("v_pk_mul_f32", P(acc, i), [(P(acc, i), None), rs(i)]) for i in range(8)]
    if tmp is not None:
        o += [V(f"v_pk_mul_f32 {P(tmp,i)}, {P(acc,i)}, {s(sL2E,2)}") for i in range(8)]
        for i in range(16):
            o += [V(f"v_exp_f32 {v(tmp+i)}, {v(tmp+i)} clamp"), V(f"v_max_f32 {v(acc+i)}, 0, {v(acc+i)}")]
        o += [V(f"v_pk_add_f32 {P(acc,i)}, {P(acc,i)}, {P(tmp,i)}") for i in range(8)]
        o += [V(f"v_pk_add_f32 {P(acc,i)}, {P(acc,i)}, {s(sEPS,2)}") for i in range(8)]
    o += [V(f"v_cvt_pk_bf16_f32 {v(dst+i)}, {v(acc+2*i)}, {v(acc+2*i+1)}") for i in range(8)]
    return o


def cs_sum(dst, b=168):
    return [V(f"v_add_f32 {v(b)}, {v(b)}, {v(b+1)}"), V(f"v_add_f32 {v(b+2)}, {v(b+2)}, {v(b+3)}"), V(f"v_add_f32 {v(dst)}, {v(b)}, {v(b+2)}")]


HORD = [0, 1, 3, 5, 7, 2, 4, 6]
NEARLY = 5


def setup1():
    for t in range(1, 4):
        chunk_tab(t)
    T = 224
    A(f"v_lshlrev_b32 {v(vL16)}, 4, {v(vLANE)}")
    A(f"v_and_b32 {v(T)}, 31, {v(vLANE)}")
    A(f"v_lshrrev_b32 {v(T+1)}, 5, {v(vLANE)}")
    A(f"v_bfe_u32 {v(T+2)}, {v(vLANE)}, 2, 2")
    A(f"v_bfe_u32 {v(T+3)}, {v(vLANE)}, 4, 1")
    A(f"v_and_b32 {v(T+4)}, 3, {v(vLANE)}")
    A(f"v_bfe_u32 {v(vT)}, {v(vLANE)}, 1, 3")
    A(f"v_xor_b32 {v(vT)}, {v(vT)}, {v(T+1)}")
    A(f"v_lshlrev_b32 {v(vT)}, 4, {v(vT)}")
    A(f"v_lshl_add_u32 {v(vT)}, {v(T)}, 7, {v(vT)}")
    A(f"v_add_u32 {v(vT)}, {s(sW4K)}, {v(vT)}")
    A(f"v_lshl_add_u32 {v(vT+1)}, {v(T+1)}, 3, {v(T+2)}")
    A(f"v_lshlrev_b32 {v(vT+1)}, 6, {v(vT+1)}")
    A(f"v_lshl_add_u32 {v(vT+2)}, {v(T+3)}, 2, {v(T+4)}")
    A(f"v_cmp_lt_u32 vcc, 5, {v(vT+2)}")
    A(f"v_xor_b32 {v(vT+3)}, 1, {v(vT+2)}")
    A(f"s_mov_b32 {s(sONES)}, 0x3f803f80")
    A(f"v_cndmask_b32 {v(vT+2)}, {v(vT+2)}, {v(vT+3)}, vcc")
    A(f"v_lshl_add_u32 {v(vT+1)}, {v(vT+2)}, 3, {v(vT+1)}")
    for i in range(4):
        A(f"s_add_u32 {s(sT0)}, {s(sW)}, {i}")
        A(f"s_and_b32 {s(sT0)}, {s(sT0)}, 3")
        A(f"s_lshl_b32 {s(sT1)}, {s(sT0)}, 5")
        A(f"v_xor_b32 {v(vXR+i)}, {s(sT1)}, {v(vT)}")
        A(f"s_lshl_b32 {s(sT1)}, {s(sT0)}, 10")
        A(f"s_add_u32 {s(sT1)}, {s(sT1)}, {WKL}")
        A(f"v_add_u32 {v(vWR+i)}, {s(sT1)}, {v(vT+1)}")
        A(f"v_lshl_add_u32 {v(vT+2)}, {s(sT0)}, 12, {v(vT+1)}")
        A(f"v_accvgpr_write_b32 {r(STASH+i)}, {v(vT+2)}")
    A("s_mov_b32 vcc_lo, 0xf0f00f0f")
    A("s_mov_b32 vcc_hi, 0xf0f00f0f")
    A(f"v_mov_b32 {v(vT)}, {s(sONES)}")
    A(f"v_cndmask_b32 {v(vT)}, 0, {v(vT)}, vcc")
    for k in range(4):
        A(f"v_accvgpr_write_b32 {r(SEL+k)}, {v(vT)}")
        A(f"v_mov_b32 {v(vPOI+k)}, -1")
    for t in range(4, 7):
        chunk_tab(t)
    srd(SWS, WS_BYTES)
    A(f"v_lshlrev_b32 {v(vL8)}, 3, {v(vLANE)}")
    A(f"s_and_b32 {s(sT2)}, {s(sHEAD)}, 7")
    A(f"s_sub_u32 {s(sT3)}, 4, {s(sP)}")
    A(f"s_cmp_eq_u32 {s(sT2)}, {s(sT3)}")
    A(f"s_cselect_b32 {s(sIDLE)}, 1, 0")
    A(f"s_cmp_gt_u32 {s(sT2)}, {s(sT3)}")
    A(f"s_cselect_b32 {s(sT3)}, 1, 0")
    A(f"s_sub_u32 {s(sCB)}, {s(sT2)}, {s(sT3)}")
    A(f"s_mul_i32 {s(sFB)}, {s(sP)}, 7")
    A(f"s_add_u32 {s(sFB)}, {s(sFB)}, {s(sCB)}")
    A(f"s_and_b32 {s(sKH)}, {s(sW)}, 1")
    A(f"s_lshl_b32 {s(sG1)}, {s(sHEAD)}, 2")
    A(f"s_add_u32 {s(sG1)}, {s(sG1)}, {s(sW)}")
    A(f"s_lshl_b32 {s(sG1)}, {s(sG1)}, 13")
    A(f"s_lshl_b32 {s(sT0)}, {s(sRB)}, 9")
    A(f"s_add_u32 {s(sKVPW)}, {s(sG1)}, {s(sT0)}")
    A(f"v_lshlrev_b32 {v(vCSR)}, 4, {v(T)}")
    A(f"s_lshl_b32 {s(sT0)}, {s(sRB)}, 2")
    A(f"s_add_u32 {s(sOW)}, {s(sT0)}, {s(sW)}")
    A(f"s_lshl_b32 {s(sOW)}, {s(sOW)}, 4")
    A(f"s_add_u32 {s(sOW)}, {s(sOW)}, {s(sHEAD)}")
    A(f"s_lshl_b32 {s(sOW)}, {s(sOW)}, 11")
    A(f"s_add_u32 {s(sOW)}, {s(sOW)}, {OO}")
    A(f"v_add_u32 {v(vCSR)}, {MISC + 1024}, {v(vCSR)}")
    A(f"s_and_b32 {s(sT1)}, {s(sW)}, 2")
    A(f"s_add_u32 {s(sT1)}, {s(sT1)}, {s(sP)}")
    A(f"s_add_u32 {s(sT1)}, {s(sT1)}, {s(sT0)}")
    A(f"s_lshl_b32 {s(sT3)}, {s(sCB)}, 1")
    A(f"s_add_u32 {s(sT3)}, {s(sT3)}, {s(sKH)}")
    A(f"s_mul_i32 {s(sSTW)}, {s(sT1)}, 14")
    A(f"s_add_u32 {s(sSTW)}, {s(sSTW)}, {s(sT3)}")
    A(f"v_lshl_add_u32 {v(vCSA)}, {s(sW)}, 2, {v(vCSR)}")
    A(f"s_lshl_b32 {s(sHW)}, {s(sSTW)}, 11")
    A(f"s_add_u32 {s(sHW)}, {s(sHW)}, {HH_}")
    A(f"s_lshl_b32 {s(sSTW)}, {s(sSTW)}, 8")
    A(f"s_add_u32 {s(sSTW)}, {s(sSTW)}, {ST}")
    A(f"s_lshl_b32 {s(sXB)}, {s(sT1)}, 1")
    A(f"s_add_u32 {s(sXB)}, {s(sXB)}, {s(sKH)}")
    A(f"s_mul_i32 {s(sXB)}, {s(sXB)}, {16*896}")
    A(f"s_lshl_b32 {s(sT2)}, {s(sW)}, 8")
    A(f"s_add_u32 {s(sT2)}, {s(sT2)}, {MISC}")
    A(f"v_lshl_add_u32 {v(vBC)}, {v(T+1)}, 4, {s(sT2)}")
    A(f"v_lshl_add_u32 {v(vBW)}, {v(vLANE)}, 2, {s(sT2)}")
    A(f"s_lshl_b32 {s(sT1)}, {s(sT1)}, 4")
    A(f"s_mul_i32 {s(sT2)}, {s(sKH)}, 7")
    A(f"s_add_u32 {s(sT1)}, {s(sT1)}, {s(sT2)}")
    A(f"s_lshl_b32 {s(sT1)}, {s(sT1)}, 11")
    for i in range(8):
        A(f"s_add_u32 {s(sG2+i)}, {s(sT1)}, {OO + HORD[i]*2048}")
    A(f"s_lshl_b32 {s(sT2)}, {s(sKH)}, 14")
    A(f"s_add_u32 {s(sG2)}, {s(sG2)}, {s(sT2)}")


def setup2():
    T = 224
    A(f"s_mov_b32 {s(sL2E)}, 0x3fb8aa3b")
    A(f"s_mov_b32 {s(sL2E+1)}, 0x3fb8aa3b")
    A(f"s_mov_b32 {s(sEPS)}, 0x358637bd")
    A(f"s_mov_b32 {s(sEPS+1)}, 0x358637bd")
    A(f"s_mov_b32 {s(sUP)}, 0")
    A(f"s_mov_b32 {s(sUP+1)}, -1")
    A(f"s_mov_b32 {s(sMK)}, 0x3f80")
    A(f"s_mov_b32 {s(sMK+1)}, 0x3f800000")
    A(f"v_lshrrev_b32 {v(vT)}, 3, {v(vLANE)}")
    A(f"v_mul_u32_u24 {v(vT)}, 896, {v(vT)}")
    A(f"v_and_b32 {v(vT+1)}, 0x70, {v(vL16)}")
    A(f"v_lshlrev_b32 {v(vT+2)}, 6, {v(T+3)}")
    A(f"v_xor_b32 {v(vT+1)}, {v(vT+1)}, {v(vT+2)}")
    A(f"s_lshl_b32 {s(sT0)}, {s(sCB)}, 7")
    A(f"v_add3_u32 {v(vRO)}, {v(vT)}, {v(vT+1)}, {s(sT0)}")
    A(f"v_add_u32 {v(vRO+1)}, {7168-1024}, {v(vRO)}")
    srd(SWO, 448 * 896)
    srd(SWG, 448 * 3584)
    srd(SWU, 448 * 3584 + 1024)
    A(f"s_sub_u32 {s(SWU)}, {s(SWU)}, 1024")
    A(f"s_subb_u32 {s(SWU+1)}, {s(SWU+1)}, 0")
    A(f"s_lshl_b32 {s(sT0)}, {s(sFB)}, 2")
    A(f"s_add_u32 {s(sT0)}, {s(sT0)}, {s(sW)}")
    A(f"s_lshl_b32 {s(sT1)}, {s(sT0)}, 6")
    A(f"v_lshrrev_b32 {v(vT)}, 2, {v(vLANE)}")
    A(f"v_mul_u32_u24 {v(vT)}, 3584, {v(vT)}")
    A(f"v_and_b32 {v(vT+1)}, 0x30, {v(vL16)}")
    A(f"v_add3_u32 {v(vCW)}, {v(vT)}, {v(vT+1)}, {s(sT1)}")
    A(f"v_xor_b32 {v(vCW+1)}, 32, {v(vCW)}")
    srd(SWD, 1792 * 896)
    srd(SOUT, 2048 * 896)
    A(f"s_mul_i32 {s(sGW)}, {s(sRB)}, 224")
    A(f"s_add_u32 {s(sGW)}, {s(sGW)}, {s(sT0)}")
    A(f"s_lshl_b32 {s(sGW)}, {s(sGW)}, 11")
    A(f"s_add_u32 {s(sGW)}, {s(sGW)}, {GG}")
    A(f"v_lshl_add_u32 {v(vT)}, {v(T+1)}, 2, {v(T+2)}")
    A(f"v_lshlrev_b32 {v(vT)}, 6, {v(vT)}")
    A(f"v_mul_u32_u24 {v(vT+1)}, {1024+32}, {v(T+3)}")
    A(f"v_lshlrev_b32 {v(vT+2)}, 3, {v(T+4)}")
    A(f"v_add3_u32 {v(vT)}, {v(vT)}, {v(vT+1)}, {v(vT+2)}")
    A(f"s_mul_i32 {s(sCA)}, {s(sW)}, {6*K}")
    A(f"s_lshl_b32 {s(sCB2)}, {s(sW)}, 14")
    A(f"s_add_u32 {s(sCB2)}, {s(sCB2)}, {32*K}")
    A(f"s_mul_i32 {s(sW7K)}, {s(sW)}, {7*K}")
    A(f"v_add_u32 {v(vCR)}, {s(sCA)}, {v(vT)}")
    A(f"v_add_u32 {v(vCR+2)}, {s(sCB2)}, {v(vT)}")
    A(f"v_xor_b32 {v(vCR+1)}, 32, {v(vCR)}")
    A(f"v_xor_b32 {v(vCR+3)}, 32, {v(vCR+2)}")
    A(f"v_add_u32 {v(vT)}, {s(sW7K)}, {v(vT)}")
    A(f"v_add_u32 {v(vT)}, {124*K}, {v(vT)}")
    A(f"v_accvgpr_write_b32 {r(STASH+4)}, {v(vT)}")
    A(f"s_mul_i32 {s(sDWK)}, {s(sW)}, {112*896}")
    A(f"s_mul_i32 {s(sWOL)}, {s(sW)}, {14*K}")
    A(f"s_add_u32 {s(sWOL)}, {s(sWOL)}, {HI}")
    A(f"v_lshrrev_b32 {v(vT)}, 1, {v(T+2)}")
    A(f"v_xor_b32 {v(vT)}, {s(sKH)}, {v(vT)}")
    A(f"v_lshlrev_b32 {v(vT)}, 6, {v(vT)}")
    A(f"v_lshl_add_u32 {v(vT)}, {v(T+2)}, 7, {v(vT)}")
    A(f"v_lshl_add_u32 {v(vT)}, {v(T+3)}, 5, {v(vT)}")
    A(f"s_mul_i32 {s(sT0)}, {s(sKH)}, {15*28*128}")
    A(f"s_add_u32 {s(sT0)}, {s(sT0)}, {HI}")
    A(f"v_add3_u32 {v(vT)}, {v(vT)}, {v(vT+2)}, {s(sT0)}")
    A(f"v_accvgpr_write_b32 {r(STASH+5)}, {v(vT)}")
    A(f"v_lshl_add_u32 {v(vT)}, {v(T+1)}, 9, {v(vT)}")
    A(f"v_accvgpr_write_b32 {r(STASH+6)}, {v(vT)}")
    A(f"v_bfe_u32 {v(vT)}, {v(vLANE)}, 1, 1")
    A(f"v_xor_b32 {v(vT)}, {s(sKH)}, {v(vT)}")
    A(f"v_lshlrev_b32 {v(vT)}, 6, {v(vT)}")
    A(f"v_lshl_add_u32 {v(vT)}, {v(T)}, 7, {v(vT)}")
    A(f"v_lshl_add_u32 {v(vT)}, {v(T+1)}, 3, {v(vT)}")
    A(f"s_lshr_b32 {s(sT0)}, {s(sW)}, 1")
    A(f"v_lshl_add_u32 {v(vT)}, {s(sT0)}, 12, {v(vT)}")
    A(f"v_accvgpr_write_b32 {r(STASH+7)}, {v(vT)}")
    A(f"s_lshl_b32 {s(sT0)}, {s(sRB)}, 4")
    A(f"s_lshl_b32 {s(sT1)}, {s(sKH)}, 3")
    A(f"s_add_u32 {s(sT0)}, {s(sT0)}, {s(sT1)}")
    A(f"s_lshl_b32 {s(sT1)}, {s(sKH)}, 7")
    A(f"s_add_u32 {s(sT1)}, {s(sT1)}, {s(sHEAD)}")
    A(f"s_cmp_lt_u32 {s(sW)}, 2")
    A(f"s_cselect_b32 {s(sT0)}, {s(sT0)}, {s(sT1)}")
    A(f"s_cselect_b32 {s(sT1)}, 7, 11")
    A(f"s_lshl_b32 {s(sT0)}, {s(sT0)}, 7")
    A(f"s_add_u32 {s(sFL)}, {s(sT0)}, {FLG}")
    A(f"v_and_b32 {v(vFA)}, 7, {v(vLANE)}")
    A(f"v_lshlrev_b32 {v(vFA)}, {s(sT1)}, {v(vFA)}")


def flag_set():
    lab = A.label("L_cnt")
    A(f"s_cmp_lg_u32 {s(sW)}, 0")
    A(f"s_cbranch_scc1 {lab}")
    A(f"s_lshl_b32 {s(sT0)}, {s(sRB)}, 4")
    A(f"s_add_u32 {s(sT0)}, {s(sT0)}, {s(sHEAD)}")
    A(f"s_lshl_b32 {s(sT0)}, {s(sT0)}, 7")
    A(f"s_add_u32 {s(sT0)}, {s(sT0)}, {FLG}")
    A(f"v_mov_b32 {v(vT)}, {s(sTAG)}")
    A("s_mov_b64 exec, 1")
    A(f"buffer_store_dword {v(vT)}, off, {s(SWS,4)}, {s(sT0)} sc1")
    A("s_mov_b64 exec, -1")
    A(f"{lab}:")


def warm():
    lab = A.label("L_wm")
    A(f"s_xor_b32 {s(sT0)}, {s(sHEAD)}, {s(sP)}")
    A(f"s_bitcmp0_b32 {s(sT0)}, 0")
    A(f"s_cbranch_scc1 {lab}")
    A(f"s_lshr_b32 {s(sT0)}, {s(sHEAD)}, 1")
    A(f"s_lshl_b32 {s(sT1)}, {s(sRB)}, 3")
    A(f"s_add_u32 {s(sT0)}, {s(sT0)}, {s(sT1)}")
    A(f"s_cmp_eq_u32 {s(sW)}, 3")
    A(f"s_cselect_b32 {s(sT1)}, 13, 49")
    A(f"s_mul_i32 {s(sT0)}, {s(sT0)}, {s(sT1)}")
    A(f"s_lshl_b32 {s(sT0)}, {s(sT0)}, 8")
    A(f"s_sub_u32 {s(sT1)}, {s(sT1)}, 1")
    A(f"v_min_u32 {v(vT)}, {s(sT1)}, {v(vLANE)}")
    A(f"v_lshlrev_b32 {v(vT)}, 8, {v(vT)}")
    for w_, sr_ in ((0, SWG), (1, SWU), (2, SWD), (3, SWO)):
        l2 = A.label("L_wn")
        b = 1024 if w_ == 1 else 0
        A(f"s_cmp_lg_u32 {s(sW)}, {w_}")
        A(f"s_cbranch_scc1 {l2}")
        A(f"buffer_load_dword a255, {v(vT)}, {s(sr_,4)}, {s(sT0)} offen{off(b)}")
        A(f"buffer_load_dword a255, {v(vT)}, {s(sr_,4)}, {s(sT0)} offen{off(b+128)}")
        A(f"{l2}:")
    A(f"{lab}:")


def phaseA():
    A(f"s_mov_b32 {s(sT0)}, {EPO}")
    A(f"s_load_dword {s(sTAG)}, {s(SWS,2)}, {s(sT0)}")
    BG.append(u_w("k", 0, 16))
    BG.extend(u_x(0))
    bg_force()
    o1 = cap(setup1)
    run(o1[:18], bg=False)
    for t in range(1, 4):
        BG.append(u_w("k", t, 16))
        BG.extend(u_x(t))
    bg_now()
    run(o1[18:] + cap(setup2))
    bg_force()
    A.wait(lg="all")
    A(f"s_mul_i32 {s(sTAG)}, {s(sTAG)}, 0x9e3779b1")
    A(f"s_add_u32 {s(sTAG)}, {s(sTAG)}, 0x7f4a7c15")

    AG = ACV

    def kreads(n):
        t, i = divmod(n, 4)
        o = []
        if i == 0:
            o += [WV(f"c{t}"), BAR]
            if t == 0:
                o.append(ST_(1))
            if t == 6:
                o.append(FN(flag_set, 8))
        if t == 4:
            o.append(V(f"v_add_u32 {v(vXR+i)}, 0x10000, {v(vXR+i)}"))
        o.append(RD128(XF + n*4, vXR + i, (t*16*K) & 0xffff, f"k{n}"))
        o += [TR(WT + (n % 4)*4 + rd*2, vWR + i, t*4096 + rd*256, f"k{n}") for rd in range(2)]
        return o
    st4 = lambda so, imm: ("vm", f"buffer_store_dwordx4 {v(vPOI,4)}, {v(vL16)}, {s(SWS,4)}, {so} offen{off(imm)} sc1", "c6")
    poi = [[("vm", f"buffer_store_dwordx2 {v(vPOI,2)}, {v(vL8)}, {s(SWS,4)}, {s(sKVPW)} offen sc1", "c6")], [st4(s(sOW), 0)],
           [st4(s(sOW), 1024)], [st4(s(sHW), 0)], [st4(s(sHW), 1024)],
           [S("s_mov_b64 exec, 0xffff"), st4(s(sSTW), 0), S("s_mov_b64 exec, -1")]]
    body_bg = {t: [u_w("k", t+4)] + u_x(t+4, (poi[2*t], poi[2*t+1])) for t in range(3)}
    for t in range(3, 7):
        body_bg[t] = [u_w("v", t-3)]
    run(kreads(0) + kreads(1), bg=False)
    for n in range(28):
        t, i = divmod(n, 4)
        if i == 0:
            BG.extend(body_bg[t])
        x = XF + n*4
        nxt = kreads(n + 2) if n + 2 < 28 else []
        run([o for o in nxt if o[0] != "lds"], bg=False)
        E(WL(f"k{n}"))
        E(M32(AG, x, x, n == 0))
        run([o for o in nxt if o[0] == "lds"], bg=False)
        E(M32(ACK, x, WT + (n % 4)*4, n == 0))
        E(("bg", 1))
        if n == 13 and OPT["warm"]:
            warm()
        if n == 26:
            run([V(f"v_accvgpr_read_b32 {v(vWR+j)}, {r(STASH+j)}") for j in range(4)], bg=False)
        if n == 27:
            run([WL("csw"), BAR, RD128(168, vCSR, 0, "csr")], bg=False)
        E(M16(AS, SEL, x, n == 0))
        if i == 0:
            E(M16(ACS, SEL, WT + (n % 4)*4, n == 0))
        if n == 25:
            E(("lds", f"ds_write_b32 {v(vCSA)}, {r(ACS)}", "csw"))
    stamp(2)
    BG.extend([u_w("v", t) for t in range(4, 7)])
    E(("bg", 1))
    o = []
    for lvl, mask in enumerate((0xaaaaaaaa, 0xcccccccc, 0xff00ff00, 0xffff0000)):
        o += [S(f"s_mov_b32 vcc_lo, {mask:#x}"), S(f"s_mov_b32 vcc_hi, {mask:#x}")]
        stp = 1 << lvl
        o += [V(f"v_cndmask_b32 {v(AG+j)}, {v(AG+j)}, {v(AG+j+stp)}, vcc") for j in range(0, 16, 2*stp)]
    o += [V(f"v_mov_b32 {v(AG+1)}, {v(AG)}"), V(f"v_accvgpr_read_b32 {v(vMEAN)}, {r(AS)}"),
          S("s_mov_b32 vcc_lo, 0xf0f0f0f0"), S("s_mov_b32 vcc_hi, 0xf0f0f0f0"),
          V(f"v_permlane32_swap_b32 {v(AG)}, {v(AG+1)}"),
          V(f"v_mul_f32 {v(vMEAN)}, 0x3b124925, {v(vMEAN)}"),
          V(f"v_cndmask_b32 {v(vT)}, {v(AG)}, {v(AG+1)}, vcc"),
          V(f"v_mul_f32 {v(vT)}, 0x3b124925, {v(vT)}"),
          V(f"v_fma_f32 {v(vT)}, -{v(vMEAN)}, {v(vMEAN)}, {v(vT)}"),
          V(f"v_max_f32 {v(vT)}, 0, {v(vT)}"),
          V(f"v_add_f32 {v(vT)}, 0x3727c5ac, {v(vT)}"),
          V(f"v_rsq_f32 {v(vMEAN+1)}, {v(vT)}"),
          V(f"v_cndmask_b32 {v(vT+2)}, {v(vMEAN)}, {v(vMEAN+1)}, {s(sUP,2)}"),
          ("lds", f"ds_write_b32 {v(vBW)}, {v(vT+2)}", "st")]
    o += [RD128(BM + 4*q, vBC, 32*q, "bm") for q in range(4)]
    o += [RD128(BR + 4*q, vBC, 128 + 32*q, "br") for q in range(4)]
    o += [("bg", 1), WL("csr")] + cs_sum(vCS) + [WL("bm")]
    ph = phi_ops(ACK, lambda i: (v(vCS, 2), 0), lambda i: (v(BM+2*i, 2), None), lambda i: (v(BR+2*i, 2), None), PK, PK)
    o += ph[:8] + [WL("br")] + ph[8:50] + [("bg", 1)] + ph[50:72]
    RV = [144, 148, 152, 156, 176, 180, 184, 188]

    def vreads(n):
        t, i = divmod(n, 4)
        oo = [WV({0: "v3", 16: "v5", 24: "v6"}[n]), BAR] if n in (0, 16, 24) else []
        return oo + [TR(RV[n % 8] + rd*2, vWR + i, (t >> 2)*16*K + (t & 3)*1024 + rd*256, f"w{n}") for rd in range(2)]
    for n in range(4):
        o += vreads(n)
    o += ph[72:]
    run(o, bg=False)
    stamp(3)
    ccl, ccops = flag_check("cc", vCC, vFA, s(sFL))
    BG.extend([u_w("q", t) for t in range(7)])
    bg_now(100)
    main = []
    for n in range(28):
        nxt = vreads(n + 4) if n + 4 < 28 else []
        main += [o_ for o_ in nxt if o_[0] != "lds"]
        main.append(WL(f"w{n}"))
        if n % 4 == 0:
            main.append(M16(ACS + 4, SEL, RV[n % 8], n == 0))
        main.append(M32(ACV, XF + n*4, RV[n % 8], n == 0))
        main += [o_ for o_ in nxt if o_[0] == "lds"]
        if n == 25:
            main.append(("lds", f"ds_write_b32 {v(vCSA)}, {r(ACS+4)} offset:512", "csw"))
        if n == 26:
            main += [WL("csw"), BAR]
        if n == 27:
            main += [RD128(168, vCSR, 512, "csr"), ccl]
    pre = [V(f"v_and_b32 {v(vT)}, 31, {v(vLANE)}"), V(f"v_cmp_eq_u32 vcc, 28, {v(vT)}"), V(f"v_mov_b32 {v(vT+1)}, {s(sONES)}"),
           V(f"v_add_u32 {v(vT+2)}, {s(sW4K)}, {v(vL16)}"), V(f"v_add_u32 {v(vT+2)}, {96*K}, {v(vT+2)}"),
           V(f"v_add_u32 {v(vT+3)}, {s(sW1K)}, {v(vL16)}"), V(f"v_add_u32 {v(vT+3)}, {96*K}, {v(vT+3)}")]
    weave(main, [dict(ops=pre, g0=2, g1=20)], report=REP("V"))
    o = [WL("csr")] + cs_sum(vCS)
    o += phi_ops(ACV, lambda i: (v(vCS, 2), 0), lambda i: (v(BM+2*i, 2), None), lambda i: (v(BR+2*i, 2), None), PV, None)
    o += [V(f"v_cndmask_b32 {v(PV+i)}, {v(PV+i)}, {v(vT+1)}, vcc") for i in range(8)]
    o += [M32(ACK, PK, PV, True), M32(ACK, PK + 4, PV + 4), ("bg", 1)]
    o += [WR128(vT + 2, ACK + 4*q, q*1024, "kw") for q in range(4)]
    o += [WL("kw"), BAR]
    o += [RD128(ACV + 4*w, vT + 3, w*4096, f"kr{w}") for w in range(4)]
    o += [("bg", 1), WL("kr1")]
    o += [V(f"v_pk_add_f32 {v(ACV+k,2)}, {v(ACV+k,2)}, {v(ACV+4+k,2)}") for k in (0, 2)]
    o += [WL("kr3")]
    o += [V(f"v_pk_add_f32 {v(ACV+8+k,2)}, {v(ACV+8+k,2)}, {v(ACV+12+k,2)}") for k in (0, 2)]
    o += [V(f"v_pk_add_f32 {v(ACV+k,2)}, {v(ACV+k,2)}, {v(ACV+8+k,2)}") for k in (0, 2)]
    o += [V(f"v_cvt_pk_bf16_f32 {v(ACV)}, {v(ACV)}, {v(ACV+1)}"), V(f"v_cvt_pk_bf16_f32 {v(ACV+1)}, {v(ACV+2)}, {v(ACV+3)}")]
    o += [("vm", f"buffer_store_dwordx2 {v(ACV,2)}, {v(vL8)}, {s(SWS,4)}, {s(sKVPW)} offen sc1", "kvst")]
    run(o, bg=False)
    stamp(4)
    bg_force()
    run(ccops, bg=False)


CWS = [("A", 0), ("A", 1), ("A", 2)] + [("B", i) for i in range(8)] + [("A", 0), ("A", 1), ("A", 2), ("B", 0)] + \
      [("B", i) for i in range(1, 8)] + [("C", 0), ("C", 1), ("B", 0)] + [("A", 0), ("A", 1), ("A", 2)]
vCRC = 18


def u_cw(ks):
    ar, sl = CWS[ks]
    m = {"A": f"s_add_u32 m0, {s(sCA)}, {sl*2048}", "B": f"s_add_u32 m0, {s(sCB2)}, {sl*2048}", "C": f"s_add_u32 m0, {s(sW7K)}, {124*K + sl*2048}"}[ar]
    return unit([S(m), S(f"s_mov_b32 {s(sB0)}, {ks*16*3584}"), DMA(vCW, SWG, s(sB0), 0, f"cw{ks}"), DMA(vCW+1, SWU, s(sB0), 1024, f"cw{ks}")], 16)


def cw_read(a_, b_):
    o = []
    for ks in range(a_, b_):
        ar, sl = CWS[ks]
        ad = {"A": vCR, "B": vCR + 2, "C": vCRC}[ar]
        o += [WV(f"cw{ks}")] + [TR(CW + (ks*2+t)*4 + rd*2, ad + t, sl*2048 + rd*512, f"cr{ks}") for t in range(2) for rd in range(2)]
    return o


def cw_cs(a_, b_):
    o = []
    for ks in range(a_, b_):
        o += [WL(f"cr{ks}")] + [M16(CSA + 4*t, SEL, CW + (ks*2+t)*4, ks == 0) for t in range(2)]
    return o


def u_wo(g):
    return unit([S(f"s_add_u32 m0, {s(sWOL)}, {g*2048}"), S(f"s_add_u32 {s(sB0)}, {s(sDWK)}, {g*16*896}"),
                 DMA(vRO, SWO, s(sB0), 0, "wo"), DMA(vRO+1, SWO, s(sB0), 1024, "wo")], 16)


def u_xres():
    return unit([S(f"s_lshl_b32 {s(sB0)}, {s(sW)}, 11"), S(f"s_add_u32 m0, {s(sB0)}, {XIMG}"), S("s_nop 0"),
                 DMA(vRO, SX, s(sXB), 0, "wo"), DMA(vRO+1, SX, s(sXB), 1024, "wo")], 16)


WOF = 32
G2 = 160
ACB = 224
XRES = 7


def phaseQ():
    ACQ, QB, QT, PQ, KS, G1 = 176, 192, 208, 160, 168, 224
    RING = [144, 148, 152, 156, 208, 212, 216, 220]

    def qreads(n):
        t, i = divmod(n, 4)
        oo = [WV({0: "q4", 20: "q6"}[n]), BAR] if n in (0, 20) else []
        return oo + [TR(RING[n % 8] + rd*2, vWR + i, 32*K + (t >> 2)*16*K + (t & 3)*1024 + rd*256, f"q{n}") for rd in range(2)]
    o = []
    for n in range(4):
        o += qreads(n)
    run(o, bg=False)
    stamp(5)
    BG.extend([u_wo(g) for g in range(7)] + [u_xres()])
    bg_now()
    main = []
    for n in range(28):
        nxt = qreads(n + 4) if n + 4 < 28 else []
        main += [o_ for o_ in nxt if o_[0] != "lds"]
        main.append(WL(f"q{n}"))
        if n % 4 == 0:
            main.append(M16(ACS, SEL, RING[n % 8], n == 0))
        main.append(M32(ACQ, RING[n % 8], XF + n*4, n == 0))
        main += [o_ for o_ in nxt if o_[0] == "lds"]
        if n == 25:
            main.append(("lds", f"ds_write_b32 {v(vCSA)}, {r(ACS)} offset:1024", "csw"))
        if n == 26:
            main += [WL("csw"), BAR]
        if n == 27:
            main.append(RD128(168, vCSR, 1024, "csr"))
    pre = [S(f"s_add_u32 {s(sM+1)}, {s(sG1)}, 4096"),
           S(f"s_lshr_b32 {s(sT0)}, {s(sW)}, 1"), S(f"s_lshl_b32 {s(sT0)}, {s(sT0)}, 10"), S(f"s_lshl_b32 {s(sT1)}, {s(sKH)}, 3"),
           S(f"s_add_u32 {s(sT0)}, {s(sT0)}, {s(sT1)}"),
           V(f"v_add_u32 {v(vT+3)}, {MISC + 4096}, {v(vL16)}"), V(f"v_add_u32 {v(vT+2)}, {s(sT0)}, {v(vT+3)}"),
           V(f"v_accvgpr_read_b32 {v(4)}, {r(STASH+5)}"), V(f"v_accvgpr_read_b32 {v(2)}, {r(STASH+6)}"), V(f"v_accvgpr_read_b32 {v(6)}, {r(STASH+7)}"),
           V(f"v_xor_b32 {v(5)}, 64, {v(4)}"), V(f"v_xor_b32 {v(3)}, 64, {v(2)}"), S(f"s_mul_i32 {s(sT2)}, {s(sKH)}, {8*28*128}")]
    weave(main, [dict(ops=pre, g0=2, g1=24)], report=REP("Q"))
    bg_force()
    stamp(6)
    G = [dict(loads=[f"buffer_load_dwordx2 {v(G1+4*g+2*j,2)}, {v(vL8)}, {s(SWS,4)}, {s(sG1) if g < 4 else s(sM+1)} offen{off(((2*g+j) % 8)*512)} sc1" for j in range(2)],
              regs=list(range(G1+4*g, G1+4*g+4))) for g in range(8)]
    lg_ = gather_loads("ga", G)
    BG.extend([unit(lg_[2*g:2*g+2], 8) for g in range(8)] + [u_cw(ks) for ks in range(3)])
    bg_now()
    o = [WL("csr")] + cs_sum(168) + [("lds", f"ds_write_b32 {v(vBW)}, {v(168)}", "st")]
    o += [RD128(QB + 4*q, vBC, 32*q, "bm") for q in range(4)] + [("bg", 2), WL("bm")]
    o += phi_ops(ACQ, lambda i: (v(QB+2*i, 2), None), lambda i: (v(vMEAN, 2), 0), lambda i: (v(vMEAN, 2), 1), PQ, QT)
    o += [V(f"v_cndmask_b32 {v(PQ+i)}, {v(PQ+i)}, 0, {s(sUP,2)}") for i in (6, 7)]
    o += [WV("wo"), BAR]
    for i in range(8):
        for st in range(2):
            for nt in range(2):
                for rd in range(2):
                    o.append(TR(WOF + ((i*2+st)*2+nt)*4 + rd*2, (4 if (st == 1 and rd == 1) else 2) + nt, (28*HORD[i] + 16*st + 8*rd)*128, "wr"))
        if i == 0:
            o += [V(f"v_subrev_u32 {v(2+j)}, {s(sT2)}, {v(2+j)}") for j in range(4)]
    o += [("lds", f"ds_read_b64 {v(XRES+2*q+1,2)}, {v(6)} offset:{XIMG + 16*q}", "wr") for q in range(3)]
    o += [("lds", f"ds_read_b32 {v(XRES+7)}, {v(6)} offset:{XIMG + 48}", "wr"), ("lds", f"ds_read_b32 {v(XRES)}, {v(6)} offset:{XIMG + 52}", "wr")]
    run(o)
    bg_force()
    stamp(7)
    BG.extend([u_cw(ks) for ks in range(3, 6)])
    top, end = refresh("g1", G)
    o = top + [V(f"v_mov_b32 {v(KS+k)}, 0") for k in range(4)]
    for g in range(8):
        o.append(WV(f"ga{g}"))
        for j in range(2):
            for k in range(2):
                o += [V(f"v_dot2c_f32_bf16 {v(KS+2*k)}, {s(sMK)}, {v(G1+4*g+2*j+k)}"), V(f"v_dot2c_f32_bf16 {v(KS+2*k+1)}, {s(sMK+1)}, {v(G1+4*g+2*j+k)}")]
    o += [V(f"v_cmp_u_f32 vcc, {v(KS)}, {v(KS+2)}"),
          V(f"v_cvt_pk_bf16_f32 {v(KS)}, {v(KS)}, {v(KS+1)}"), V(f"v_cvt_pk_bf16_f32 {v(KS+1)}, {v(KS+2)}, {v(KS+3)}")] + end
    o += [ST_(8), ("lds", f"ds_write_b64 {v(vT+2)}, {v(KS,2)}", "kf"), ("bg", 1), WL("kf"), BAR,
          RD128(QT, vT + 3, 0, "k0"), RD128(QT + 4, vT + 3, 1024, "k1"), ("bg", 1),
          WL("k0"), M32(ACQ, QT, PQ, True), WL("k1"), M32(ACQ, QT + 4, PQ + 4), ("bg", 1),
          V(f"v_accvgpr_read_b32 {v(vCRC)}, {r(STASH+4)}"), V(f"v_xor_b32 {v(vCRC+1)}, 32, {v(vCRC)}"),
          V(f"v_mov_b32 {v(vT)}, {v(ACQ+12)}"), V(f"v_mov_b32 {v(vT+1)}, {v(ACQ+12)}"),
          V(f"v_permlane32_swap_b32 {v(vT)}, {v(vT+1)}"), V(f"v_add_f32 {v(vT+1)}, {s(sEPS)}, {v(vT+1)}"), V(f"v_rcp_f32 {v(vT)}, {v(vT+1)}")]
    OP = ACB
    for hf in range(2):
        o += [V(f"v_pk_mul_f32 {v(ACQ+2*i,2)}, {v(ACQ+2*i,2)}, {v(vT,2)} op_sel_hi:[1,0]") for i in range(4*hf, 4*hf+4)]
        o += [V(f"v_cvt_pk_bf16_f32 {v(OP+i)}, {v(ACQ+2*i)}, {v(ACQ+2*i+1)}") for i in range(4*hf, 4*hf+4)]
        if hf:
            o += [V(f"v_cndmask_b32 {v(OP+i)}, {v(OP+i)}, 0, {s(sUP,2)}") for i in (6, 7)]
        o += [("vm", f"buffer_store_dwordx4 {v(OP+4*hf,4)}, {v(vL16)}, {s(SWS,4)}, {s(sOW)} offen{off(1024*hf)} sc1", "ost")]
    run(o, bg=False)
    stamp(9)
    A(f"s_cmp_eq_u32 {s(sIDLE)}, 1")
    A("s_cbranch_scc1 L_fin")


def phaseB():
    def grp(i):
        b = G2 + i*8
        return dict(loads=[f"buffer_load_dwordx4 {v(b+4*st,4)}, {v(vL16)}, {s(SWS,4)}, {s(sG2+i)} offen{off(1024*st)} sc1" for st in range(2)],
                    regs=list(range(b, b+8)),
                    compute=[M32(ACB + 16*nt, WOF + ((i*2+st)*2+nt)*4, b + 4*st, i == 0 and st == 0) for st in range(2) for nt in (1, 0)])
    GE = [grp(i) for i in range(NEARLY)]
    GL = [grp(i) for i in range(NEARLY, 8)]
    run(gather_loads("ge", GE), bg=False)
    BG.extend([u_cw(ks) for ks in range(6, 11)])
    run(cw_read(0, 3), bg=False)
    top, end = refresh("ge", GE)
    run(top, bg=False)
    bg_now()
    main = []
    streams = [dict(ops=cw_read(3, 6), g0=4, g1=18)]
    for i, G in enumerate(GE):
        main += [WV(f"ge{i}")] + G["compute"]
        streams.append(dict(ops=[V(l) for l in max_lines(G["regs"], vT + 1, i == 0)], g0=4*i, g1=4*i + 3))
    weave(main, streams, report=REP("ge"))
    bg_force()
    run([V(f"v_cmp_eq_u32 vcc, -1, {v(vT+1)}")] + end, bg=False)
    stamp(10)
    run(gather_loads("gl", GL), bg=False)
    BG.extend([u_cw(ks) for ks in range(11, 15)])
    o = [WL("cr5"), ("bg", 2), V(f"v_add_u32 {v(vT+2)}, {s(sW4K)}, {v(vL16)}"), V(f"v_add_u32 {v(vT+2)}, {HI}, {v(vT+2)}"),
         V(f"v_xor_b32 {v(vT+3)}, 4096, {v(vT+2)}"), V(f"v_lshrrev_b32 {v(6)}, 1, {v(vL16)}")] + cw_cs(0, 6)
    run(o, bg=False)
    gather_finish("gl", GL)
    stamp(11)
    T0, HP, S0 = G2, G2 + 16, G2 + 24
    XO = [XRES + 1 + k for k in range(7)] + [XRES]
    o = [("bg", 1)] + [WR128(vT + 2, ACB + 16 + 4*q, q*1024, "bw") for q in range(4)]
    for k in range(8):
        o += [V(f"v_dot2c_f32_bf16 {v(ACB+2*k)}, {s(sMK)}, {v(XO[k])}"), V(f"v_dot2c_f32_bf16 {v(ACB+2*k+1)}, {s(sMK+1)}, {v(XO[k])}")]
    o += [WL("bw"), BAR]
    o += [RD128(T0 + 4*q, vT + 3, q*1024, f"br{q >> 1}") for q in range(4)] + [("bg", 1)]
    o += [V(f"v_mov_b32 {v(S0+k)}, 0") for k in range(2)]
    for st in range(2):
        o += [WL(f"br{st}")]
        o += [V(f"v_pk_add_f32 {v(ACB+8*st+2*k,2)}, {v(ACB+8*st+2*k,2)}, {v(T0+8*st+2*k,2)}") for k in range(4)]
        o += [V(f"v_cvt_pk_bf16_f32 {v(HP+4*st+k)}, {v(ACB+8*st+2*k)}, {v(ACB+8*st+2*k+1)}") for k in range(4)]
        o += [("vm", f"buffer_store_dwordx4 {v(HP+4*st,4)}, {v(vL16)}, {s(SWS,4)}, {s(sHW)} offen{off(1024*st)} sc1", "hst")]
    o += [ST_(12)]
    for k in range(8):
        o += [V(f"v_dot2c_f32_bf16 {v(S0)}, {s(sONES)}, {v(HP+k)}"), V(f"v_dot2c_f32_bf16 {v(S0+1)}, {v(HP+k)}, {v(HP+k)}")]
    o += [V(f"v_mov_b32 {v(S0+2+k)}, {v(S0+k)}") for k in range(2)]
    o += [V(f"v_permlane32_swap_b32 {v(S0+k)}, {v(S0+2+k)}") for k in range(2)]
    o += [V(f"v_pk_add_f32 {v(S0,2)}, {v(S0,2)}, {v(S0+2,2)}"), S("s_mov_b32 exec_hi, 0"),
          ("vm", f"buffer_store_dwordx2 {v(S0,2)}, {v(6)}, {s(SWS,4)}, {s(sSTW)} offen sc1", "hst"), S("s_mov_b64 exec, -1")]
    run(o, bg=False)


AC0, AC1 = 32, 64
CS = 96
BRG = 128
SC = 152
ET = 160
RES = 168
SP = 176
vL8c = 6
vHR = 7
vDO = 2
vDX, vDY = 10, 16
vRS = 14
vTAG, vHF, vGO = 24, 25, 26
TLO = {0: HI, 1: HI + 28*K, 2: 28*K, 3: 0}
DWE = [256 + 224, 256 + 240] + [SP + 16*i for i in range(5)]
DW = DWE + [256 + 16*i for i in range(7)]
DSL = {0: 56, 1: 72, 2: 88, 3: 104, 4: 56, 5: 72, 6: 88, 7: 120, 8: 136, 9: 104, 10: 56, 11: 72, 12: 40, 13: 88}


def u_dw(m):
    return [unit([S(f"s_add_u32 m0, {s(sW4K)}, {DSL[m]*K}"), S(f"s_add_u32 {s(sB0)}, {s(sDWK)}, {m*32*896}"),
                  DMA(vDO, SWD, s(sB0), 0, f"dw{m}"), DMA(vDO+1, SWD, s(sB0), 1024, f"dw{m}")], 16),
            unit([DMA(vDO+2, SWD, s(sB0), 2048, f"dw{m}"), DMA(vDO+3, SWD, s(sB0), 3072, f"dw{m}")], 16)]


def dw_read(m):
    ad, o_ = (vDX, (DSL[m]-40)*K) if DSL[m] < 104 else (vDY, (DSL[m]-104)*K)
    return [WV(f"dw{m}")] + [TR(DW[m] + nt*4 + rd*2, ad + nt, o_ + rd*1024, f"dr{m}") for nt in range(4) for rd in range(2)]


def dw_next(wait, ms):
    return [WL(wait), FN(lambda: [BG.extend(u_dw(m)) for m in ms])]


def hh_store(acc, t, rt):
    return ("vm", f"buffer_store_dwordx4 {v(acc+16*t,4)}, {v(vL16)}, {s(SWS,4)}, {s(sT3)} offen{off(1024*t)} sc1", f"gst{rt}")


def hf_set(stage, rt):
    return [WV(f"gst{rt}"), S(f"s_add_u32 {s(sT2)}, {s(sHF)}, {stage*32768}"),
            FN(lambda: (A("s_mov_b64 exec, 1"), A.vmem(f"buffer_store_dword {v(vTAG)}, off, {s(SWS,4)}, {s(sT2)} sc1", "hf"), A("s_mov_b64 exec, -1")), 12)]


def epilogue_ops(acc, rt):
    c = SC + 4*(rt & 1)
    mean, k1, k2, vp = c, c + 1, c + 2, c + 3
    ops = [S(f"s_add_u32 {s(sT3)}, {s(sGW)}, {rt*112*K}")]
    for t in range(2):
        for half in range(2):
            idx = [4*half + i for i in range(4)]
            g = [acc + 16*t + i for i in idx]
            u = [acc + 16*t + 8 + i for i in idx]
            cg = [CS + 16*t + i for i in idx]
            cu = [CS + 16*t + 8 + i for i in idx]
            T = [ET + 4*half + i for i in range(4)]
            ops += [V(f"v_fmac_f32 {v(g[i])}, {v(mean)}, {v(cg[i])}") for i in range(4)]
            ops += [V(f"v_mul_f32 {v(T[i])}, {v(g[i])}, {v(g[i])}") for i in range(4)]
            ops += [V(f"v_fma_f32 {v(T[i])}, {v(T[i])}, {v(k2)}, {v(k1)}") for i in range(4)]
            ops += [V(f"v_mul_f32 {v(T[i])}, {v(T[i])}, {v(g[i])}") for i in range(4)]
            for i in range(4):
                ops += [V(f"v_exp_f32 {v(T[i])}, {v(T[i])}"), V(f"v_fmac_f32 {v(u[i])}, {v(mean)}, {v(cu[i])}")]
            ops += [V(f"v_fma_f32 {v(T[i])}, {v(T[i])}, {v(vp)}, {v(vp)}") for i in range(4)]
            for i in range(4):
                ops += [V(f"v_rcp_f32 {v(T[i])}, {v(T[i])}"), V(f"v_mul_f32 {v(u[i])}, {v(u[i])}, {v(g[i])}")]
            ops += [V(f"v_mul_f32 {v(u[i])}, {v(u[i])}, {v(T[i])}") for i in range(4)]
            ops += [V(f"v_cvt_pk_bf16_f32 {v(acc+16*t+2*half+i)}, {v(u[2*i])}, {v(u[2*i+1])}") for i in range(2)]
        ops.append(hh_store(acc, t, rt))
    return ops


def epilogue_pk(acc, rt):
    c = SC + 4*(rt & 1)
    c01, c23 = v(c, 2), v(c + 2, 2)
    ops = [S(f"s_add_u32 {s(sT3)}, {s(sGW)}, {rt*112*K}")]
    N = None
    for t in range(2):
        g = [v(acc + 16*t + 2*i, 2) for i in range(4)]
        u = [v(acc + 16*t + 8 + 2*i, 2) for i in range(4)]
        cg = [v(CS + 16*t + 2*i, 2) for i in range(4)]
        cu = [v(CS + 16*t + 8 + 2*i, 2) for i in range(4)]
        T = [v(ET + 2*i, 2) for i in range(4)]
        ops += [pkop("v_pk_fma_f32", g[i], [(c01, 0), (cg[i], N), (g[i], N)]) for i in range(4)]
        ops += [pkop("v_pk_mul_f32", T[i], [(g[i], N), (g[i], N)]) for i in range(4)]
        ops += [pkop("v_pk_fma_f32", T[i], [(T[i], N), (c23, 0), (c01, 1)]) for i in range(4)]
        ops += [pkop("v_pk_mul_f32", T[i], [(T[i], N), (g[i], N)]) for i in range(4)]
        ops += [V(f"v_exp_f32 {v(ET+i)}, {v(ET+i)}") for i in range(8)]
        ops += [pkop("v_pk_fma_f32", u[i], [(c01, 0), (cu[i], N), (u[i], N)]) for i in range(4)]
        ops += [pkop("v_pk_fma_f32", T[i], [(T[i], N), (c23, 1), (c23, 1)]) for i in range(4)]
        ops += [V(f"v_rcp_f32 {v(ET+i)}, {v(ET+i)}") for i in range(8)]
        ops += [pkop("v_pk_mul_f32", u[i], [(u[i], N), (g[i], N)]) for i in range(4)]
        ops += [pkop("v_pk_mul_f32", u[i], [(u[i], N), (T[i], N)]) for i in range(4)]
        ops += [V(f"v_cvt_pk_bf16_f32 {v(acc+16*t+i)}, {v(acc+16*t+8+2*i)}, {v(acc+16*t+9+2*i)}") for i in range(4)]
        ops.append(hh_store(acc, t, rt))
    return ops


RING_D = [32 + 4*i for i in range(8)] + [128 + 4*i for i in range(6)] + [256 + 144 + 4*i for i in range(10)]
NRD = len(RING_D)
sDL = sM + 11


def d_load(n):
    o = []
    if n % 2 == 0 and n:
        o.append(S(f"s_add_u32 {s(sDL)}, {s(sDL)}, {4096 if n % 14 else 112*K - 6*4096}"))
    o.append(("vm", f"buffer_load_dwordx4 {r(RING_D[n % NRD],4)}, {v(vGO)}, {s(SWS,4)}, {s(sDL)} offen{off((n % 2)*2048)} sc1", f"d{n}"))
    return o


def phaseC():
    BG.extend([u_cw(ks) for ks in (15, 16)])
    bg_force()
    o = cw_read(6, 11)
    o += [V(f"v_add_u32 {v(vHR)}, {HI}, {v(vL16)}"), V(f"v_add_u32 {v(vHR+1)}, {s(sW7K)}, {v(vHR)}"), V(f"v_add_u32 {v(vHR+2)}, {s(sW7K)}, {v(vL16)}"),
          S(f"s_mul_i32 {s(sT0)}, {s(sRB)}, {112*K}"), S(f"s_add_u32 {s(sT0)}, {s(sT0)}, {s(sW7K)}")]
    for rt in range(4):
        o += [S(f"s_add_u32 {s(sM+1+2*rt)}, {s(sT0)}, {HH_ + rt*28*K}"), S(f"s_add_u32 {s(sM+2+2*rt)}, {s(sT0)}, {HH_ + rt*28*K + 4096}")]
    o += [WL("cr10")]
    run(o, bg=False)
    BG.extend([u_cw(ks) for ks in range(17, 24)])
    bg_now()
    run(cw_read(11, 15) + cw_cs(6, 15))
    bg_force()
    BG.append(u_cw(24))
    bg_force()
    E(BAR)
    stamp(13)
    HB = {0: AC0, 1: AC1, 2: SP, 3: SP + 28}
    STR = SP + 56

    def hload(rt, c):
        return f"buffer_load_dwordx4 {v(HB[rt]+4*c,4)}, {v(vL16)}, {s(SWS,4)}, {s(sM+1+2*rt+c//4)} offen{off((c % 4)*1024)} sc1"

    def hwrite(rt, c):
        return WR128(vHR + (1 if rt < 2 else 2), HB[rt] + 4*c, TLO[rt] - (HI if rt < 2 else 0) + c*1024, "hw")
    stl = [f"buffer_load_dwordx2 {v(STR+2*i,2)}, {v(vL8c)}, {s(SWS,4)}, {s(sM+9)} offen{off(512*i)} sc1" for i in range(7)]
    G0 = [dict(loads=[hload(0, c)], regs=list(range(HB[0]+4*c, HB[0]+4*c+4))) for c in range(7)]
    run(gather_loads("g3", G0), bg=False)
    BG.extend([u_cw(ks) for ks in range(25, 28)])
    bg_now(64)
    run(cw_read(15, 25) + cw_cs(15, 25))
    bg_force()
    top, end = refresh("g3", G0)
    o = top
    for c in range(7):
        o += [WV(f"g3{c}"), hwrite(0, c)] + [V(l) for l in max_lines(G0[c]["regs"], vT + 1, c == 0)]
    o += [V(f"v_cmp_eq_u32 vcc, -1, {v(vT+1)}")] + end + [WL("all"), BAR]
    run(o, bg=False)
    stamp(14)

    def tile(rt, streams, extra={}):
        acc = AC0 if rt % 2 == 0 else AC1
        ad = vHR if rt < 2 else vL16
        rd = lambda n: RD128(BRG + (n % 6)*4, ad, TLO[rt] - (HI if rt < 2 else 0) + n*1024, f"b{n}")
        run([rd(n) for n in range(4)], bg=False)
        bg_now()
        main = []
        for n in range(28):
            if n == 0:
                main.append(WL("b0"))
            elif n % 2 == 1:
                main.append(WL(f"b{min(n+1, 27)}"))
            main += extra.get(n, [])
            main.append(M32(acc, CW + (n*2)*4, BRG + (n % 6)*4, n == 0))
            if n + 4 < 28:
                main.append(rd(n + 4))
            main.append(M32(acc + 16, CW + (n*2+1)*4, BRG + (n % 6)*4, n == 0))
        weave(main, streams, report=REP(f"tile{rt}"))
        bg_force()

    sc_read = lambda rt: [("lds", f"ds_read_b128 {v(SC+4*(rt & 1),4)}, {v(vT+2)} offset:{rt*512}", f"sc{rt}")]
    res_read = lambda rt: [("lds", f"ds_read_b64 {v(RES+2*rt,2)}, {v(vRS)}{off(TLO[rt] - (HI if rt < 2 else 0))}", "rs")]

    BG.extend([unit([("vm", hload(1, c), "h1")], 8) for c in range(7)])
    BG.extend([unit([("vm", x, "stl") for x in stl[i:i+2]], 8) for i in range(0, 7, 2)])
    BG.extend([unit([("vm", hload(2, c), "h2")], 8) for c in range(7)])
    BG.extend(u_dw(0) + u_dw(1))

    def addr0():
        A(f"s_lshl_b32 {s(sT0)}, {s(sRB)}, 2")
        A(f"s_add_u32 {s(sT0)}, {s(sT0)}, {s(sW)}")
        A(f"s_mul_i32 {s(sT0)}, {s(sT0)}, {14*256}")
        A(f"s_add_u32 {s(sM+9)}, {s(sT0)}, {ST}")
        A(f"s_mul_i32 {s(sDWK)}, {s(sW)}, {448*896}")
        A(f"v_lshrrev_b32 {v(vDO)}, 3, {v(vLANE)}")
        A(f"v_mul_u32_u24 {v(vDO)}, 896, {v(vDO)}")
        A(f"v_and_b32 {v(vDO+1)}, 0x70, {v(vL16)}")
        A(f"v_lshrrev_b32 {v(vDO+2)}, 4, {v(vLANE)}")
        A(f"v_lshlrev_b32 {v(vDO+2)}, 5, {v(vDO+2)}")
        A(f"v_xor_b32 {v(vDO+1)}, {v(vDO+1)}, {v(vDO+2)}")
        A(f"s_lshl_b32 {s(sT0)}, {s(sCB)}, 7")
        A(f"v_add3_u32 {v(vDO)}, {v(vDO)}, {v(vDO+1)}, {s(sT0)}")
        for i in range(1, 4):
            A(f"v_add_u32 {v(vDO+i)}, {i*(7168-1024)}, {v(vDO)}")
        A(f"v_and_b32 {v(vT+2)}, 31, {v(vLANE)}")
        A(f"s_lshl_b32 {s(sT0)}, {s(sW)}, 8")
        A(f"s_add_u32 {s(sT0)}, {s(sT0)}, {MISC}")
        A(f"v_lshl_add_u32 {v(vT+1)}, {v(vT+2)}, 2, {s(sT0)}")
        A(f"v_lshlrev_b32 {v(vT+2)}, 4, {v(vT+2)}")
        A(f"v_add_u32 {v(vT+2)}, {MISC + 4096}, {v(vT+2)}")
        A(f"v_lshl_add_u32 {v(vT+3)}, {s(sW)}, 9, {v(vT+2)}")
        A(f"v_bfe_u32 {v(vRS)}, {v(vLANE)}, 2, 2")
        A(f"v_lshlrev_b32 {v(vRS)}, 10, {v(vRS)}")
        A(f"v_and_b32 {v(vDX)}, 1, {v(vLANE)}")
        A(f"v_lshl_add_u32 {v(vRS)}, {v(vDX)}, 9, {v(vRS)}")
        A(f"v_and_b32 {v(vDX)}, 0x30, {v(vLANE)}")
        A(f"v_add_u32 {v(vRS)}, {v(vDX)}, {v(vRS)}")
        A(f"v_and_b32 {v(vDX)}, 2, {v(vLANE)}")
        A(f"v_lshl_add_u32 {v(vRS)}, {v(vDX)}, 2, {v(vRS)}")
        A(f"s_lshl_b32 {s(sT0)}, {s(sCB)}, 4")
        A(f"s_add_u32 {s(sT0)}, {s(sT0)}, {s(sP)}")
        A(f"s_lshl_b32 {s(sT0)}, {s(sT0)}, 2")
        A(f"s_add_u32 {s(sT0)}, {s(sT0)}, {s(sW)}")
        A(f"s_lshl_b32 {s(sT0)}, {s(sT0)}, 6")
        A(f"s_add_u32 {s(sT0)}, {s(sT0)}, {HI}")
        A(f"v_add_u32 {v(vRS)}, {s(sT0)}, {v(vRS)}")
        A(f"v_bfe_u32 {v(vDX)}, {v(vLANE)}, 2, 3")
        A(f"v_lshrrev_b32 {v(vDX+1)}, 5, {v(vLANE)}")
        A(f"v_lshl_add_u32 {v(vDX)}, {v(vDX+1)}, 4, {v(vDX)}")
        A(f"v_lshlrev_b32 {v(vDX)}, 7, {v(vDX)}")
        A(f"v_bfe_u32 {v(vDX+1)}, {v(vLANE)}, 3, 2")
        A(f"v_lshl_add_u32 {v(vDX)}, {v(vDX+1)}, 5, {v(vDX)}")
        A(f"v_and_b32 {v(vDX+1)}, 3, {v(vLANE)}")
        A(f"v_lshl_add_u32 {v(vDX)}, {v(vDX+1)}, 3, {v(vDX)}")
        A(f"s_add_u32 {s(sT0)}, {s(sW4K)}, {40*K}")
        A(f"v_add_u32 {v(vDX)}, {s(sT0)}, {v(vDX)}")
        for i in range(1, 4):
            A(f"v_xor_b32 {v(vDX+i)}, {32*i}, {v(vDX)}")
        for i in range(4):
            A(f"v_add_u32 {v(vDY+i)}, 0x10000, {v(vDX+i)}")
        A(f"s_lshl_b32 {s(sT0)}, {s(sRB)}, 11")
        A(f"s_add_u32 {s(sFL)}, {s(sT0)}, {HFL}")
        A(f"s_lshl_b32 {s(sT0)}, {s(sFB)}, 5")
        A(f"s_add_u32 {s(sT0)}, {s(sT0)}, {s(sW)}")
        A(f"s_lshl_b32 {s(sT0)}, {s(sT0)}, 2")
        A(f"s_add_u32 {s(sHF)}, {s(sFL)}, {s(sT0)}")
        A(f"s_mul_i32 {s(sT0)}, {s(sW)}, 14")
        A(f"v_min_u32 {v(vHF)}, 13, {v(vLANE)}")
        A(f"v_add_u32 {v(vHF)}, {s(sT0)}, {v(vHF)}")
        A(f"v_and_b32 {v(vTAG)}, 3, {v(vHF)}")
        A(f"v_lshrrev_b32 {v(vHF)}, 2, {v(vHF)}")
        A(f"v_lshlrev_b32 {v(vHF)}, 5, {v(vHF)}")
        A(f"v_add_lshl_u32 {v(vHF)}, {v(vHF)}, {v(vTAG)}, 2")
        A(f"v_mov_b32 {v(vTAG)}, {s(sTAG)}")
    sa = cap(addr0) + res_read(0)
    sc_ = [("lds", f"ds_write_b32 {v(vT+1)}, {r(CSA+4*t)} offset:{2048 + 128*t}", "cw_") for t in range(2)]
    sc_ += [RD128(CS + 16*t + 4*q, vBC, 2048 + 128*t + 32*q, "csb") for t in range(2) for q in range(4)]
    sb = check_ops("h1", list(range(HB[1], HB[1]+28)), [hload(1, c) for c in range(7)]) + [hwrite(1, c) for c in range(7)]
    sb += check_ops("stl", list(range(STR, STR+14)), stl)
    for a_, b_ in ((0, 8), (2, 10), (4, 12), (0, 4), (2, 6), (0, 2)):
        sb += [V(f"v_add_f32 {v(STR+a_+k)}, {v(STR+a_+k)}, {v(STR+b_+k)}") for k in range(2)]
    sb += [V(f"v_mov_b32 {v(STR+2+k)}, {v(STR+k)}") for k in range(2)]
    sb += [V(f"v_permlane32_swap_b32 {v(STR+k)}, {v(STR+2+k)}") for k in range(2)]
    sb += [V(f"v_add_f32 {v(STR+k)}, {v(STR+k)}, {v(STR+2+k)}") for k in range(2)]
    C1 = -2.0 * 0.7978845608028654 * 1.4426950408889634
    d = STR + 4
    sb += [V(f"v_mul_f32 {v(d)}, 0xbb124925, {v(STR)}"), V(f"v_mul_f32 {v(d+3)}, 0x3b124925, {v(STR+1)}"),
           V(f"v_fma_f32 {v(d+3)}, -{v(d)}, {v(d)}, {v(d+3)}"), V(f"v_max_f32 {v(d+3)}, 0, {v(d+3)}"),
           V(f"v_add_f32 {v(d+3)}, 0x3727c5ac, {v(d+3)}"), V(f"v_rsq_f32 {v(d+1)}, {v(d+3)}"),
           V(f"v_mul_f32 {v(d+2)}, {v(d+1)}, {v(d+1)}"), V(f"v_mul_f32 {v(d+2)}, {v(d+2)}, {v(d+1)}"),
           V(f"v_mul_f32 {v(d+2)}, {fh(C1*0.044715)}, {v(d+2)}"), V(f"v_mul_f32 {v(d+1)}, {fh(C1)}, {v(d+1)}"),
           WR128(vT + 3, d, 0, "hw")]
    tile(0, [dict(ops=sa, g0=0, g1=28, greedy=True), dict(ops=cw_read(25, 28), g0=12, g1=20), dict(ops=sb, g0=32, g1=56), dict(ops=sc_, g0=32, g1=44)],
         extra={12: cw_cs(25, 28)})
    run([WL("all"), BAR], bg=False)
    stamp(15)
    BG.extend([unit([("vm", hload(3, c), "h3")], 8) for c in range(7)] + u_dw(2) + u_dw(3))
    sm = res_read(1) + check_ops("h2", list(range(HB[2], HB[2]+28)), [hload(2, c) for c in range(7)]) + [hwrite(2, c) for c in range(7)]
    sm += [V(f"v_subrev_u32 {v(vRS)}, {HI}, {v(vRS)}")]
    tile(1, [dict(ops=sc_read(0), g0=0, g1=1), dict(ops=sm, g0=0, g1=10, greedy=True), dict(ops=dw_read(0) + dw_read(1) + dw_next("dr1", (4, 5)), g0=16, g1=30),
             dict(ops=[WL("sc0")] + epilogue_ops(AC0, 0), g0=6, g1=56, greedy=True)])
    run([WL("all"), BAR], bg=False)
    stamp(16)
    BG.extend(u_dw(7) + u_dw(8))
    sm = res_read(2) + check_ops("h3", list(range(HB[3], HB[3]+28)), [hload(3, c) for c in range(7)]) + [hwrite(3, c) for c in range(7)]
    tile(2, [dict(ops=sc_read(1), g0=0, g1=1), dict(ops=sm, g0=0, g1=9, greedy=True),
             dict(ops=[WL("hw")] + dw_read(2) + dw_read(3) + dw_next("dr3", (6, 9)) + dw_read(4) + dw_read(5) + dw_next("dr5", (10, 11)), g0=10, g1=36),
             dict(ops=[WL("sc1")] + epilogue_ops(AC1, 1), g0=6, g1=56, greedy=True)])
    run([WL("all"), BAR], bg=False)
    stamp(17)
    BG.extend(u_dw(12))

    def addr3():
        A(f"v_lshrrev_b32 {v(vGO)}, 4, {v(vLANE)}")
        A(f"v_and_b32 {v(vGO+1)}, 0xf0, {v(vL16)}")
        A(f"v_lshl_add_u32 {v(vGO)}, {v(vGO)}, 9, {v(vGO+1)}")
        A(f"s_lshl_b32 {s(sT0)}, {s(sRB)}, 4")
        A(f"s_add_u32 {s(sT0)}, {s(sT0)}, {s(sW)}")
        A(f"s_mul_i32 {s(sT0)}, {s(sT0)}, {28*K}")
        A(f"s_lshl_b32 {s(sT1)}, {s(sP)}, 8")
        A(f"s_add_u32 {s(sT0)}, {s(sT0)}, {s(sT1)}")
        A(f"s_add_u32 {s(sDL)}, {s(sT0)}, {GG}")
    f1l, f1c = flag_check("f1", vT + 3, vHF, s(sFL))
    late = []
    for m in (7, 8, 9, 10, 11):
        late += dw_read(m)
    tile(3, [dict(ops=sc_read(2) + res_read(3), g0=0, g1=1), dict(ops=dw_read(6) + dw_next("dr6", (13,)), g0=4, g1=10),
             dict(ops=hf_set(0, 1), g0=12, g1=13),
             dict(ops=[WL("sc2")] + epilogue_ops(AC0, 2) + sc_read(3) + cap(addr3), g0=2, g1=48, greedy=True),
             dict(ops=[f1l], g0=44, g1=45), dict(ops=late, g0=40, g1=56)])
    stamp(18)
    run(f1c, bg=False)
    NPRE = 10
    BG.extend([unit(d_load(n) + d_load(n+1), 16) for n in range(0, NPRE, 2)])
    bg_now()
    ep = epilogue_pk(AC1, 3)
    run([WL("sc3")] + ep[:20] + hf_set(1, 2) + ep[20:])
    bg_force()
    stamp(19)
    return NPRE


def phaseD(NPRE):
    ACD = [256 + 112, 256 + 128]
    WA, RA, vOO = 64, 66, 67
    X, TT = 68, 72
    LOOK = OPT["look"]
    run(dw_read(12) + dw_read(13), bg=False)
    for n in range(NPRE, LOOK):
        run(d_load(n), bg=False)

    def addr():
        A(f"v_and_b32 {v(WA)}, 15, {v(vLANE)}")
        A(f"v_lshrrev_b32 {v(RA)}, 4, {v(vLANE)}")
        A(f"v_mul_u32_u24 {v(vOO)}, 896, {v(RA)}")
        A(f"v_lshl_add_u32 {v(vOO)}, {v(WA)}, 3, {v(vOO)}")
        A(f"v_and_b32 {v(X)}, 7, {v(vLANE)}")
        A(f"v_xor_b32 {v(X)}, {v(X)}, {v(RA)}")
        A(f"v_lshlrev_b32 {v(X)}, 4, {v(X)}")
        A(f"v_lshl_add_u32 {v(RA)}, {s(sW)}, 2, {v(RA)}")
        A(f"v_and_b32 {v(X+1)}, 7, {v(RA)}")
        A(f"v_xor_b32 {v(X+1)}, {v(X+1)}, {v(WA)}")
        A(f"v_lshlrev_b32 {v(X+1)}, 4, {v(X+1)}")
        A(f"v_lshl_add_u32 {v(RA)}, {v(RA)}, 8, {v(X+1)}")
        A(f"v_lshl_add_u32 {v(WA)}, {v(WA)}, 8, {v(X)}")
        A(f"v_add_u32 {v(WA)}, {s(sW4K)}, {v(WA)}")
        A(f"v_xor_b32 {v(WA+1)}, 64, {v(WA)}")
        A(f"s_lshl_b32 {s(sT0)}, {s(sRB)}, 3")
        A(f"s_add_u32 {s(sT0)}, {s(sT0)}, {s(sP)}")
        A(f"s_lshl_b32 {s(sT0)}, {s(sT0)}, 2")
        A(f"s_add_u32 {s(sT0)}, {s(sT0)}, {s(sW)}")
        A(f"s_mul_i32 {s(sOUTW)}, {s(sT0)}, {4*896}")
        A(f"s_lshl_b32 {s(sT0)}, {s(sCB)}, 7")
        A(f"s_add_u32 {s(sOUTW)}, {s(sOUTW)}, {s(sT0)}")

    def reduce_ops(rt, pk):
        buf = (rt & 1) * 16 * K
        acc = ACD[rt & 1]
        o = [WR128(WA + (nt & 1), acc + 4*nt, buf + 128*(nt >> 1), "dwr") for nt in range(4)]
        o += [V(f"v_lshlrev_b32 {v(X)}, 16, {v(RES+2*rt)}"), V(f"v_and_b32 {v(X+1)}, 0xffff0000, {v(RES+2*rt)}"),
              V(f"v_lshlrev_b32 {v(X+2)}, 16, {v(RES+2*rt+1)}"), V(f"v_and_b32 {v(X+3)}, 0xffff0000, {v(RES+2*rt+1)}"),
              S(f"s_add_u32 {s(sT1)}, {s(sOUTW)}, {rt*32*896}")]
        o += [WL("dwr"), BAR]
        o += [RD128(TT + 4*w, RA, buf + w*4096, f"rr{w}") for w in range(4)]
        if pk:
            for w in range(4):
                o += [WL(f"rr{w}")] + [V(f"v_pk_add_f32 {v(X+2*k,2)}, {v(X+2*k,2)}, {v(TT+4*w+2*k,2)}") for k in range(2)]
        else:
            o += [FN(lambda: None, 40), WL("rr3")]
            o += [V(f"v_add_f32 {v(X+k)}, {v(X+k)}, {v(TT+4*w+k)}") for w in range(4) for k in range(4)]
        o += [V(f"v_cvt_pk_bf16_f32 {v(X+k)}, {v(X+2*k)}, {v(X+2*k+1)}") for k in range(2)]
        o += [("vm", f"buffer_store_dwordx2 {v(X,2)}, {v(vOO)}, {s(SOUT,4)}, {s(sT1)} offen", "out")]
        return o
    A(f"s_add_u32 {s(sM+12)}, {s(sFL)}, 32768")
    A(f"s_add_u32 {s(sM+13)}, {s(sFL)}, 65536")
    f2l, f2c = flag_check("f2", vT + 3, vHF, s(sM+12))
    f3l, f3c = flag_check("f3", vT + 3, vHF, s(sM+13))
    main = []
    LEAD = OPT.get("lead", 9)
    for n in range(56):
        rt, m = divmod(n, 14)
        b = RING_D[n % NRD]
        nl = n + LOOK
        if nl == 28:
            main += f2c
        if nl == 42:
            main += f3c
        if n == 12:
            main.append(WL("dr13"))
        if n == 7:
            main.append(WL("dr11"))
        if n == OPT.get("s3", 8):
            main += hf_set(2, 3)
        ld = d_load(nl) if nl < 56 else []
        main += [WV(f"d{n}")] + ld[:-1]
        main.append(M16(ACD[rt & 1], DW[m], b, m == 0))
        main += ld[-1:]
        main.append(M16(ACD[rt & 1] + 4, DW[m] + 4, b, m == 0))
        if nl + LEAD == 28:
            main.append(f2l)
        if nl + LEAD == 42:
            main.append(f3l)
        main += [M16(ACD[rt & 1] + 4*nt, DW[m] + 4*nt, b, m == 0) for nt in (2, 3)]
    streams = [dict(ops=cap(addr) + [BAR], g0=0, g1=40)]
    for rt in range(3):
        streams.append(dict(ops=reduce_ops(rt, False), g0=56*(rt+1) + 4, g1=56*(rt+1) + 48))
    weave(main, streams, small=True, report=REP("D"))
    stamp(20)
    run(reduce_ops(3, True), bg=False)
    stamp(21)
    A(f"s_or_b32 {s(sT0)}, s2, {s(sW)}")
    A("s_cbranch_scc1 L_fin")
    A(f"s_mov_b32 {s(sT0)}, {EPO}")
    A("s_mov_b64 exec, 1")
    A(f"buffer_store_dword {v(vTAG)}, off, {s(SWS,4)}, {s(sT0)} sc1")
    A("s_mov_b64 exec, -1")


def finish():
    if OPT["ts"]:
        stamp(63)
        A(f"v_writelane_b32 {v(vTS)}, {s(sDBG)}, 62")
        A(f"s_lshl_b32 {s(sT0)}, s2, 2")
        A(f"s_add_u32 {s(sT0)}, {s(sT0)}, {s(sW)}")
        A(f"s_lshl_b32 {s(sT0)}, {s(sT0)}, 8")
        A(f"s_add_u32 {s(sT0)}, {s(sT0)}, {TSB}")
        A(f"v_lshlrev_b32 {v(vT)}, 2, {v(vLANE)}")
        A(f"buffer_store_dword {v(vTS)}, {v(vT)}, {s(SWS,4)}, {s(sT0)} offen")
    A("s_waitcnt vmcnt(0) lgkmcnt(0)")
    A("s_endpgm")


def main():
    prologue()
    phaseA()
    phaseQ()
    phaseB()
    npre = phaseC()
    phaseD(npre)
    A("L_fin:")
    finish()
    for blk in OOL:
        for l in blk:
            A(l)
    A("L_exit:")
    A("s_endpgm")
    lines, nn = fix_hazards(A.lines, verbose=bool(OPT.get("v")))
    hdr = open("cdna_kernels/" + NAME + ".s.ref").read().split("; Override launch")[0]
    out = hdr + f"; @launch grid=(256,1,1) block=(256,1,1) lds={LDS_BYTES}\n"
    out += '.amdgcn_target "amdgcn-amd-amdhsa--gfx950"\n.text\n'
    out += f".globl {NAME}_kernel\n.p2align 8\n.type {NAME}_kernel,@function\n{NAME}_kernel:\n"
    out += "\n".join(("" if l.endswith(":") else "    ") + l for l in lines) + "\n"
    out += f"L_code_end:\n.set CODE_BYTES, L_code_end - {NAME}_kernel - 128\n"
    out += f'.section .rodata,"a"\n.p2align 6\n.amdhsa_kernel {NAME}_kernel\n'
    out += "  .amdhsa_next_free_vgpr 512\n  .amdhsa_next_free_sgpr 102\n  .amdhsa_accum_offset 256\n"
    out += "  .amdhsa_group_segment_fixed_size 0\n  .amdhsa_kernarg_size 80\n  .amdhsa_user_sgpr_count 2\n"
    out += "  .amdhsa_user_sgpr_kernarg_segment_ptr 1\n  .amdhsa_system_sgpr_workgroup_id_x 1\n"
    out += "  .amdhsa_float_denorm_mode_32 3\n.end_amdhsa_kernel\n"
    open(sys.argv[1], "w").write(out)
    print(f"wrote {sys.argv[1]}: {len(lines)} lines, {nn} nop states inserted")


main()
```

```python
from collections import deque
import re
from asmlib import *

A = Asm()
OOL = []

class Clock:
    t = 0
    mf = 0
    bgn = 0

CK = Clock()
BG = deque()
SEEN, WAITED, SEENL = set(), set(), set()
V = lambda t: ("v", t)
S = lambda t: ("s", t)
BAR = ("bar",)
WV = lambda t: ("wvm", t)
WL = lambda t: ("wlg", t)
FN = lambda f, c=0: ("fn", f, c)

def opcost(op):
    k = op[0]
    if k == "v":
        t = op[1]
        if t.startswith(("v_exp", "v_rcp", "v_rsq")): return 8
        return 5 if t.startswith(("v_fma_", "v_pk", "v_cvt_pk", "v_max3", "v_accvgpr", "v_lshl_add", "v_add3", "v_bfe", "v_perm", "v_and_or")) else 4
    if k == "fn": return op[2]
    if k == "s": return 4 * (op[1].count("\n") + 1)
    if k == "lds" and op[1].startswith("ds_write_b128"): return 16
    return 4

VT = []
import os
TRACE = os.environ.get('TRACE')
DROP = []
def E(op):
    k = op[0]
    if k == "vm" and any(re.fullmatch(d[0] + r"\d*", op[2]) and d[1] in op[1] for d in DROP):
        SEEN.add(op[2]); return
    if k == "M" or k == "m":
        A(op[1])
        t = max(CK.t, CK.mf)
        CK.mf = t + (32 if k == "M" else 16)
        CK.t = t + 8
        return
    n0 = len(A.lines)
    if k in ("s", "v"): A(op[1])
    elif k == "vm":
        if op[2] in WAITED: print("WARNING: vm op issued after its tag was waited:", op)
        SEEN.add(op[2]); A.vmem(op[1], op[2]); VT.append((op[2], CK.t))
    elif k == "lds":
        SEENL.add(op[2]); A.lds(op[1], op[2])
    elif k == "wvm":
        tags = [op[1]] if isinstance(op[1], str) else op[1]
        while any(o[0] == "vm" and o[2] in tags for u in BG for o in u["ops"]):
            print("note: forcing background for", tags)
            bg_emit()
        for t_ in tags:
            assert t_ in SEEN or t_ == "all", ("wait on unseen tag", t_)
            WAITED.add(t_)
        n0 = len(A.lines)
        nb = len(A.vm)
        A.wait(vm=op[1])
        if TRACE and len(A.lines) > n0:
            done = VT[len(VT)-nb:len(VT)-len(A.vm)] if nb <= len(VT) else []
            print(f"  t={CK.t} wait {op[1]}: retires", [(a_, CK.t-b_) for a_, b_ in done[-4:]])
    elif k == "wlg":
        assert op[1] in SEENL or op[1] == "all", ("wait on unseen lds tag", op[1])
        A.wait(lg=op[1])
    elif k == "bar": A("s_barrier")
    elif k == "fn": op[1]()
    elif k == "bg":
        for _ in range(op[1]):
            if BG: bg_emit()
        return
    else: raise ValueError(op)
    if k in ("wvm", "wlg") and len(A.lines) == n0: return
    CK.t += opcost(op)

def bg_emit():
    u = BG.popleft()
    for o in u["ops"]: E(o)
    CK.bgn = max(CK.bgn, CK.t - 16) + u["ta"]

def bg_try():
    if BG and CK.t >= CK.bgn: bg_emit()

def bg_force(n=None):
    while BG and (n is None or n > 0):
        bg_emit()
        if n is not None: n -= 1
    CK.t = max(CK.t, CK.bgn - 128)

def bg_now(delay=0): CK.bgn = CK.t + delay

def unit(ops, lines): return dict(ops=ops, ta=lines * 8)

def run(ops, bg=True):
    for o in ops:
        E(o)
        if bg and o[0] in ("v", "M", "m", "lds"): bg_try()

def cap(fn):
    keep = A.lines; A.lines = []
    fn()
    got = A.lines; A.lines = keep
    out = []
    for l in got:
        if l.startswith(("s_cselect", "s_subb", "s_addc")):
            p = out.pop(); out.append(("s", p[1] + "\n" + l))
        else: out.append(("v", l) if l.startswith("v_") else ("s", l))
    return out

def weave(main, streams=(), small=False, report=None, autobg=True):
    st = [dict(ops=deque(s_["ops"]), g0=s_["g0"], g1=s_["g1"], greedy=s_.get("greedy", False),
               tot=max(1, sum(opcost(o) for o in s_["ops"])), done=0, end=None) for s_ in streams]
    MEM = ("vm", "lds", "wvm", "wlg", "s", "bar", "bg")
    i = 0; g = 0; n = len(main); tstart = max(CK.t, CK.mf)
    while i < n:
        o = main[i]; E(o); i += 1
        if o[0] not in ("M", "m"): continue
        while i < n and main[i][0] in ("lds", "vm", "bg"):
            E(main[i]); i += 1
        if o[0] == "m" and not small: continue
        if autobg: bg_try()
        g += 1
        j = i; res = 0
        while j < n and main[j][0] not in ("M", "m"):
            res += opcost(main[j]); j += 1
        def behind(s_):
            frac = (g - s_["g0"]) / max(1, s_["g1"] - s_["g0"])
            return s_["done"] < s_["tot"] * frac
        def late(s_):
            frac = (g - s_["g0"]) / max(1, s_["g1"] - s_["g0"])
            return frac >= 1 or s_["done"] < s_["tot"] * frac - 24
        def ok(s_):
            if not s_["ops"] or g <= s_["g0"]: return False
            fits = CK.t + opcost(s_["ops"][0]) + res <= CK.mf + 1
            return late(s_) or (fits and (s_["greedy"] or behind(s_)))
        for phase in (0, 1):
            for s_ in st:
                while ok(s_) and ((s_["ops"][0][0] in MEM) if phase == 0 else (s_["ops"][0][0] not in ("vm", "lds") or g >= s_["g1"])):
                    x = s_["ops"].popleft(); E(x); s_["done"] += opcost(x)
                    if not s_["ops"]: s_["end"] = g
    for s_ in st:
        while s_["ops"]: E(s_["ops"].popleft())
    if report: print(f"weave {report}: est {max(CK.t, CK.mf) - tstart} clk, {g} gaps, stream ends {[s_['end'] for s_ in st]}, bg left {len(BG)}")

def M32(d, x, y, zero=False):
    return ("M", f"v_mfma_f32_32x32x16_bf16 {r(d,16)}, {r(x,4)}, {r(y,4)}, {'0' if zero else r(d,16)}")
def M16(d, x, y, zero=False):
    return ("m", f"v_mfma_f32_16x16x32_bf16 {r(d,4)}, {r(x,4)}, {r(y,4)}, {'0' if zero else r(d,4)}")
def off(i): return f" offset:{i}" if i else ""
def DMA(voff, sr, soff, imm, tag):
    return ("vm", f"buffer_load_dwordx4 {v(voff)}, {s(sr,4)}, {soff} offen{off(imm)} lds", tag)
def TR(dst, addr, o, tag): return ("lds", f"ds_read_b64_tr_b16 {r(dst,2)}, {v(addr)}{off(o)}", tag)
def RD128(dst, addr, o, tag): return ("lds", f"ds_read_b128 {r(dst,4)}, {v(addr)}{off(o)}", tag)
def WR128(addr, src, o, tag): return ("lds", f"ds_write_b128 {v(addr)}, {r(src,4)}{off(o)}", tag)

def pkop(name, d, srcs, neg0=False):
    lo = ",".join("1" if m == 1 else "0" for _, m in srcs)
    hi = ",".join("0" if m == 0 else "1" for _, m in srcs)
    t = f"{name} {d}, " + ", ".join(x for x, _ in srcs) + f" op_sel:[{lo}] op_sel_hi:[{hi}]"
    if neg0:
        z = ",".join(["1"] + ["0"] * (len(srcs) - 1))
        t += f" neg_lo:[{z}] neg_hi:[{z}]"
    return V(t)

def max_lines(regs, tmp, first=True):
    out = []
    rest = list(regs)
    if first:
        out.append(f"v_max3_u32 {v(tmp)}, {v(rest[0])}, {v(rest[1])}, {v(rest[min(2, len(rest)-1)])}")
        rest = rest[3:]
    while rest:
        x1 = rest[1] if len(rest) > 1 else rest[0]
        out.append(f"v_max3_u32 {v(tmp)}, {v(tmp)}, {v(rest[0])}, {v(x1)}")
        rest = rest[2:]
    return out

def mix(a_, b_):
    out = []
    a_, b_ = list(a_), list(b_)
    while a_ or b_:
        if a_: out.append(a_.pop(0))
        if b_: out.append(b_.pop(0))
    return out
```

```python
import sys, struct
from sched import *

NAME = "sequential_preLN__linear_attn_block__glu_gated_geglu__prompt"
OPT = dict(ts=0, spin=200000, slp=2, rep=0, rot=2, hold=-1, warm=0)
for arg in sys.argv[2:]:
    k_, v_ = arg.split("=")
    OPT[k_] = int(v_) if v_.lstrip("-").isdigit() else v_
fh = lambda x: "0x%08x" % struct.unpack("<I", struct.pack("<f", x))[0]
if OPT.get("xdw"): DROP.append(("dw", ""))
if OPT.get("xst"): DROP.append(("gst", ""))
if OPT.get("xpoi"): DROP.extend([("zs", "dwordx2"), ("po", ""), ("ph", "")])
if OPT.get("xcw"): DROP.append(("cw", ""))
for d_ in str(OPT.get("drop", "")).split(","):
    if d_: DROP.append((d_, ""))
REP = lambda n: n if OPT["rep"] else None

KVP = 0
OO = 1 << 20
HH_ = 3 << 20
ST = 5 << 20
FL1 = 0x80000
SL1 = 0xC0000
FL2 = 0xA0000
EPO = 0xA8000
HFL = (5 << 20) + (1 << 19)
GG = 6 << 20
TSB = 15 << 20
WS_BYTES = 16 << 20

K = 1024
WL0 = 64 * K
WKL = 112 * K
HI = 96 * K
KVX = 120 * K
XB = 128 * K
XIMG = 148 * K
MISC = 156 * K
LDS_BYTES = 160 * K

sUP = 0
sW = 3
sT0, sT1, sT2, sT3 = 4, 5, 6, 7
SX, SQKV, SWO, SWG, SWU, SWD, SOUT, SWS = 8, 12, 16, 20, 24, 28, 32, 36
sTAG, sFL, sDBG, sG1 = 40, 41, 42, 43
sRB, sP, sHEAD, sCB, sFB, sIDLE, sW1K, sC0 = 44, 45, 46, 47, 48, 49, 50, 51
sXB, sW4K, sONES, sSPIN = 52, 53, 54, 55
sL2E, sEPS = 56, 58
sKVPW, sOW, sHW, sSTW = 60, 61, 62, 63
sM = 64
sG2 = 79
sKH = 87
sB0, sB1 = 88, 89
sHF, sGW, sDWK, sCA, sCB2 = 90, 91, 92, 93, 94
sOUTW, sWOL, sW7K = 95, 96, 97
sMK = 98
sTS = 100

vLANE, vL16 = 1, 15
vXO = 2
vWO = 6
vXR = 7
vWR = 11
vRO = 16
vMEAN = 18
vT = 20
vCW = 24
vCR = 26
vBC = 30
vTS = 31
CW = 256
STASH = 256 + 200
SEL = 256 + 224
CSA = 256 + 228
AS = 256 + 236
ACS = 256 + 240


def stamp(i):
    if OPT["hold"] == i:
        A(f"s_memrealtime {s(sTS,2)}")
        A.wait(lg="all")
    if not OPT["ts"]:
        return
    A(f"s_memrealtime {s(sTS,2)}")
    A.wait(lg="all")
    A(f"v_writelane_b32 {v(vTS)}, {s(sTS)}, {i}")
    if OPT["ts"] == 2 and i < 30:
        A(f"s_memtime {s(sTS,2)}")
        A.wait(lg="all")
        A(f"v_writelane_b32 {v(vTS)}, {s(sTS)}, {32+i}")


ST_ = lambda i: FN(lambda: stamp(i))
NOOL = [0]


def dbg_mark(name):
    i = NOOL[0]
    NOOL[0] += 1
    if OPT["rep"]:
        print("ool bit", i, name)
    return [f"s_bitset1_b32 {s(sDBG)}, {i}"] if OPT["ts"] else []


def srd(base, nbytes):
    A(f"s_mov_b32 {s(base+2)}, {nbytes}")
    A(f"s_mov_b32 {s(base+3)}, 0x20000")


def spin_tail(loop, back):
    return [f"s_add_u32 {s(sSPIN)}, {s(sSPIN)}, 1", f"s_cmp_lt_u32 {s(sSPIN)}, {OPT['spin']}", f"s_cbranch_scc1 {loop}", f"s_branch {back}"]


def check_ops(tag, regs, reloads, tmp=vT):
    lab = A.label("L_chk")
    back = A.label("L_bk")
    chk = max_lines(regs, tmp) + [f"v_cmp_eq_u32 vcc, -1, {v(tmp)}"]
    ops = [WV(tag)] + [V(c_) for c_ in chk] + [FN(lambda: (A(f"s_cbranch_vccnz {lab}"), A(f"{back}:")), 4)]
    OOL.append([f"{lab}:"] + dbg_mark(tag) + [f"s_mov_b32 {s(sSPIN)}, 0", f"{lab}_t:"] + reloads + ["s_waitcnt vmcnt(0)"] + chk +
               [f"s_cbranch_vccz {back}"] + spin_tail(f"{lab}_t", back))
    return ops


def flag_check(tag, reg, addr, so):
    lab = A.label("L_cc")
    back = A.label("L_cb")
    ld = f"buffer_load_dword {v(reg)}, {v(addr)}, {s(SWS,4)}, {so} offen sc1"
    chk = f"v_cmp_ne_u32 vcc, {s(sTAG)}, {v(reg)}"
    ops = [WV(tag), V(chk), FN(lambda: (A(f"s_cbranch_vccnz {lab}"), A(f"{back}:")), 4)]
    if OPT.get("xfl") and tag in ("f0", "f1", "f2", "f3"):
        ops = [WV(tag), V("v_cmp_ne_u32 vcc, 0, 0"), ops[2]]
    OOL.append([f"{lab}:"] + dbg_mark(tag) + [f"s_mov_b32 {s(sSPIN)}, 0", f"{lab}_t:", f"s_sleep {OPT['slp']}", ld, "s_waitcnt vmcnt(0)", chk,
                f"s_cbranch_vccz {back}"] + spin_tail(f"{lab}_t", back))
    return ("vm", ld, tag), ops


def refresh(name, groups):
    top = A.label("R_top")
    ool = A.label("R_ool")
    done = A.label("R_done")
    blk = [f"{ool}:"] + dbg_mark(name) + [f"{ool}_t:", "s_waitcnt vmcnt(0)", f"s_mov_b32 {s(sM)}, 0"]
    for G in groups:
        skip = A.label("R_s")
        blk += max_lines(G["regs"], vT) + [f"v_cmp_eq_u32 vcc, -1, {v(vT)}", f"s_cbranch_vccz {skip}"] + G["loads"] + [f"s_mov_b32 {s(sM)}, 1", f"{skip}:"]
    blk += [f"s_add_u32 {s(sSPIN)}, {s(sSPIN)}, 1", f"s_cmp_ge_u32 {s(sSPIN)}, {OPT['spin']}", f"s_cbranch_scc1 {ool}_x",
            f"s_cmp_eq_u32 {s(sM)}, 0", f"s_cbranch_scc1 {top}", f"s_branch {ool}_t", f"{ool}_x:", "s_waitcnt vmcnt(0)", f"s_branch {done}"]
    OOL.append(blk)
    return ([S(f"s_mov_b32 {s(sSPIN)}, 0"), FN(lambda: A(f"{top}:"))],
            [FN(lambda: (A(f"s_cbranch_vccnz {ool}"), A(f"{done}:")), 4)])


def site_check(tag, G, later):
    lab, back = A.label("S_ool"), A.label("S_bk")
    ops = [WV(tag)] + [V(l) for l in max_lines(G["regs"], vT)] + [V(f"v_cmp_eq_u32 vcc, -1, {v(vT)}"), FN(lambda: (A(f"s_cbranch_vccnz {lab}"), A(f"{back}:")), 4)]
    blk = [f"{lab}:"] + dbg_mark(tag) + [f"s_mov_b32 {s(sSPIN)}, 0", f"{lab}_t:", "s_waitcnt vmcnt(0)", f"s_mov_b32 {s(sM)}, 0"]
    for X in [G] + later:
        skip = A.label("S_s")
        blk += max_lines(X["regs"], vT) + [f"v_cmp_eq_u32 vcc, -1, {v(vT)}", f"s_cbranch_vccz {skip}"] + X["loads"] + [f"s_mov_b32 {s(sM)}, 1", f"{skip}:"]
    blk += [f"s_cmp_eq_u32 {s(sM)}, 0", f"s_cbranch_scc1 {back}", f"s_add_u32 {s(sSPIN)}, {s(sSPIN)}, 1", f"s_cmp_lt_u32 {s(sSPIN)}, {OPT['spin']}",
            f"s_cbranch_scc1 {lab}_t", "s_waitcnt vmcnt(0)", f"s_branch {back}"]
    OOL.append(blk)
    return ops


def gather_finish(name, groups, post={}):
    n = len(groups)
    A(f"s_mov_b32 {s(sM)}, {(1 << n) - 1}")
    A(f"s_mov_b32 {s(sSPIN)}, 0")
    top, done, retry = A.label("G_top"), A.label("G_done"), A.label("G_retry")
    A(f"{top}:")
    for g, G in enumerate(groups):
        skip = A.label("G_skip")
        E(WV(f"{name}{g}"))
        for l in max_lines(G["regs"], vT):
            A(l)
        A(f"v_cmp_eq_u32 vcc, -1, {v(vT)}")
        A(f"s_bitcmp0_b32 {s(sM)}, {g}")
        A(f"s_cbranch_scc1 {skip}")
        A(f"s_cbranch_vccnz {skip}")
        for o in G["compute"]:
            A(o[1])
        A(f"s_bitset0_b32 {s(sM)}, {g}")
        A(f"{skip}:")
        for o in post.get(g, []):
            E(o)
    A(f"s_cmp_lg_u32 {s(sM)}, 0")
    A(f"s_cbranch_scc1 {retry}")
    A(f"{done}:")
    blk = [f"{retry}:"] + dbg_mark(name) + [f"s_sleep {OPT['slp']}", f"s_add_u32 {s(sSPIN)}, {s(sSPIN)}, 1", f"s_cmp_gt_u32 {s(sSPIN)}, {OPT['spin']}", f"s_cbranch_scc1 {done}"]
    for g, G in enumerate(groups):
        skip = A.label("G_rs")
        blk += [f"s_bitcmp0_b32 {s(sM)}, {g}", f"s_cbranch_scc1 {skip}"] + G["loads"] + [f"{skip}:"]
    blk += ["s_waitcnt vmcnt(0)", f"s_branch {top}"]
    OOL.append(blk)


def gather_loads(name, groups):
    return [("vm", t, f"{name}{g}") for g, G in enumerate(groups) for t in G["loads"]]


def prologue():
    A("s_cmp_ge_u32 s2, 256")
    A("s_cbranch_scc1 L_exit")
    if OPT["hold"] >= 0:
        A(f"s_memrealtime {s(sTS,2)}")
    for sr_, o_ in ((SQKV, 8), (SX, 0), (SWS, 72), (SWO, 16), (SWG, 32), (SWU, 40), (SWD, 48), (SOUT, 56)):
        A(f"s_load_dwordx2 {s(sr_,2)}, s[0:1], {o_}")
    A(f"s_getpc_b64 {s(sT0,2)}")
    A(f"s_lshr_b32 {s(sT2)}, s2, 3")
    A(f"s_lshl_b32 {s(sT3)}, {s(sT2)}, 10")
    A(f"v_lshl_add_u32 {v(vT)}, v0, 2, {s(sT3)}")
    A(f"v_min_u32 {v(vT)}, CODE_BYTES, {v(vT)}")
    A.vmem(f"global_load_dword v255, {v(vT)}, {s(sT0,2)}", "code")
    if OPT["ts"]:
        A(f"v_mov_b32 {v(vTS)}, 0")
        A(f"s_mov_b32 {s(sDBG)}, 0")
    A(f"v_lshrrev_b32 {v(vT+2)}, 6, v0")
    A(f"v_and_b32 {v(vLANE)}, 63, v0")
    A(f"v_readfirstlane_b32 {s(sW)}, {v(vT+2)}")
    A(f"s_and_b32 {s(sP)}, s2, 1")
    A(f"s_bfe_u32 {s(sRB)}, s2, 0x20001")
    A(f"s_lshr_b32 {s(sT3)}, s2, 6")
    A(f"s_lshl2_add_u32 {s(sRB)}, {s(sRB)}, {s(sT3)}")
    A(f"s_and_b32 {s(sT2)}, {s(sT2)}, 7")
    A(f"s_lshl3_add_u32 {s(sHEAD)}, {s(sP)}, {s(sT2)}")
    A(f"s_lshl1_add_u32 {s(sC0)}, {s(sT3)}, {s(sT2)}")
    A(f"s_sub_u32 {s(sT3)}, {s(sC0)}, 7")
    A(f"s_cselect_b32 {s(sC0)}, {s(sC0)}, {s(sT3)}")
    srd(SX, 2048 * 896)
    srd(SQKV, 448 * 2688)
    A(f"s_lshl4_add_u32 {s(sB1)}, {s(sRB)}, {s(sHEAD)}")
    A(f"s_lshl2_add_u32 {s(sB1)}, {s(sB1)}, {s(sW)}")
    A(f"s_mul_i32 {s(sT0)}, {s(sB1)}, {2*896}")
    A(f"v_and_b32 {v(T_)}, 31, {v(vLANE)}")
    A(f"v_lshrrev_b32 {v(T_+1)}, 5, {v(vLANE)}")
    A(f"v_cmp_lt_u32 vcc, 27, {v(T_)}")
    A(f"v_mul_u32_u24 {v(vT+1)}, 896, {v(T_+1)}")
    A(f"v_lshl_add_u32 {v(vT+1)}, {v(T_)}, 4, {v(vT+1)}")
    A(f"v_cndmask_b32 {v(vT)}, {v(vT+1)}, 2.0, vcc")
    A(f"s_mul_i32 {s(sT1)}, {s(sW)}, {16*2688}")
    A(f"s_mul_i32 {s(sT3)}, {s(sHEAD)}, 56")
    A(f"s_add_u32 {s(sT3)}, {s(sT3)}, {s(sT1)}")
    A(f"v_lshrrev_b32 {v(vT+2)}, 2, {v(vLANE)}")
    A(f"v_mul_u32_u24 {v(vT+2)}, 2688, {v(vT+2)}")
    A(f"v_and_b32 {v(vT+3)}, 3, {v(vLANE)}")
    A(f"v_lshlrev_b32 {v(vT+3)}, 4, {v(vT+3)}")
    A(f"v_min_u32 {v(vT+3)}, 40, {v(vT+3)}")
    A(f"v_add3_u32 {v(vWO)}, {v(vT+2)}, {v(vT+3)}, {s(sT3)}")
    A(f"s_lshl_b32 {s(sW1K)}, {s(sW)}, 10")
    A(f"s_lshl_b32 {s(sW4K)}, {s(sW)}, 12")
    A(f"s_lshl2_add_u32 {s(sXB)}, {s(sRB)}, {s(sW)}")
    A(f"s_mul_i32 {s(sXB)}, {s(sXB)}, {32*896}")
    A(f"v_lshrrev_b32 {v(vT+2)}, 3, {v(vLANE)}")
    A(f"v_mul_u32_u24 {v(vT+2)}, 896, {v(vT+2)}")
    A(f"v_add_u32 {v(vT+2)}, {s(sXB)}, {v(vT+2)}")
    A(f"v_lshrrev_b32 {v(vT+3)}, 4, {v(vLANE)}")
    A(f"v_and_b32 {v(vT+1)}, 7, {v(vLANE)}")
    A(f"v_xor_b32 {v(vT+3)}, {v(vT+3)}, {v(vT+1)}")
    A(f"v_lshl_add_u32 {v(vXO)}, {v(vT+3)}, 4, {v(vT+2)}")
    A(f"v_xor_b32 {v(vT+3)}, 4, {v(vT+3)}")
    A(f"v_lshl_add_u32 {v(vXO+1)}, {v(vT+3)}, 4, {v(vT+2)}")
    A(f"v_add_u32 {v(vXO+1)}, {7168-1024}, {v(vXO+1)}")
    A(f"v_add_u32 {v(vXO+2)}, {2*(7168-1024)}, {v(vXO)}")
    A(f"v_add_u32 {v(vXO+3)}, {2*(7168-1024)}, {v(vXO+1)}")
    A(f"s_lshl_b32 {s(sM+8)}, {s(sC0)}, 7")
    A(f"s_mul_i32 {s(sM+1)}, {s(sM+8)}, 1344")
    A.wait(lg="all")
    stamp(0)


def u_x(t):
    return [unit([S(f"s_add_u32 m0, {s(sW4K)}, {(t+4 if t < 3 else t-3)*16*K}"), S("s_nop 0"), DMA(vXO, SX, s(sM+8+t), 0, f"c{t}"), DMA(vXO+1, SX, s(sM+8+t), 1024, f"c{t}")], 16),
            unit([DMA(vXO+2, SX, s(sM+8+t), 2048, f"c{t}"), DMA(vXO+3, SX, s(sM+8+t), 3072, f"c{t}")], 16)]


def u_w(part, t, lines=32):
    m = [f"s_add_u32 m0, {s(sW1K)}, {WKL + t*4096}", f"s_add_u32 m0, {s(sW4K)}, {64*K + (t >> 2)*16*K + (t & 3)*1024}",
         f"s_add_u32 m0, {s(sW4K)}, {32*K + (t >> 2)*16*K + (t & 3)*1024}"][part]
    return unit([S(m), S(f"s_add_u32 {s(sB0)}, {s(sM+1+t)}, {(896, 1792, 0)[part]}"), DMA(vWO, SQKV, s(sB0), 0, "cvq"[part] + str(t))], lines)


XF = 32
SLC = 192
vVR = 144
vKW, vKR, vSO, vWM, vXW, vXR2 = 148, 149, 150, 151, 157, 158
vXA = 28
RW = [256 + 160 + 4*i for i in range(8)]
ACK, ACV = 176, 192
PK, PV = 208, 216
BM, BR = 224, 240
vPOI = 160
vCS = 164
vCC = 166
vCSA, vCSR, vBW, vL8, vFA = 167, 172, 173, 174, 175
sROT, sCWK = sC0, sOUTW
sSLO, sF1W = sCA, sCB2
sWP = sMK


def phi_ops(acc, cs, mean, rs, dst, tmp):
    o = []
    P = lambda b, i: v(b + 2*i, 2)
    o += [pkop("v_pk_fma_f32", P(acc, i), [mean(i), cs(i), (P(acc, i), None)], neg0=True) for i in range(8)]
    o += [pkop("v_pk_mul_f32", P(acc, i), [(P(acc, i), None), rs(i)]) for i in range(8)]
    if tmp is not None:
        o += [V(f"v_pk_mul_f32 {P(tmp,i)}, {P(acc,i)}, {s(sL2E,2)}") for i in range(8)]
        for i in range(16):
            o += [V(f"v_exp_f32 {v(tmp+i)}, {v(tmp+i)} clamp"), V(f"v_max_f32 {v(acc+i)}, 0, {v(acc+i)}")]
        o += [V(f"v_pk_add_f32 {P(acc,i)}, {P(acc,i)}, {P(tmp,i)}") for i in range(8)]
        o += [V(f"v_pk_add_f32 {P(acc,i)}, {P(acc,i)}, {s(sEPS,2)}") for i in range(8)]
    o += [V(f"v_cvt_pk_bf16_f32 {v(dst+i)}, {v(acc+2*i)}, {v(acc+2*i+1)}") for i in range(8)]
    return o


def cs_sum(dst, b=168):
    return [V(f"v_add_f32 {v(b)}, {v(b)}, {v(b+1)}"), V(f"v_add_f32 {v(b+2)}, {v(b+2)}, {v(b+3)}"), V(f"v_add_f32 {v(dst)}, {v(b)}, {v(b+2)}")]


HORD = [0, 1, 3, 5, 7, 2, 4, 6]
NEARLY = 5
T_ = 152


def setup1():
    for t in range(1, 7):
        A(f"s_add_u32 {s(sM+8+t)}, {s(sM+7+t)}, 128")
        A(f"s_cmp_eq_u32 {s(sM+8+t)}, 896")
        A(f"s_cselect_b32 {s(sM+8+t)}, 0, {s(sM+8+t)}")
        A(f"s_mul_i32 {s(sM+1+t)}, {s(sM+8+t)}, 1344")
    T = T_
    A(f"v_lshlrev_b32 {v(vL16)}, 4, {v(vLANE)}")
    A(f"v_bfe_u32 {v(T+2)}, {v(vLANE)}, 2, 2")
    A(f"v_bfe_u32 {v(T+3)}, {v(vLANE)}, 4, 1")
    A(f"v_and_b32 {v(T+4)}, 3, {v(vLANE)}")
    A(f"v_bfe_u32 {v(vT)}, {v(vLANE)}, 1, 3")
    A(f"v_xor_b32 {v(vT)}, {v(vT)}, {v(T+1)}")
    A(f"v_lshlrev_b32 {v(vT)}, 4, {v(vT)}")
    A(f"v_lshl_add_u32 {v(vT)}, {v(T)}, 7, {v(vT)}")
    A(f"s_add_u32 {s(sT0)}, {s(sW4K)}, 0x10000")
    A(f"v_add_u32 {v(vT)}, {s(sT0)}, {v(vT)}")
    A(f"v_lshl_add_u32 {v(vT+1)}, {v(T+1)}, 3, {v(T+2)}")
    A(f"v_lshlrev_b32 {v(vT+1)}, 6, {v(vT+1)}")
    A(f"v_lshl_add_u32 {v(vT+2)}, {v(T+3)}, 2, {v(T+4)}")
    A(f"v_cmp_lt_u32 vcc, 5, {v(vT+2)}")
    A(f"v_xor_b32 {v(vT+3)}, 1, {v(vT+2)}")
    A(f"s_mov_b32 {s(sONES)}, 0x3f803f80")
    A(f"v_cndmask_b32 {v(vT+2)}, {v(vT+2)}, {v(vT+3)}, vcc")
    A(f"v_lshl_add_u32 {v(vT+1)}, {v(vT+2)}, 3, {v(vT+1)}")
    A(f"v_add_u32 {v(vT+2)}, {32*K}, {v(vT+1)}")
    A(f"v_add_u32 {v(vT+1)}, {WKL}, {v(vT+1)}")
    for i in range(4):
        A(f"s_add_u32 {s(sT0)}, {s(sW)}, {i}")
        A(f"s_and_b32 {s(sT0)}, {s(sT0)}, 3")
        A(f"s_lshl_b32 {s(sT1)}, {s(sT0)}, 5")
        A(f"v_xor_b32 {v(vXR+i)}, {s(sT1)}, {v(vT)}")
        A(f"v_lshl_add_u32 {v(vWR+i)}, {s(sT0)}, 10, {v(vT+1)}")
        A(f"v_lshl_add_u32 {v(vVR+i)}, {s(sT0)}, 12, {v(vT+2)}")
    A("s_mov_b32 vcc_lo, 0xf0f00f0f")
    A("s_mov_b32 vcc_hi, 0xf0f00f0f")
    A(f"v_mov_b32 {v(vT)}, {s(sONES)}")
    A(f"v_cndmask_b32 {v(vT)}, 0, {v(vT)}, vcc")
    for k in range(4):
        A(f"v_accvgpr_write_b32 {r(SEL+k)}, {v(vT)}")
        A(f"v_mov_b32 {v(vPOI+k)}, -1")
    srd(SWS, WS_BYTES)
    A(f"v_lshlrev_b32 {v(vL8)}, 3, {v(vLANE)}")
    A(f"s_lshl2_add_u32 {s(sG1)}, {s(sHEAD)}, {s(sW)}")
    A(f"s_lshl_b32 {s(sG1)}, {s(sG1)}, 13")
    A(f"s_lshl_b32 {s(sT0)}, {s(sRB)}, 9")
    A(f"s_add_u32 {s(sKVPW)}, {s(sG1)}, {s(sT0)}")
    A(f"s_lshl_b32 {s(sB1)}, {s(sB1)}, 7")
    A(f"s_add_u32 {s(sB1)}, {s(sB1)}, {SL1}")
    A(f"v_lshlrev_b32 {v(vSO)}, 4, {v(T+4)}")
    A(f"v_lshl_add_u32 {v(vSO)}, {v(T+1)}, 6, {v(vSO)}")
    if OPT["warm"]:
        A(f"s_cmp_eq_u32 {s(sW)}, 1")
        A(f"s_cselect_b64 {s(sWP,2)}, {s(SWU,2)}, {s(SWG,2)}")
        A(f"s_cmp_eq_u32 {s(sW)}, 2")
        A(f"s_cselect_b64 {s(sWP,2)}, {s(SWD,2)}, {s(sWP,2)}")
        A(f"s_cmp_eq_u32 {s(sW)}, 3")
        A(f"s_cselect_b64 {s(sWP,2)}, {s(SWO,2)}, {s(sWP,2)}")
        A(f"s_cselect_b32 {s(sT0)}, 63, -1")
        A(f"s_and_b32 {s(sT0)}, {s(sT0)}, s2")
        A(f"s_mul_i32 {s(sT0)}, {s(sT0)}, 49")
        A(f"s_add_u32 {s(sT0)}, {s(sT0)}, 21")
        A(f"v_min_u32 {v(vWM)}, 6, {v(vLANE)}")
        A(f"v_add_lshl_u32 {v(vWM)}, {v(vWM)}, {s(sT0)}, 7")


def setup2():
    T = T_
    A(f"s_lshl4_add_u32 {s(sT0)}, {s(sHEAD)}, {s(sRB)}")
    A(f"s_lshl_b32 {s(sT0)}, {s(sT0)}, 7")
    A(f"s_add_u32 {s(sF1W)}, {s(sT0)}, {FL1}")
    A(f"s_lshl2_add_u32 {s(sT0)}, {s(sHEAD)}, {s(sW)}")
    A(f"s_lshl_b32 {s(sT0)}, {s(sT0)}, 9")
    A(f"s_add_u32 {s(sFL)}, {s(sT0)}, {FL1}")
    A(f"v_lshlrev_b32 {v(vFA)}, 7, {v(T+4)}")
    A(f"s_lshl2_add_u32 {s(sT0)}, {s(sRB)}, {s(sW)}")
    A(f"s_lshl_b32 {s(sT0)}, {s(sT0)}, 11")
    A(f"s_add_u32 {s(sSLO)}, {s(sT0)}, {SL1}")
    A(f"v_lshlrev_b32 {v(vSO)}, 6, {v(T)}")
    A(f"v_lshlrev_b32 {v(vCSR)}, 4, {v(T)}")
    A(f"v_add_u32 {v(vCSR)}, {MISC + 1024}, {v(vCSR)}")
    A(f"v_lshl_add_u32 {v(vCSA)}, {s(sW)}, 2, {v(vCSR)}")
    A(f"s_lshl_b32 {s(sT2)}, {s(sW)}, 8")
    A(f"s_add_u32 {s(sT2)}, {s(sT2)}, {MISC}")
    A(f"v_lshl_add_u32 {v(vBC)}, {v(T+1)}, 4, {s(sT2)}")
    A(f"v_lshl_add_u32 {v(vBW)}, {v(vLANE)}, 2, {s(sT2)}")
    A(f"s_mov_b32 {s(sUP)}, 0")
    A(f"s_mov_b32 {s(sUP+1)}, -1")
    A(f"s_and_b32 {s(sT2)}, {s(sHEAD)}, 7")
    A(f"s_sub_u32 {s(sT3)}, 4, {s(sP)}")
    A(f"s_cmp_eq_u32 {s(sT2)}, {s(sT3)}")
    A(f"s_cselect_b32 {s(sIDLE)}, 1, 0")
    A(f"s_cmp_gt_u32 {s(sT2)}, {s(sT3)}")
    A(f"s_cselect_b32 {s(sT3)}, 1, 0")
    A(f"s_sub_u32 {s(sCB)}, {s(sT2)}, {s(sT3)}")
    A(f"s_mul_i32 {s(sFB)}, {s(sP)}, 7")
    A(f"s_add_u32 {s(sFB)}, {s(sFB)}, {s(sCB)}")
    A(f"s_and_b32 {s(sKH)}, {s(sW)}, 1")
    srd(SWG, 448 * 3584)
    srd(SWU, 448 * 3584 + 1024)
    A(f"s_sub_u32 {s(SWU)}, {s(SWU)}, 1024")
    A(f"s_subb_u32 {s(SWU+1)}, {s(SWU+1)}, 0")
    A(f"s_lshl2_add_u32 {s(sT0)}, {s(sFB)}, {s(sW)}")
    A(f"s_lshl_b32 {s(sT1)}, {s(sT0)}, 6")
    A(f"v_lshrrev_b32 {v(vT)}, 2, {v(vLANE)}")
    A(f"v_mul_u32_u24 {v(vT)}, 3584, {v(vT)}")
    A(f"v_and_b32 {v(vT+1)}, 0x30, {v(vL16)}")
    A(f"v_add3_u32 {v(vCW)}, {v(vT)}, {v(vT+1)}, {s(sT1)}")
    A(f"v_xor_b32 {v(vCW+1)}, 32, {v(vCW)}")
    A(f"s_mul_i32 {s(sGW)}, {s(sRB)}, 224")
    A(f"s_add_u32 {s(sGW)}, {s(sGW)}, {s(sT0)}")
    A(f"s_lshl_b32 {s(sGW)}, {s(sGW)}, 11")
    A(f"s_add_u32 {s(sGW)}, {s(sGW)}, {GG}")
    if OPT["rot"] == 2:
        A(f"s_lshr_b32 {s(sT0)}, {s(sRB)}, 2")
        A(f"s_mul_i32 {s(sROT)}, {s(sT0)}, 7")
    elif OPT["rot"]:
        A(f"s_and_b32 {s(sT0)}, {s(sRB)}, 3")
        A(f"s_lshr_b32 {s(sT1)}, {s(sRB)}, 2")
        A(f"s_lshl2_add_u32 {s(sT0)}, {s(sT0)}, {s(sT1)}")
        A(f"s_mul_i32 {s(sT0)}, {s(sT0)}, 7")
        A(f"s_lshr_b32 {s(sROT)}, {s(sT0)}, 2")
    else:
        A(f"s_mov_b32 {s(sROT)}, 0")
    A(f"s_mul_i32 {s(sCWK)}, {s(sROT)}, {16*3584}")


def setup3():
    T = T_
    A(f"s_lshl_b32 {s(sT0)}, {s(sRB)}, 2")
    A(f"s_add_u32 {s(sOW)}, {s(sT0)}, {s(sW)}")
    A(f"s_lshl4_add_u32 {s(sOW)}, {s(sOW)}, {s(sHEAD)}")
    A(f"s_lshl_b32 {s(sOW)}, {s(sOW)}, 11")
    A(f"s_add_u32 {s(sOW)}, {s(sOW)}, {OO}")
    A(f"v_lshrrev_b32 {v(vT)}, 3, {v(vLANE)}")
    A(f"s_and_b32 {s(sT1)}, {s(sW)}, 2")
    A(f"s_add_u32 {s(sT1)}, {s(sT1)}, {s(sP)}")
    A(f"s_add_u32 {s(sT1)}, {s(sT1)}, {s(sT0)}")
    A(f"s_lshl1_add_u32 {s(sT3)}, {s(sCB)}, {s(sKH)}")
    A(f"s_mul_i32 {s(sSTW)}, {s(sT1)}, 14")
    A(f"s_add_u32 {s(sSTW)}, {s(sSTW)}, {s(sT3)}")
    A(f"v_mul_u32_u24 {v(vT)}, 896, {v(vT)}")
    A(f"s_lshl_b32 {s(sHW)}, {s(sSTW)}, 11")
    A(f"s_add_u32 {s(sHW)}, {s(sHW)}, {HH_}")
    A(f"s_lshl_b32 {s(sSTW)}, {s(sSTW)}, 8")
    A(f"s_add_u32 {s(sSTW)}, {s(sSTW)}, {ST}")
    A(f"s_lshl1_add_u32 {s(sT1)}, {s(sT1)}, {s(sKH)}")
    A(f"s_mul_i32 {s(sXB)}, {s(sT1)}, {16*896}")
    A(f"v_and_b32 {v(vT+1)}, 0x70, {v(vL16)}")
    A(f"s_lshl_b32 {s(sT1)}, {s(sT1)}, 3")
    A(f"s_sub_u32 {s(sT1)}, {s(sT1)}, {s(sKH)}")
    A(f"s_lshl_b32 {s(sT1)}, {s(sT1)}, 11")
    for i in range(8):
        A(f"s_add_u32 {s(sG2+i)}, {s(sT1)}, {OO + HORD[i]*2048}")
    A(f"s_lshl_b32 {s(sT2)}, {s(sKH)}, 14")
    A(f"s_add_u32 {s(sG2)}, {s(sG2)}, {s(sT2)}")
    A(f"v_lshlrev_b32 {v(vT+2)}, 6, {v(T+3)}")
    A(f"s_mov_b32 {s(sL2E)}, 0x3fb8aa3b")
    A(f"s_mov_b32 {s(sL2E+1)}, 0x3fb8aa3b")
    A(f"s_mov_b32 {s(sEPS)}, 0x358637bd")
    A(f"s_mov_b32 {s(sEPS+1)}, 0x358637bd")
    A(f"v_xor_b32 {v(vT+1)}, {v(vT+1)}, {v(vT+2)}")
    A(f"s_lshl_b32 {s(sT0)}, {s(sCB)}, 7")
    A(f"v_add3_u32 {v(vRO)}, {v(vT)}, {v(vT+1)}, {s(sT0)}")
    A(f"v_add_u32 {v(vRO+1)}, {7168-1024}, {v(vRO)}")
    srd(SWO, 448 * 896)
    srd(SWD, 1792 * 896)
    srd(SOUT, 2048 * 896)
    A(f"v_lshl_add_u32 {v(vT)}, {v(T+1)}, 2, {v(T+2)}")
    A(f"v_lshlrev_b32 {v(vT)}, 6, {v(vT)}")
    A(f"v_mul_u32_u24 {v(vT+1)}, {1024+32}, {v(T+3)}")
    A(f"v_lshlrev_b32 {v(vT+2)}, 3, {v(T+4)}")
    A(f"v_add3_u32 {v(vT)}, {v(vT)}, {v(vT+1)}, {v(vT+2)}")
    A(f"v_add_u32 {v(vCR)}, {s(sW4K)}, {v(vT)}")
    A(f"v_xor_b32 {v(vCR+1)}, 32, {v(vCR)}")
    A(f"s_mul_i32 {s(sW7K)}, {s(sW)}, {7*K}")
    A(f"s_mul_i32 {s(sDWK)}, {s(sW)}, {112*896}")
    A(f"s_mul_i32 {s(sWOL)}, {s(sW)}, {14*K}")
    A(f"s_add_u32 {s(sWOL)}, {s(sWOL)}, {WL0}")
    A(f"v_bfe_u32 {v(vXA)}, {v(vLANE)}, 1, 1")
    A(f"v_xor_b32 {v(vXA)}, {s(sKH)}, {v(vXA)}")
    A(f"v_lshlrev_b32 {v(vXA)}, 6, {v(vXA)}")
    A(f"v_lshl_add_u32 {v(vXA)}, {v(T)}, 7, {v(vXA)}")
    A(f"v_lshl_add_u32 {v(vXA)}, {v(T+1)}, 3, {v(vXA)}")
    A(f"s_lshr_b32 {s(sT0)}, {s(sW)}, 1")
    A(f"s_lshl_b32 {s(sT0)}, {s(sT0)}, 12")
    A(f"s_add_u32 {s(sT0)}, {s(sT0)}, {XIMG}")
    A(f"v_add_u32 {v(vXA)}, {s(sT0)}, {v(vXA)}")
    A(f"v_add_u32 {v(vKR)}, {96*K}, {v(vL16)}")
    A(f"v_add_u32 {v(vKW)}, {s(sW4K)}, {v(vKR)}")
    A(f"v_add_u32 {v(vKR)}, {s(sW1K)}, {v(vKR)}")
    A(f"s_lshr_b32 {s(sT0)}, {s(sW)}, 1")
    A(f"s_lshl_b32 {s(sT0)}, {s(sT0)}, 10")
    A(f"s_lshl3_add_u32 {s(sT0)}, {s(sKH)}, {s(sT0)}")
    A(f"v_add_u32 {v(vXR2)}, {KVX}, {v(vL16)}")
    A(f"v_add_u32 {v(vXW)}, {s(sT0)}, {v(vXR2)}")


def setup4():
    T = T_
    A(f"s_mov_b32 {s(sMK)}, 0x3f80")
    A(f"s_mov_b32 {s(sMK+1)}, 0x3f800000")
    A(f"v_lshrrev_b32 {v(4)}, 1, {v(T+2)}")
    A(f"v_xor_b32 {v(4)}, {s(sKH)}, {v(4)}")
    A(f"v_lshlrev_b32 {v(4)}, 6, {v(4)}")
    A(f"v_lshl_add_u32 {v(4)}, {v(T+2)}, 7, {v(4)}")
    A(f"v_lshl_add_u32 {v(4)}, {v(T+3)}, 5, {v(4)}")
    A(f"v_lshl_add_u32 {v(4)}, {v(T+4)}, 3, {v(4)}")
    A(f"s_mul_i32 {s(sT0)}, {s(sKH)}, {15*28*128}")
    A(f"s_add_u32 {s(sT0)}, {s(sT0)}, {WL0}")
    A(f"v_add_u32 {v(4)}, {s(sT0)}, {v(4)}")
    A(f"v_lshl_add_u32 {v(2)}, {v(T+1)}, 9, {v(4)}")
    A(f"v_xor_b32 {v(5)}, 64, {v(4)}")
    A(f"v_xor_b32 {v(3)}, 64, {v(2)}")
    A(f"s_lshl4_add_u32 {s(sT0)}, {s(sRB)}, {s(sHEAD)}")
    A(f"s_lshl_b32 {s(sT0)}, {s(sT0)}, 7")
    A(f"s_add_u32 {s(sF1W)}, {s(sT0)}, {FL2}")
    A(f"s_lshl2_add_u32 {s(sT0)}, {s(sRB)}, {s(sW)}")
    A(f"s_lshl_b32 {s(sT0)}, {s(sT0)}, 9")
    A(f"s_add_u32 {s(sSLO)}, {s(sT0)}, {FL2}")
    A(f"s_and_b32 {s(sT0)}, s2, 7")
    A(f"s_min_u32 {s(sT0)}, {s(sT0)}, 6")
    A(f"s_lshl_b32 {s(sM+8)}, {s(sT0)}, 7")
    for t in range(1, 7):
        A(f"s_add_u32 {s(sM+8+t)}, {s(sM+7+t)}, 128")
        A(f"s_cmp_eq_u32 {s(sM+8+t)}, 896")
        A(f"s_cselect_b32 {s(sM+8+t)}, 0, {s(sM+8+t)}")


def flag_set(which):
    lab = A.label("L_cnt")
    A(f"s_cmp_lg_u32 {s(sW)}, 3")
    A(f"s_cbranch_scc1 {lab}")
    A(f"v_mov_b32 {v(vCS+1)}, {s(sTAG)}")
    A(f"v_mov_b32 {v(vCS)}, {s(sTAG)}")
    A("s_mov_b64 exec, 0xffff")
    A(f"buffer_store_dwordx2 {v(vCS,2)}, {v(vL8)}, {s(SWS,4)}, {s(sF1W)} offen sc1")
    A("s_mov_b64 exec, -1")
    A(f"{lab}:")


st4 = lambda so, imm, tag: ("vm", f"buffer_store_dwordx4 {v(vPOI,4)}, {v(vL16)}, {s(SWS,4)}, {so} offen{off(imm)} sc1", tag)


def u_cw(ks, pace=16):
    sl = ks % 8
    adv = [S(f"s_add_u32 {s(sCWK)}, {s(sCWK)}, {16*3584}"), S(f"s_cmp_eq_u32 {s(sCWK)}, {448*3584}"), S(f"s_cselect_b32 {s(sCWK)}, 0, {s(sCWK)}")] if ks else [S("s_nop 0")]
    return unit([S(f"s_add_u32 m0, {s(sW4K)}, {(sl >> 1)*16*K + (sl & 1)*2048}")] + adv +
                [DMA(vCW, SWG, s(sCWK), 0, f"cw{ks}"), DMA(vCW+1, SWU, s(sCWK), 1024, f"cw{ks}")], pace)


def cw_read(a_, b_):
    o = []
    for ks in range(a_, b_):
        sl = ks % 8
        o += [WV(f"cw{ks}")] + [TR(CW + (ks*2+t)*4 + rd*2, vCR + t, (sl >> 1)*16*K + (sl & 1)*2048 + rd*512, f"cr{ks}") for t in range(2) for rd in range(2)]
    return o


def cw_cs(a_, b_):
    o = []
    for ks in range(a_, b_):
        o += [WL(f"cr{ks}")] + [M16(CSA + 4*t, SEL, CW + (ks*2+t)*4, ks == 0) for t in range(2)]
    return o


def wgemm(part, acc, swap, cso, bars, first, extra={}):
    nm = "kvq"[part]

    def reads(n):
        t, i = divmod(n, 4)
        oo = [WV(bars[n]), BAR] if n in bars else []
        return oo + [TR(RW[(first + n) % 8] + rd*2, vVR + i, (2 - part)*32*K + (t >> 2)*16*K + (t & 3)*1024 + rd*256, f"{nm}r{n}") for rd in range(2)]
    main = []
    for n in range(28):
        w_ = RW[(first + n) % 8]
        nxt = reads(n + 4) if n + 4 < 28 else []
        main += [o_ for o_ in nxt if o_[0] != "lds"]
        if n % 2 == 0:
            main.append(WL(f"{nm}r{n+1}"))
        if n % 4 == 0:
            main.append(M16(ACS + 4*(part % 2), SEL, w_, n == 0))
        main.append(M32(acc, w_, XF + n*4, n == 0) if swap else M32(acc, XF + n*4, w_, n == 0))
        main += [o_ for o_ in nxt if o_[0] == "lds"]
        if n == 26:
            main.append(("lds", f"ds_write_b32 {v(vCSA)}, {r(ACS + 4*(part % 2))}{off(cso)}", "csw"))
        main += extra.get(n, [])
    head = []
    for n in range(4):
        head += reads(n)
    return head, main


def phaseA():
    UP, LK = OPT.get("up", 2), OPT.get("lk", 4)
    for j in range(2):
        E(("vm", f"buffer_load_dwordx4 {v(SLC+4*j,4)}, {v(vT)}, {s(SX,4)}, {s(sT0)} offen{off(448*j)}", "sl"))
    A(f"s_mov_b32 {s(sT0)}, {EPO}")
    A(f"s_load_dword {s(sTAG)}, {s(SWS,2)}, {s(sT0)}")
    chunk = lambda t: [u_w(0, t, 16)] + u_x(t)
    BG.extend(chunk(0))
    bg_force()
    o1 = cap(setup1)
    run(o1[:18], bg=False)
    for t in range(1, UP):
        BG.extend(chunk(t))
    E(("bg", 1))
    run(o1[18:])
    bg_force()
    for t in range(UP, LK):
        BG.extend(chunk(t))
    S0 = SLC + 8
    o = [V(f"v_mov_b32 {v(S0)}, 0"), V(f"v_mov_b32 {v(S0+2)}, 0"), WV("sl"), ST_(1), ("bg", 1)]
    for k in range(8):
        o += [V(f"v_dot2c_f32_bf16 {v(S0)}, {s(sONES)}, {v(SLC+k)}"), V(f"v_dot2c_f32_bf16 {v(S0+2)}, {v(SLC+k)}, {v(SLC+k)}")]
    o += [("bg", 1)]
    for pat in ("quad_perm:[1,0,3,2]", "quad_perm:[2,3,0,1]", "row_half_mirror", "row_mirror"):
        o += [V(f"v_add_f32_dpp {v(S0+k)}, {v(S0+k)}, {v(S0+k)} {pat} row_mask:0xf bank_mask:0xf") for k in (0, 2)]
    o += [V(f"v_mov_b32 {v(S0+1+k)}, {v(S0+k)}") for k in (0, 2)] + [("bg", 1)]
    o += [V(f"v_permlane16_swap_b32 {v(S0+k)}, {v(S0+1+k)}") for k in (0, 2)]
    o += [V(f"v_add_f32 {v(S0+k)}, {v(S0+k)}, {v(S0+1+k)}") for k in (0, 2)]
    o += [V(f"v_mul_f32 {v(S0)}, 0x3b124925, {v(S0)}"), V(f"v_mul_f32 {v(S0+2)}, 0x3b124925, {v(S0+2)}"),
          V(f"v_fma_f32 {v(S0+2)}, -{v(S0)}, {v(S0)}, {v(S0+2)}"), V(f"v_max_f32 {v(S0+2)}, 0, {v(S0+2)}"),
          V(f"v_add_f32 {v(S0+2)}, 0x3727c5ac, {v(S0+2)}"), V(f"v_rsq_f32 {v(S0+2)}, {v(S0+2)}"), WL("all"),
          S(f"s_mul_i32 {s(sTAG)}, {s(sTAG)}, 0x9e3779b1"), S(f"s_add_u32 {s(sTAG)}, {s(sTAG)}, 0x7f4a7c15"),
          V(f"v_mov_b32 {v(S0+1)}, {s(sTAG)}"), V(f"v_mov_b32 {v(S0+3)}, {s(sTAG)}"),
          S("s_mov_b32 exec_lo, 15"), S("s_mov_b32 exec_hi, 15"),
          ("vm", f"buffer_store_dwordx4 {v(S0,4)}, {v(vSO)}, {s(SWS,4)}, {s(sB1)} offen sc1", "zs"), S("s_mov_b64 exec, -1"),
          ("vm", f"buffer_store_dwordx2 {v(vPOI,2)}, {v(vL8)}, {s(SWS,4)}, {s(sKVPW)} offen sc1", "zs")]
    run(o, bg=False)
    bg_force()
    stamp(2)

    def kreads(n):
        t, i = divmod(n, 4)
        oo = []
        if i == 0:
            oo += [WV([f"c{t}", "zs"] if t == 5 else f"c{t}"), BAR]
            if t == 5:
                oo.append(FN(lambda: flag_set(0), 8))
        if t == 3:
            oo.append(V(f"v_subrev_u32 {v(vXR+i)}, 0x10000, {v(vXR+i)}"))
        oo.append(RD128(XF + n*4, vXR + i, (t if t < 3 else t-3)*16*K, f"k{n}"))
        oo += [TR(RW[n % 8] + rd*2, vWR + i, t*4096 + rd*256, f"k{n}") for rd in range(2)]
        return oo
    SV = SLC
    sld = f"buffer_load_dwordx4 {v(SV,4)}, {v(vSO)}, {s(SWS,4)}, {s(sSLO)} offen sc1"
    body = {t: (chunk(t + LK) if t + LK < 7 else []) for t in range(7)}
    vq = [u_w(1, t) for t in range(7)]
    free = [t for t in range(7) if not body[t]]
    plan = {4: [1, 1, 2, 1], 3: [1, 2, 1], 5: [1, 1, 1, 1, 1]}[len(free)]
    for t, c_ in zip(free, plan):
        for _ in range(c_):
            body[t].append(vq.pop(0))
    body[OPT.get("sb", 4)].append(unit([("vm", sld, "sv")], 4))
    if OPT["warm"]:
        for t in range(7):
            body[t].append(unit([("vm", f"global_load_dword a255, {v(vWM)}, {s(sWP,2)} offset:{896*(t-3)}", "warm")], 7))
    LA = 3
    run(sum([kreads(n) for n in range(LA)], []), bg=False)
    main = []
    for n in range(28):
        t, i = divmod(n, 4)
        nxt = kreads(n + LA) if n + LA < 28 else []
        if i == 0:
            main.append(FN(lambda t=t: BG.extend(body[t])))
        if i == 4 - LA:
            main.append(("bg", 9))
        main += [o_ for o_ in nxt if o_[0] != "lds"]
        main.append(WL(f"k{n}"))
        if i == 0:
            main.append(M16(ACS, SEL, RW[n % 8], n == 0))
        main.append(M32(ACK, XF + n*4, RW[n % 8], n == 0))
        main += [o_ for o_ in nxt if o_[0] == "lds"]
        if n == 26:
            main.append(("lds", f"ds_write_b32 {v(vCSA)}, {r(ACS)}", "csw"))
    lab, back = A.label("L_sv"), A.label("L_svb")
    schk = [f"v_xor_b32 {v(SV+1)}, {s(sTAG)}, {v(SV+1)}", f"v_xor_b32 {v(SV+3)}, {s(sTAG)}, {v(SV+3)}", f"v_or_b32 {v(SV+1)}, {v(SV+1)}, {v(SV+3)}",
            f"v_cmp_ne_u32 vcc, 0, {v(SV+1)}"]
    OOL.append([f"{lab}:"] + dbg_mark("sv") + [f"s_mov_b32 {s(sSPIN)}, 0", f"{lab}_t:", f"s_sleep {OPT['slp']}", sld, "s_waitcnt vmcnt(0)"] + schk +
               [f"s_cbranch_vccz {back}"] + spin_tail(f"{lab}_t", back))
    stt = [WV("sv")] + [V(c_) for c_ in schk] + [FN(lambda: (A(f"s_cbranch_vccnz {lab}"), A(f"{back}:")), 4),
           V(f"v_mov_b32 {v(vMEAN)}, {v(SV)}"), V(f"v_mov_b32 {v(vMEAN+1)}, {v(SV+2)}"),
           V(f"v_cndmask_b32 {v(SV)}, {v(SV)}, {v(SV+2)}, {s(sUP,2)}"), ("lds", f"ds_write_b32 {v(vBW)}, {v(SV)}", "st")]
    stt += [RD128(BM + 4*q, vBC, 32*q, "bm") for q in range(4)] + [RD128(BR + 4*q, vBC, 128 + 32*q, "br") for q in range(4)]
    weave(main, [dict(ops=cap(setup2) + cap(setup3), g0=0, g1=16), dict(ops=stt, g0=24, g1=27)], autobg=False, report=REP("K"))
    stamp(3)
    BG.extend(vq)
    ccl, ccops = flag_check("cc", vCC, vFA, s(sFL))
    hv, mv = wgemm(1, ACV, False, 512, {0: "v1", 8: "v3", 16: "v5", 24: "v6"}, 28,
                   extra={21: [st4(s(sOW), 0, "po")], 23: [st4(s(sOW), 1024, "po")], 25: [ccl],
                          27: [WL("csw"), BAR, RD128(168, vCSR, 512, "csr2")]})
    ph = phi_ops(ACK, lambda i: (v(vCS, 2), 0), lambda i: (v(BM+2*i, 2), None), lambda i: (v(BR+2*i, 2), None), PK, PK)
    o = [WL("csw"), BAR, RD128(168, vCSR, 0, "csr"), ("bg", 1), WL("csr")] + cs_sum(vCS) + ph[:44] + [("bg", 1)] + ph[44:70] + [("bg", 1)] + hv + ph[70:]
    run(o, bg=False)
    assert not BG
    stamp(4)
    BG.extend([u_w(2, t) for t in range(7)])
    bg_now(OPT.get("dq", 100))
    pre = [V(f"v_cmp_eq_u32 vcc, 28, {v(T_)}"), V(f"v_mov_b32 {v(vT+1)}, {s(sONES)}")] + cap(setup4)
    weave(mv, [dict(ops=pre, g0=0, g1=24, greedy=True)], report=REP("V"))
    stamp(5)
    o = [("bg", 1), WL("csr2")] + cs_sum(vCS)
    o += phi_ops(ACV, lambda i: (v(vCS, 2), 0), lambda i: (v(BM+2*i, 2), None), lambda i: (v(BR+2*i, 2), None), PV, None)
    o += [V(f"v_cndmask_b32 {v(PV+i)}, {v(PV+i)}, {v(vT+1)}, vcc") for i in range(8)]
    o += [M32(ACK, PK, PV, True), M32(ACK, PK + 4, PV + 4), ("bg", 1)]
    o += [WR128(vKW, ACK + 4*q, q*1024, "kw") for q in range(4)]
    o += [WL("kw"), BAR]
    o += [RD128(ACV + 4*w, vKR, w*4096, f"kr{w}") for w in range(4)] + [WL("kr1")]
    o += [V(f"v_pk_add_f32 {v(ACV+k,2)}, {v(ACV+k,2)}, {v(ACV+4+k,2)}") for k in (0, 2)]
    o += [WL("kr3")]
    o += [V(f"v_pk_add_f32 {v(ACV+8+k,2)}, {v(ACV+8+k,2)}, {v(ACV+12+k,2)}") for k in (0, 2)]
    o += [V(f"v_pk_add_f32 {v(ACV+k,2)}, {v(ACV+k,2)}, {v(ACV+8+k,2)}") for k in (0, 2)]
    o += [V(f"v_cvt_pk_bf16_f32 {v(ACV)}, {v(ACV)}, {v(ACV+1)}"), V(f"v_cvt_pk_bf16_f32 {v(ACV+1)}, {v(ACV+2)}, {v(ACV+3)}")]
    o += [("vm", f"buffer_store_dwordx2 {v(ACV,2)}, {v(vL8)}, {s(SWS,4)}, {s(sKVPW)} offen sc1", "kvst")]
    run(o, bg=False)
    stamp(6)
    bg_force()
    hq, mq = wgemm(2, ACK, True, 1024, {0: ["q3", "po"], 16: "q5", 24: "q6"}, 0,
                   extra={21: [st4(s(sHW), 0, "ph")], 23: [st4(s(sHW), 1024, "ph")],
                          25: [S("s_mov_b64 exec, 0xffff"), st4(s(sSTW), 0, "ph"), S("s_mov_b64 exec, -1")],
                          27: [WL("csw"), BAR, RD128(168, vCSR, 1024, "csr3")]})
    run(ccops + hq, bg=False)
    flag_set(1)
    stamp(7)
    BG.extend([u_wo(g_) for g_ in range(7)] + [u_xres()])
    bg_now(100)
    weave(mq, [dict(ops=[S(f"s_add_u32 {s(sM+1)}, {s(sG1)}, 4096"), S(f"s_mul_i32 {s(sT2)}, {s(sKH)}, {8*28*128}")], g0=6, g1=27)], report=REP("Q"))
    stamp(8)


def u_wo(g):
    return unit([S(f"s_lshl4_add_u32 m0, {s(sM+8+g)}, {s(sWOL)}"), S(f"s_mul_i32 {s(sB0)}, {s(sM+8+g)}, 112"), S(f"s_add_u32 {s(sB0)}, {s(sB0)}, {s(sDWK)}"),
                 DMA(vRO, SWO, s(sB0), 0, "wo"), DMA(vRO+1, SWO, s(sB0), 1024, "wo")], OPT.get("pw", 22))


def u_xres():
    return unit([S(f"s_lshl_b32 {s(sB0)}, {s(sW)}, 11"), S(f"s_add_u32 m0, {s(sB0)}, {XIMG}"), S("s_nop 0"),
                 DMA(vRO, SX, s(sXB), 0, "wo"), DMA(vRO+1, SX, s(sXB), 1024, "wo")], 16)


WOF = 32
G2 = 160
ACB = 224


def phaseQ():
    ACQ, QB, QT, PQ, KS, G1 = 176, 192, 208, 160, 168, 224
    G = [dict(loads=[f"buffer_load_dwordx2 {v(G1+4*g+2*j,2)}, {v(vL8)}, {s(SWS,4)}, {s(sG1) if g < 4 else s(sM+1)} offen{off(((2*g+j) % 8)*512)} sc1" for j in range(2)],
              regs=list(range(G1+4*g, G1+4*g+4))) for g in range(8)]
    lg_ = gather_loads("ga", G)
    c2l, c2ops = flag_check("fo", vT + 1, vFA, s(sSLO))
    rest = list(BG)
    BG.clear()
    print("wo units left after q:", len(rest)) if OPT["rep"] else None
    BG.extend([unit(lg_[2*g:2*g+2], 8) for g in range(8)] + [unit([c2l], 4)] + rest)
    bg_now(OPT.get("dg1", 60))
    o = [WL("csr3")] + cs_sum(168) + [("lds", f"ds_write_b32 {v(vBW)}, {v(168)}", "st")]
    o += [RD128(QB + 4*q, vBC, 32*q, "bm") for q in range(4)] + [FN(lambda: None, 60), WL("bm")]
    o += phi_ops(ACQ, lambda i: (v(QB+2*i, 2), None), lambda i: (v(vMEAN, 2), 0), lambda i: (v(vMEAN, 2), 1), PQ, QT)
    o += [V(f"v_cndmask_b32 {v(PQ+i)}, {v(PQ+i)}, 0, {s(sUP,2)}") for i in (6, 7)]
    run(o)
    bg_force()
    stamp(9)
    BG.extend([u_cw(ks) for ks in range(0, 3)])
    top, end = refresh("g1", G)
    o = top + [V(f"v_mov_b32 {v(KS+k)}, 0") for k in range(4)]
    for g in range(8):
        o.append(WV(f"ga{g}"))
        for j in range(2):
            for k in range(2):
                o += [V(f"v_dot2c_f32_bf16 {v(KS+2*k)}, {s(sMK)}, {v(G1+4*g+2*j+k)}"), V(f"v_dot2c_f32_bf16 {v(KS+2*k+1)}, {s(sMK+1)}, {v(G1+4*g+2*j+k)}")]
    o += [V(f"v_cmp_u_f32 vcc, {v(KS)}, {v(KS+2)}"),
          V(f"v_cvt_pk_bf16_f32 {v(KS)}, {v(KS)}, {v(KS+1)}"), V(f"v_cvt_pk_bf16_f32 {v(KS+1)}, {v(KS+2)}, {v(KS+3)}")] + end
    o += [ST_(10), ("lds", f"ds_write_b64 {v(vXW)}, {v(KS,2)}", "kf"), WV("ph")] + c2ops + [WL("kf"), BAR,
          RD128(QT, vXR2, 0, "k0"), RD128(QT + 4, vXR2, 1024, "k1"), ("bg", 2),
          WL("k0"), M32(ACQ, QT, PQ, True), WL("k1"), M32(ACQ, QT + 4, PQ + 4), ("bg", 1),
          V(f"v_mov_b32 {v(vT)}, {v(ACQ+12)}"), V(f"v_mov_b32 {v(vT+1)}, {v(ACQ+12)}"),
          V(f"v_permlane32_swap_b32 {v(vT)}, {v(vT+1)}"), V(f"v_add_f32 {v(vT+1)}, {s(sEPS)}, {v(vT+1)}"), V(f"v_rcp_f32 {v(vT)}, {v(vT+1)}")]
    for hf in range(2):
        o += [V(f"v_pk_mul_f32 {v(ACQ+2*i,2)}, {v(ACQ+2*i,2)}, {v(vT,2)} op_sel_hi:[1,0]") for i in range(4*hf, 4*hf+4)]
        o += [V(f"v_cvt_pk_bf16_f32 {v(PQ+i)}, {v(ACQ+2*i)}, {v(ACQ+2*i+1)}") for i in range(4*hf, 4*hf+4)]
        if hf:
            o += [V(f"v_cndmask_b32 {v(PQ+i)}, {v(PQ+i)}, 0, {s(sUP,2)}") for i in (6, 7)]
        o += [("vm", f"buffer_store_dwordx4 {v(PQ+4*hf,4)}, {v(vL16)}, {s(SWS,4)}, {s(sOW)} offen{off(1024*hf)} sc1", "ost")]
    run(o, bg=False)
    stamp(11)
    A(f"s_cmp_eq_u32 {s(sIDLE)}, 1")
    A("s_cbranch_scc1 L_fin")


def phaseB():
    def grp(i):
        b = G2 + i*8
        return dict(loads=[f"buffer_load_dwordx4 {v(b+4*st,4)}, {v(vL16)}, {s(SWS,4)}, {s(sG2+i)} offen{off(1024*st)} sc1" for st in range(2)],
                    regs=list(range(b, b+8)),
                    compute=[M32(ACB + 16*nt, WOF + ((i*2+st)*2+nt)*4, b + 4*st, i == 0 and st == 0 and nt == 1) for st in range(2) for nt in (1, 0)])
    GE = [grp(i) for i in range(NEARLY)]
    GL = [grp(i) for i in range(NEARLY, 8)]
    P2 = OPT.get("p2", 18)
    NA = OPT.get("na", 3)
    le = gather_loads("ge", GE)
    ll = gather_loads("gl", GL)
    BG.extend([u_cw(ks, P2) for ks in range(3, 3 + NA)] + [unit(le[2*i:2*i+2], 16) for i in range(NEARLY)])
    bg_now()
    o = [("bg", 1), WV("wo"), BAR]
    o += [("lds", f"ds_read_b64 {v(ACB+16+2*q,2)}, {v(vXA)}{off(16*q)}", "xr") for q in range(4)]
    for i in range(8):
        for st in range(2):
            for nt in range(2):
                for rd in range(2):
                    o += [TR(WOF + ((i*2+st)*2+nt)*4 + rd*2, (4 if (st == 1 and rd == 1) else 2) + nt, (28*HORD[i] + 16*st + 8*rd)*128, "wr"), FN(lambda: None, 4)]
        if i == 0:
            o += [V(f"v_subrev_u32 {v(2+j)}, {s(sT2)}, {v(2+j)}") for j in range(4)]
    o += cw_read(0, 3) + [WL("xr")]
    for k in range(8):
        o += [V(f"v_lshlrev_b32 {v(ACB+2*k)}, 16, {v(ACB+16+k)}"), V(f"v_and_b32 {v(ACB+2*k+1)}, 0xffff0000, {v(ACB+16+k)}")]
    o += [V(f"v_add_u32 {v(vT+2)}, {s(sW4K)}, {v(vL16)}"), V(f"v_add_u32 {v(vT+2)}, {XB}, {v(vT+2)}"),
          V(f"v_xor_b32 {v(vT+3)}, 4096, {v(vT+2)}"), V(f"v_lshrrev_b32 {v(6)}, 1, {v(vL16)}")]
    run(o)
    print("units left in W2:", len(BG)) if OPT["rep"] else None
    bg_force()
    NB = OPT.get("nb", 1)
    BG.extend([u_cw(ks) for ks in range(3 + NA, 3 + NA + NB)])
    bg_force()
    stamp(12)
    n1 = 3 + NA + NB
    BG.extend([unit(ll[2*i:2*i+2], 16) for i in range(3)] + [u_cw(ks) for ks in range(n1, 11)])
    run([WL("all")] + site_check("ge0", GE[0], GE[1:]), bg=False)
    bg_now()
    main, streams = [], [dict(ops=cw_read(3, n1), g0=2, g1=19)]
    for i, G in enumerate(GE):
        main += G["compute"]
        if i + 1 < NEARLY:
            streams.append(dict(ops=site_check(f"ge{i+1}", GE[i+1], GE[i+2:]), g0=4*i + 1, g1=4*i + 4))
    weave(main, streams, report=REP("ge"))
    bg_force()
    gather_finish("gl", GL)
    stamp(13)
    BG.extend([u_cw(ks) for ks in range(11, 13)])
    E(WL("all"))
    T0, HP, S0 = G2, G2 + 16, G2 + 24
    o = [("bg", 1)] + [WR128(vT + 2, ACB + 16 + 4*q, q*1024, "bw") for q in range(4)]
    o += [WL("bw"), BAR]
    o += [RD128(T0 + 4*q, vT + 3, q*1024, f"br{q >> 1}") for q in range(4)] + [("bg", 1)]
    o += [V(f"v_mov_b32 {v(S0+k)}, 0") for k in range(2)]
    for st in range(2):
        o += [WL(f"br{st}")]
        o += [V(f"v_pk_add_f32 {v(ACB+8*st+2*k,2)}, {v(ACB+8*st+2*k,2)}, {v(T0+8*st+2*k,2)}") for k in range(4)]
        o += [V(f"v_cvt_pk_bf16_f32 {v(HP+4*st+k)}, {v(ACB+8*st+2*k)}, {v(ACB+8*st+2*k+1)}") for k in range(4)]
        o += [("vm", f"buffer_store_dwordx4 {v(HP+4*st,4)}, {v(vL16)}, {s(SWS,4)}, {s(sHW)} offen{off(1024*st)} sc1", "hst")]
    o += [ST_(14), FN(lambda: BG.extend([u_cw(ks, P2) for ks in range(13, n1 + 8)])), ("bg", 1)] + cw_read(n1, 11)
    for k in range(8):
        o += [V(f"v_dot2c_f32_bf16 {v(S0)}, {s(sONES)}, {v(HP+k)}"), V(f"v_dot2c_f32_bf16 {v(S0+1)}, {v(HP+k)}, {v(HP+k)}")]
    o += [("bg", 1)] + [V(f"v_mov_b32 {v(S0+2+k)}, {v(S0+k)}") for k in range(2)]
    o += [V(f"v_permlane32_swap_b32 {v(S0+k)}, {v(S0+2+k)}") for k in range(2)]
    o += [V(f"v_pk_add_f32 {v(S0,2)}, {v(S0,2)}, {v(S0+2,2)}")]
    run(o, bg=False)
    return n1, [WV("hst"), S("s_mov_b32 exec_hi, 0"),
                ("vm", f"buffer_store_dwordx2 {v(S0,2)}, {v(6)}, {s(SWS,4)}, {s(sSTW)} offen sc1", "sst"), S("s_mov_b64 exec, -1")]


AC0, AC1 = 32, 64
CS = 96
BRG = 128
SC = 152
ET = 160
RES = 168
SP = 176
vL8c = 6
vHR = 7
vDO = 2
vDX, vDY = 10, 16
vRS = 14
vTAG, vHF, vGO = 24, 25, 26
TLO = {0: HI, 1: HI + 32*K, 2: 28*K, 3: 0}
DWE = [256 + 224, 256 + 240] + [SP + 16*i for i in range(5)]
DW = DWE + [256 + 112 + 16*i for i in range(7)]
DSL = {0: 64, 1: 80, 2: 96, 3: 112, 4: 64, 5: 80, 6: 96, 7: 128, 8: 112, 9: 64, 10: 80, 11: 32, 12: 48, 13: 96}


sHT, sDT, sGT, sSO = sM + 1, sM + 8, sG2, sG2 + 7


def u_dw(m):
    return [unit([S(f"s_add_u32 m0, {s(sW4K)}, {DSL[m]*K}"), S(f"s_add_u32 {s(sB0)}, {s(sDT+(m >> 1))}, {(m & 1)*32*896}"),
                  DMA(vDO, SWD, s(sB0), 0, f"dw{m}")], OPT.get("pd", 9))] + \
        [unit([DMA(vDO+i, SWD, s(sB0), 1024*i, f"dw{m}")], OPT.get("pd", 9)) for i in range(1, 4)]


def dw_read(m):
    ad, o_ = (vDX, (DSL[m]-32)*K) if DSL[m] < 96 else (vDY, (DSL[m]-96)*K)
    return [WV(f"dw{m}")] + [TR(DW[m] + nt*4 + rd*2, ad + nt, o_ + rd*1024, f"dr{m}") for nt in range(4) for rd in range(2)]


def dw_next(wait, ms):
    return [WL(wait), FN(lambda: [BG.extend(u_dw(m)) for m in ms])]


def hh_store(acc, t, rt):
    return ("vm", f"buffer_store_dwordx4 {v(acc+16*t,4)}, {v(vL16)}, {s(SWS,4)}, {s(sT3)} offen{off(1024*t)} sc1", f"gst{rt}")


def hf_set(stage, rt):
    return [WV(f"gst{rt}"), S(f"s_add_u32 {s(sT2)}, {s(sHF)}, {stage*131072}"),
            FN(lambda: (A("s_mov_b32 exec_hi, 0"), E(("vm", f"buffer_store_dword {v(vTAG)}, {v(vL8c)}, {s(SWS,4)}, {s(sT2)} offen sc1", "hf")), A("s_mov_b64 exec, -1")), 8)]


def epilogue_ops(acc, rt):
    c = SC + 4*(rt & 1)
    mean, k1, k2, vp = c, c + 1, c + 2, c + 3
    ops = [S(f"s_add_u32 {s(sT3)}, {s(sGW)}, {rt*112*K}")]
    for t in range(2):
        for half in range(2):
            idx = [4*half + i for i in range(4)]
            g = [acc + 16*t + i for i in idx]
            u = [acc + 16*t + 8 + i for i in idx]
            cg = [CS + 16*t + i for i in idx]
            cu = [CS + 16*t + 8 + i for i in idx]
            T = [ET + 4*half + i for i in range(4)]
            ops += [V(f"v_fmac_f32 {v(g[i])}, {v(mean)}, {v(cg[i])}") for i in range(4)]
            ops += [V(f"v_mul_f32 {v(T[i])}, {v(g[i])}, {v(g[i])}") for i in range(4)]
            ops += [V(f"v_fma_f32 {v(T[i])}, {v(T[i])}, {v(k2)}, {v(k1)}") for i in range(4)]
            ops += [V(f"v_mul_f32 {v(T[i])}, {v(T[i])}, {v(g[i])}") for i in range(4)]
            for i in range(4):
                ops += [V(f"v_exp_f32 {v(T[i])}, {v(T[i])}"), V(f"v_fmac_f32 {v(u[i])}, {v(mean)}, {v(cu[i])}")]
            ops += [V(f"v_fma_f32 {v(T[i])}, {v(T[i])}, {v(vp)}, {v(vp)}") for i in range(4)]
            for i in range(4):
                ops += [V(f"v_rcp_f32 {v(T[i])}, {v(T[i])}"), V(f"v_mul_f32 {v(u[i])}, {v(u[i])}, {v(g[i])}")]
            ops += [V(f"v_mul_f32 {v(u[i])}, {v(u[i])}, {v(T[i])}") for i in range(4)]
            ops += [V(f"v_cvt_pk_bf16_f32 {v(acc+16*t+2*half+i)}, {v(u[2*i])}, {v(u[2*i+1])}") for i in range(2)]
        ops.append(hh_store(acc, t, rt))
    return ops


def epilogue_pk(acc, rt):
    c = SC + 4*(rt & 1)
    c01, c23 = v(c, 2), v(c + 2, 2)
    ops = [S(f"s_add_u32 {s(sT3)}, {s(sGW)}, {rt*112*K}")]
    N = None
    for t in range(2):
        g = [v(acc + 16*t + 2*i, 2) for i in range(4)]
        u = [v(acc + 16*t + 8 + 2*i, 2) for i in range(4)]
        cg = [v(CS + 16*t + 2*i, 2) for i in range(4)]
        cu = [v(CS + 16*t + 8 + 2*i, 2) for i in range(4)]
        T = [v(ET + 2*i, 2) for i in range(4)]
        ops += [pkop("v_pk_fma_f32", g[i], [(c01, 0), (cg[i], N), (g[i], N)]) for i in range(4)]
        ops += [pkop("v_pk_mul_f32", T[i], [(g[i], N), (g[i], N)]) for i in range(4)]
        ops += [pkop("v_pk_fma_f32", T[i], [(T[i], N), (c23, 0), (c01, 1)]) for i in range(4)]
        ops += [pkop("v_pk_mul_f32", T[i], [(T[i], N), (g[i], N)]) for i in range(4)]
        ops += [V(f"v_exp_f32 {v(ET+i)}, {v(ET+i)}") for i in range(8)]
        ops += [pkop("v_pk_fma_f32", u[i], [(c01, 0), (cu[i], N), (u[i], N)]) for i in range(4)]
        ops += [pkop("v_pk_fma_f32", T[i], [(T[i], N), (c23, 1), (c23, 1)]) for i in range(4)]
        ops += [V(f"v_rcp_f32 {v(ET+i)}, {v(ET+i)}") for i in range(8)]
        ops += [pkop("v_pk_mul_f32", u[i], [(u[i], N), (g[i], N)]) for i in range(4)]
        ops += [pkop("v_pk_mul_f32", u[i], [(u[i], N), (T[i], N)]) for i in range(4)]
        ops += [V(f"v_cvt_pk_bf16_f32 {v(acc+16*t+i)}, {v(acc+16*t+8+2*i)}, {v(acc+16*t+9+2*i)}") for i in range(4)]
        ops.append(hh_store(acc, t, rt))
    return ops


RING_D = [256 + 4*i for i in range(28)]
NRD = len(RING_D)


def d_load(n):
    o = [V(f"v_add_u32 {v(vGO)}, {112*K}, {v(vGO)}")] if (n % 14 == 0 and n) else []
    o.append(("vm", f"buffer_load_dwordx4 {r(RING_D[n % NRD],4)}, {v(vGO)}, {s(SWS,4)}, {s(sGT + (n % 14)//2)} offen{off((n % 2)*2048)} sc1", f"d{n}"))
    return o


def phaseC(n1, ststore):
    def addrh():
        A(f"v_add_u32 {v(vHR)}, {HI}, {v(vL16)}")
        A(f"v_add_u32 {v(vHR+1)}, {s(sW7K)}, {v(vHR)}")
        A(f"v_add_u32 {v(vHR+2)}, {s(sW7K)}, {v(vL16)}")
        A(f"s_mul_i32 {s(sT0)}, {s(sRB)}, {112*K}")
        A(f"s_add_u32 {s(sT0)}, {s(sT0)}, {HH_}")
        A(f"s_lshl_b32 {s(sT1)}, {s(sROT)}, 10")
        A(f"s_add_u32 {s(sT1)}, {s(sT1)}, {s(sW7K)}")
        for c in range(7):
            A(f"s_add_u32 {s(sT2)}, {s(sT1)}, {c*K}")
            A(f"s_sub_u32 {s(sT3)}, {s(sT2)}, {28*K}")
            A(f"s_cselect_b32 {s(sT2)}, {s(sT2)}, {s(sT3)}")
            A(f"s_add_u32 {s(sHT+c)}, {s(sT2)}, {s(sT0)}")

    def addrd():
        A(f"s_mul_i32 {s(sDWK)}, {s(sW)}, {448*896}")
        A(f"s_lshl_b32 {s(sT0)}, {s(sRB)}, 4")
        A(f"s_add_u32 {s(sT0)}, {s(sT0)}, {s(sW)}")
        A(f"s_mul_i32 {s(sT0)}, {s(sT0)}, {28*K}")
        A(f"s_lshl_b32 {s(sT1)}, {s(sP)}, 8")
        A(f"s_add_u32 {s(sT0)}, {s(sT0)}, {s(sT1)}")
        A(f"s_add_u32 {s(sT0)}, {s(sT0)}, {GG}")
        if OPT["rot"] == 2:
            A(f"s_lshr_b32 {s(sT1)}, {s(sRB)}, 2")
            A(f"s_lshl1_add_u32 {s(sT1)}, {s(sT1)}, {s(sP)}")
        elif OPT["rot"]:
            A(f"s_and_b32 {s(sT1)}, {s(sRB)}, 3")
            A(f"s_lshl1_add_u32 {s(sT1)}, {s(sT1)}, {s(sCB)}")
            A(f"s_sub_u32 {s(sT2)}, {s(sT1)}, 7")
            A(f"s_cselect_b32 {s(sT1)}, {s(sT1)}, {s(sT2)}")
            A(f"s_lshr_b32 {s(sT2)}, {s(sRB)}, 3")
            A(f"s_add_u32 {s(sT1)}, {s(sT1)}, {s(sT2)}")
        else:
            A(f"s_mov_b32 {s(sT1)}, 0")
        for j in range(7):
            if j:
                A(f"s_add_u32 {s(sT1)}, {s(sT1)}, 1")
            A(f"s_cmp_eq_u32 {s(sT1)}, 7")
            A(f"s_cselect_b32 {s(sT1)}, 0, {s(sT1)}")
            A(f"s_mul_i32 {s(sDT+j)}, {s(sT1)}, {64*896}")
            A(f"s_add_u32 {s(sDT+j)}, {s(sDT+j)}, {s(sDWK)}")
            A(f"s_lshl_b32 {s(sT2)}, {s(sT1)}, 12")
            A(f"s_add_u32 {s(sGT+j)}, {s(sT2)}, {s(sT0)}")
        A(f"v_lshrrev_b32 {v(vDO)}, 3, {v(vLANE)}")
        A(f"v_mul_u32_u24 {v(vDO)}, 896, {v(vDO)}")
        A(f"v_and_b32 {v(vDO+1)}, 0x70, {v(vL16)}")
        A(f"v_lshrrev_b32 {v(vDO+2)}, 4, {v(vLANE)}")
        A(f"v_lshlrev_b32 {v(vDO+2)}, 5, {v(vDO+2)}")
        A(f"v_xor_b32 {v(vDO+1)}, {v(vDO+1)}, {v(vDO+2)}")
        A(f"s_lshl_b32 {s(sT0)}, {s(sCB)}, 7")
        A(f"v_add3_u32 {v(vDO)}, {v(vDO)}, {v(vDO+1)}, {s(sT0)}")
        for i in range(1, 4):
            A(f"v_add_u32 {v(vDO+i)}, {i*(7168-1024)}, {v(vDO)}")
    P2 = OPT.get("p2", 18)
    NW = OPT.get("nw", 21)
    NC = OPT.get("nc", 25)
    E(WL("cr10"))
    BG.extend([u_cw(ks, P2) for ks in range(n1 + 8, 19)])
    weave(cw_cs(0, 11) + cw_read(11, 13) + [WL("cr12"), FN(lambda: BG.extend([u_cw(ks, P2) for ks in range(19, NW)]))] + cw_cs(11, 13),
          [dict(ops=cap(addrh), g0=0, g1=20)], small=True)
    run(ststore, bg=False)
    print("cw units left in W3:", len(BG)) if OPT["rep"] else None
    bg_force()
    stamp(15)
    HB = {0: AC0, 1: AC1}
    HV = {0: vL16, 1: 28, 2: 29, 3: 28}
    STR = SP + 64

    def hload(rt, c):
        return f"buffer_load_dwordx4 {v(HB[rt]+4*c,4)}, {v(HV[rt])}, {s(SWS,4)}, {s(sHT+c)} offen sc1"

    def hwrite(rt, c):
        return WR128(vHR + (1 if rt < 2 else 2), HB[rt] + 4*c, TLO[rt] - (HI if rt < 2 else 0) + c*1024, "hw")
    stl = [f"buffer_load_dwordx2 {v(STR+2*i,2)}, {v(vL8c)}, {s(SWS,4)}, {s(sSO)} offen{off(512*i)} sc1" for i in range(7)]
    G0 = [dict(loads=[hload(0, c)], regs=list(range(HB[0]+4*c, HB[0]+4*c+4))) for c in range(7)]
    run(gather_loads("g3", G0), bg=False)
    run(cw_read(13, 17) + [V(f"v_add_u32 {v(28)}, {28*K}, {v(vL16)}"), V(f"v_add_u32 {v(29)}, {56*K}, {v(vL16)}"), WL("cr16")], bg=False)
    BG.extend([u_cw(ks) for ks in range(NW, NC)])
    bg_now()
    run(cw_cs(13, 17) + cw_read(17, NW) + cw_cs(17, NW))
    bg_force()
    top, end = refresh("g3", G0)
    o = top
    for c in range(7):
        o += [WV(f"g3{c}"), hwrite(0, c)] + [V(l) for l in max_lines(G0[c]["regs"], vT + 1, c == 0)]
    o += [V(f"v_cmp_eq_u32 vcc, -1, {v(vT+1)}")] + end + [WL("all"), BAR]
    run(o, bg=False)
    stamp(16)

    sc_read = lambda rt: [("lds", f"ds_read_b128 {v(SC+4*(rt & 1),4)}, {v(vT+2)} offset:{rt*512}", f"sc{rt}")]
    res_read = lambda rt: [("lds", f"ds_read_b64 {v(RES+2*rt,2)}, {v(vRS)}{off(TLO[rt] - (HI if rt < 2 else 0))}", "rs")]

    def addr0():
        A(f"s_lshl_b32 {s(sT0)}, {s(sRB)}, 2")
        A(f"s_add_u32 {s(sT0)}, {s(sT0)}, {s(sW)}")
        A(f"s_mul_i32 {s(sT0)}, {s(sT0)}, {14*256}")
        A(f"s_add_u32 {s(sSO)}, {s(sT0)}, {ST}")
        A(f"v_and_b32 {v(vT+2)}, 31, {v(vLANE)}")
        A(f"s_lshl_b32 {s(sT0)}, {s(sW)}, 8")
        A(f"s_add_u32 {s(sT0)}, {s(sT0)}, {MISC}")
        A(f"v_lshl_add_u32 {v(vT+1)}, {v(vT+2)}, 2, {s(sT0)}")
        A(f"v_lshlrev_b32 {v(vT+2)}, 4, {v(vT+2)}")
        A(f"v_add_u32 {v(vT+2)}, {MISC + 2048}, {v(vT+2)}")
        A(f"v_lshl_add_u32 {v(vT+3)}, {s(sW)}, 9, {v(vT+2)}")
        A(f"v_bfe_u32 {v(vRS)}, {v(vLANE)}, 2, 2")
        A(f"s_lshl_b32 {s(sT0)}, {s(sCB)}, 2")
        A(f"s_add_u32 {s(sT0)}, {s(sT0)}, 28")
        A(f"s_sub_u32 {s(sT0)}, {s(sT0)}, {s(sROT)}")
        A(f"v_add_u32 {v(vRS)}, {s(sT0)}, {v(vRS)}")
        A(f"v_subrev_u32 {v(vDX)}, 28, {v(vRS)}")
        A(f"v_min_u32 {v(vRS)}, {v(vRS)}, {v(vDX)}")
        A(f"v_lshlrev_b32 {v(vRS)}, 10, {v(vRS)}")
        A(f"v_and_b32 {v(vDX)}, 1, {v(vLANE)}")
        A(f"v_lshl_add_u32 {v(vRS)}, {v(vDX)}, 9, {v(vRS)}")
        A(f"v_and_b32 {v(vDX)}, 0x30, {v(vLANE)}")
        A(f"v_add_u32 {v(vRS)}, {v(vDX)}, {v(vRS)}")
        A(f"v_and_b32 {v(vDX)}, 2, {v(vLANE)}")
        A(f"v_lshl_add_u32 {v(vRS)}, {v(vDX)}, 2, {v(vRS)}")
        A(f"s_lshl2_add_u32 {s(sT0)}, {s(sP)}, {s(sW)}")
        A(f"s_lshl_b32 {s(sT0)}, {s(sT0)}, 6")
        A(f"s_add_u32 {s(sT0)}, {s(sT0)}, {HI}")
        A(f"v_add_u32 {v(vRS)}, {s(sT0)}, {v(vRS)}")
        A(f"v_bfe_u32 {v(vDX)}, {v(vLANE)}, 2, 3")
        A(f"v_lshrrev_b32 {v(vDX+1)}, 5, {v(vLANE)}")
        A(f"v_lshl_add_u32 {v(vDX)}, {v(vDX+1)}, 4, {v(vDX)}")
        A(f"v_lshlrev_b32 {v(vDX)}, 7, {v(vDX)}")
        A(f"v_bfe_u32 {v(vDX+1)}, {v(vLANE)}, 3, 2")
        A(f"v_lshl_add_u32 {v(vDX)}, {v(vDX+1)}, 5, {v(vDX)}")
        A(f"v_and_b32 {v(vDX+1)}, 3, {v(vLANE)}")
        A(f"v_lshl_add_u32 {v(vDX)}, {v(vDX+1)}, 3, {v(vDX)}")
        A(f"s_add_u32 {s(sT0)}, {s(sW4K)}, {32*K}")
        A(f"v_add_u32 {v(vDX)}, {s(sT0)}, {v(vDX)}")
        for i in range(1, 4):
            A(f"v_xor_b32 {v(vDX+i)}, {32*i}, {v(vDX)}")
        for i in range(4):
            A(f"v_add_u32 {v(vDY+i)}, 0x10000, {v(vDX+i)}")
    sa = cap(addr0) + cap(addrd) + res_read(0)
    sc_ = [("lds", f"ds_write_b32 {v(vT+1)}, {r(CSA+4*t)} offset:{128*t}", "cw_") for t in range(2)]
    sc_ += [RD128(CS + 16*t + 4*q, vBC, 128*t + 32*q, "csb") for t in range(2) for q in range(4)]
    sb = check_ops("stl", list(range(STR, STR+14)), stl)
    for a_, b_ in ((0, 8), (2, 10), (4, 12), (0, 4), (2, 6), (0, 2)):
        sb += [V(f"v_add_f32 {v(STR+a_+k)}, {v(STR+a_+k)}, {v(STR+b_+k)}") for k in range(2)]
    sb += [V(f"v_mov_b32 {v(STR+2+k)}, {v(STR+k)}") for k in range(2)]
    sb += [V(f"v_permlane32_swap_b32 {v(STR+k)}, {v(STR+2+k)}") for k in range(2)]
    sb += [V(f"v_add_f32 {v(STR+k)}, {v(STR+k)}, {v(STR+2+k)}") for k in range(2)]
    C1 = -2.0 * 0.7978845608028654 * 1.4426950408889634
    d = STR + 4
    sb += [V(f"v_mul_f32 {v(d)}, 0xbb124925, {v(STR)}"), V(f"v_mul_f32 {v(d+3)}, 0x3b124925, {v(STR+1)}"),
           V(f"v_fma_f32 {v(d+3)}, -{v(d)}, {v(d)}, {v(d+3)}"), V(f"v_max_f32 {v(d+3)}, 0, {v(d+3)}"),
           V(f"v_add_f32 {v(d+3)}, 0x3727c5ac, {v(d+3)}"), V(f"v_rsq_f32 {v(d+1)}, {v(d+3)}"),
           V(f"v_mul_f32 {v(d+2)}, {v(d+1)}, {v(d+1)}"), V(f"v_mul_f32 {v(d+2)}, {v(d+2)}, {v(d+1)}"),
           V(f"v_mul_f32 {v(d+2)}, {fh(C1*0.044715)}, {v(d+2)}"), V(f"v_mul_f32 {v(d+1)}, {fh(C1)}, {v(d+1)}"),
           WR128(vT + 3, d, 0, "hw")]
    def addr3():
        A(f"s_lshl_b32 {s(sT0)}, {s(sRB)}, 13")
        A(f"s_add_u32 {s(sFL)}, {s(sT0)}, {HFL}")
        A(f"s_lshl2_add_u32 {s(sT0)}, {s(sFB)}, {s(sW)}")
        A(f"s_lshl_b32 {s(sT0)}, {s(sT0)}, 7")
        A(f"s_add_u32 {s(sHF)}, {s(sFL)}, {s(sT0)}")
        A(f"s_mul_i32 {s(sT0)}, {s(sW)}, 14")
        A(f"v_min_u32 {v(vHF)}, 13, {v(vLANE)}")
        A(f"v_add_lshl_u32 {v(vHF)}, {v(vHF)}, {s(sT0)}, 7")
        A(f"v_mov_b32 {v(vTAG)}, {s(sTAG)}")
        A(f"v_lshrrev_b32 {v(vGO)}, 4, {v(vLANE)}")
        A(f"v_and_b32 {v(vGO+1)}, 0xf0, {v(vL16)}")
        A(f"v_lshl_add_u32 {v(vGO)}, {v(vGO)}, 9, {v(vGO+1)}")
        A(f"v_lshlrev_b32 {v(vL8c)}, 2, {v(vLANE)}")
        for j, sr_ in enumerate((sHW, sKVPW, sOW)):
            A(f"s_add_u32 {s(sr_)}, {s(sFL)}, {131072*(j+1)}")
    f0l, f0c = flag_check("f0", vT + 3, vHF, s(sFL))
    f1l, f1c = flag_check("f1", vT + 3, vHF, s(sHW))
    PC = OPT.get("pc", 11)
    dun = lambda a_, b_: [unit(d_load(n), PC) for n in range(a_, b_)]
    PH = OPT.get("ph", 9)
    hdma = lambda rt: [unit([S(f"s_add_u32 m0, {s(sW7K)}, {TLO[rt] + c*1024}"), S("s_nop 0"),
                             ("vm", f"buffer_load_dwordx4 {v(HV[rt])}, {s(SWS,4)}, {s(sHT+c)} offen sc1 lds", f"h{rt}")], PH) for c in range(7)]
    ADD = lambda us: FN(lambda: BG.extend(us))
    BG.extend([unit([("vm", hload(1, c), "h1")], 8) for c in range(7)] + [u_cw(ks) for ks in range(NC, 28)] +
              [unit([("vm", x, "stl") for x in stl[i:i+2]], 8) for i in range(0, 7, 2)])

    def rd(N):
        rt, n = divmod(N, 28)
        return RD128(BRG + (N % 6)*4, vHR if rt < 2 else vL16, TLO[rt] - (HI if rt < 2 else 0) + n*1024, f"b{N}")
    run([rd(N) for N in range(4)], bg=False)
    bg_now()
    after_bar = {0: [V(f"v_add_u32 {v(28)}, {84*K}, {v(vL16)}"), ADD(hdma(2) + u_dw(2) + u_dw(3))], 1: [ADD(hdma(3) + u_dw(7))], 2: [ADD(u_dw(11) + u_dw(12))]}
    main = []
    for N in range(112):
        rt, n = divmod(N, 28)
        acc = AC0 if rt % 2 == 0 else AC1
        if n == 25 and rt < 3:
            main += ([WV(f"h{rt+1}")] if rt else []) + [WL("all"), BAR] + after_bar[rt]
        elif N == 0:
            main.append(WL("b0"))
        elif N % 2 == 1:
            main.append(WL(f"b{min(N+1, 111)}"))
        if N == 28:
            main += cw_cs(NW, 28)
        if n == 0 and rt:
            main.append(ST_(16 + rt))
        main.append(M32(acc, CW + (n*2)*4, BRG + (N % 6)*4, n == 0))
        if N + 4 < 112 and n != 24:
            if n == 25:
                main.append(rd(N + 3))
            main.append(rd(N + 4))
        main.append(M32(acc + 16, CW + (n*2+1)*4, BRG + (N % 6)*4, n == 0))
    D_ = lambda ops, g0, g1, gr=False: dict(ops=ops, g0=g0, g1=g1, greedy=gr)
    streams = [D_(sa + [ADD(u_dw(0) + u_dw(1))], 0, 26, True), D_(cw_read(NW, NC), 10, 20),
               D_(check_ops("h1", list(range(HB[1], HB[1]+28)), [hload(1, c) for c in range(7)], vT + 1 if False else ET), 30, 35)]
    streams += [D_([hwrite(1, c)], 35 + 2*c, 36 + 2*c) for c in range(7)]
    streams += [D_(sb, 42, 49)] + [D_(cw_read(ks, ks+1) + [WL(f"cr{ks}")], min(2*ks - 6, 44), min(2*ks - 1, 49)) for ks in range(NC, 28)]
    streams += [D_(sc_read(0) + res_read(1) + [V(f"v_subrev_u32 {v(vRS)}, {HI}, {v(vRS)}")], 51, 54),
               D_(sc_ + [WL("csb"), WL("sc0")] + epilogue_ops(AC0, 0), 58, 111, True),
               D_(dw_read(0) + dw_read(1) + dw_next("dr1", (4, 5)), 76, 86),
               D_(sc_read(1) + res_read(2), 107, 110),
               D_(dw_read(2) + dw_read(3) + dw_next("dr3", (6, 8)), 112, 124), D_(dw_read(4) + dw_read(5) + dw_next("dr5", (9, 10)), 132, 144),
               D_([WL("sc1")] + epilogue_ops(AC1, 1), 114, 167, True),
               D_(sc_read(2) + res_read(3), 163, 166), D_(dw_read(6) + dw_next("dr6", (13,)), 166, 171),
               D_(cap(addr3), 86, 104), D_(hf_set(0, 0), 130, 131), D_([f0l], 158, 159), D_(f0c + [ADD(dun(0, 14))], 172, 174),
               D_(hf_set(1, 1), 168 + OPT.get("s1", 12), 169 + OPT.get("s1", 12)),
               D_([WL("sc2")] + epilogue_ops(AC0, 2) + sc_read(3), 170, 216, True),
               D_([f1l], 168 + OPT.get("c1", 44), 169 + OPT.get("c1", 44))]
    streams += [D_(dw_read(m), 168 + 32 + 4*(m-7), 168 + 36 + 4*(m-7)) for m in range(7, 13)]
    weave(main, streams, report=REP("C"))
    bg_force()
    stamp(20)
    run(f1c, bg=False)
    NPRE = 14 + OPT.get("npre", 8)
    BG.extend([unit(d_load(n) + d_load(n+1), 20) for n in range(14, NPRE, 2)])
    bg_now()
    ep = epilogue_pk(AC1, 3)
    run([WL("sc3")] + ep[:20] + hf_set(2, 2) + ep[20:])
    bg_force()
    stamp(21)
    return NPRE


def phaseD(NPRE):
    ACD = [32, 48]
    WA, RA, vOO = 64, 66, 67
    X, TT = 68, 72

    def addr():
        A(f"v_and_b32 {v(WA)}, 15, {v(vLANE)}")
        A(f"v_lshrrev_b32 {v(RA)}, 4, {v(vLANE)}")
        A(f"v_mul_u32_u24 {v(vOO)}, 896, {v(RA)}")
        A(f"v_lshl_add_u32 {v(vOO)}, {v(WA)}, 3, {v(vOO)}")
        A(f"v_and_b32 {v(X)}, 7, {v(vLANE)}")
        A(f"v_xor_b32 {v(X)}, {v(X)}, {v(RA)}")
        A(f"v_lshlrev_b32 {v(X)}, 4, {v(X)}")
        A(f"v_lshl_add_u32 {v(RA)}, {s(sW)}, 2, {v(RA)}")
        A(f"v_and_b32 {v(X+1)}, 7, {v(RA)}")
        A(f"v_xor_b32 {v(X+1)}, {v(X+1)}, {v(WA)}")
        A(f"v_lshlrev_b32 {v(X+1)}, 4, {v(X+1)}")
        A(f"v_lshl_add_u32 {v(RA)}, {v(RA)}, 8, {v(X+1)}")
        A(f"v_lshl_add_u32 {v(WA)}, {v(WA)}, 8, {v(X)}")
        A(f"v_add_u32 {v(WA)}, {s(sW4K)}, {v(WA)}")
        A(f"v_xor_b32 {v(WA+1)}, 64, {v(WA)}")
        A(f"s_lshl_b32 {s(sT0)}, {s(sRB)}, 3")
        A(f"s_add_u32 {s(sT0)}, {s(sT0)}, {s(sP)}")
        A(f"s_lshl_b32 {s(sT0)}, {s(sT0)}, 2")
        A(f"s_add_u32 {s(sT0)}, {s(sT0)}, {s(sW)}")
        A(f"s_mul_i32 {s(sOUTW)}, {s(sT0)}, {4*896}")
        A(f"s_lshl_b32 {s(sT0)}, {s(sCB)}, 7")
        A(f"s_add_u32 {s(sOUTW)}, {s(sOUTW)}, {s(sT0)}")

    def reduce_ops(rt, pk):
        buf = (rt & 1) * 16 * K
        acc = ACD[rt & 1]
        o = [WR128(WA + (nt & 1), acc + 4*nt, buf + 128*(nt >> 1), "dwr") for nt in range(4)]
        o += [V(f"v_lshlrev_b32 {v(X)}, 16, {v(RES+2*rt)}"), V(f"v_and_b32 {v(X+1)}, 0xffff0000, {v(RES+2*rt)}"),
              V(f"v_lshlrev_b32 {v(X+2)}, 16, {v(RES+2*rt+1)}"), V(f"v_and_b32 {v(X+3)}, 0xffff0000, {v(RES+2*rt+1)}"),
              S(f"s_add_u32 {s(sT1)}, {s(sOUTW)}, {rt*32*896}")]
        o += [WL("dwr"), BAR]
        o += [RD128(TT + 4*w, RA, buf + w*4096, f"rr{w}") for w in range(4)]
        if pk:
            for w in range(4):
                o += [WL(f"rr{w}")] + [V(f"v_pk_add_f32 {v(X+2*k,2)}, {v(X+2*k,2)}, {v(TT+4*w+2*k,2)}") for k in range(2)]
        else:
            o += [FN(lambda: None, 40), WL("rr3")]
            o += [V(f"v_add_f32 {v(X+k)}, {v(X+k)}, {v(TT+4*w+k)}") for w in range(4) for k in range(4)]
        o += [V(f"v_cvt_pk_bf16_f32 {v(X+k)}, {v(X+2*k)}, {v(X+2*k+1)}") for k in range(2)]
        o += [("vm", f"buffer_store_dwordx2 {v(X,2)}, {v(vOO)}, {s(SOUT,4)}, {s(sT1)} offen", "out")]
        return o
    f2l, f2c = flag_check("f2", vT + 3, vHF, s(sKVPW))
    f3l, f3c = flag_check("f3", vT + 3, vHF, s(sOW))
    T2, T3, LEAD = OPT.get("t2", 15), OPT.get("t3", 30), OPT.get("lead", 8)
    when = {}
    for n in range(NPRE, 28):
        when[n - NPRE] = n
    for i in range(14):
        when[T2 + i] = 28 + i
        when[T3 + i] = 42 + i
    main = []
    for n in range(56):
        rt, m = divmod(n, 14)
        b = RING_D[n % NRD]
        if n % 14 == 0 and n:
            main.append(ST_(21 + n//14))
        if n == T2:
            main += f2c
        if n == T3:
            main += f3c
        if n == 7:
            main.append(WL("dr13"))
        if n == OPT.get("s3", 9):
            main += hf_set(3, 3)
        ld = d_load(when[n]) if n in when else []
        main += [WV(f"d{n}")] + ld[:-1]
        main.append(M16(ACD[rt & 1], DW[m], b, m == 0))
        main += ld[-1:]
        main.append(M16(ACD[rt & 1] + 4, DW[m] + 4, b, m == 0))
        if n + LEAD == T2:
            main.append(f2l)
        if n + LEAD == T3:
            main.append(f3l)
        main += [M16(ACD[rt & 1] + 4*nt, DW[m] + 4*nt, b, m == 0) for nt in (2, 3)]
    streams = [dict(ops=dw_read(13), g0=0, g1=12), dict(ops=cap(addr) + [BAR], g0=12, g1=44)]
    for rt in range(3):
        streams.append(dict(ops=reduce_ops(rt, False), g0=56*(rt+1) + 4, g1=56*(rt+1) + 48))
    weave(main, streams, small=True, report=REP("D"))
    stamp(25)
    run(reduce_ops(3, True), bg=False)
    stamp(26)
    A(f"s_or_b32 {s(sT0)}, s2, {s(sW)}")
    A("s_cbranch_scc1 L_fin")
    A(f"s_mov_b32 {s(sT0)}, {EPO}")
    A("s_mov_b64 exec, 1")
    A(f"buffer_store_dword {v(vTAG)}, off, {s(SWS,4)}, {s(sT0)} sc1")
    A("s_mov_b64 exec, -1")


def finish():
    if OPT["ts"]:
        stamp(63)
        A(f"v_writelane_b32 {v(vTS)}, {s(sDBG)}, 62")
        A(f"s_lshl_b32 {s(sT0)}, s2, 2")
        A(f"s_add_u32 {s(sT0)}, {s(sT0)}, {s(sW)}")
        A(f"s_lshl_b32 {s(sT0)}, {s(sT0)}, 8")
        A(f"s_add_u32 {s(sT0)}, {s(sT0)}, {TSB}")
        A(f"v_lshlrev_b32 {v(vT)}, 2, {v(vLANE)}")
        A(f"buffer_store_dword {v(vTS)}, {v(vT)}, {s(SWS,4)}, {s(sT0)} offen")
    A("s_waitcnt vmcnt(0) lgkmcnt(0)")
    if OPT["hold"] >= 0:
        A(f"s_add_u32 {s(sTS)}, {s(sTS)}, 5000")
        A("L_hold:")
        A("s_memrealtime s[4:5]")
        A("s_waitcnt lgkmcnt(0)")
        A(f"s_sub_u32 s4, s4, {s(sTS)}")
        A("s_cmp_lt_i32 s4, 0")
        A("s_cbranch_scc1 L_hold")
    A("s_endpgm")


def main():
    prologue()
    phaseA()
    phaseQ()
    npre = phaseC(*phaseB())
    phaseD(npre)
    A("L_fin:")
    finish()
    for blk in OOL:
        for l in blk:
            A(l)
    A("L_exit:")
    A("s_endpgm")
    lines, nn = fix_hazards(A.lines, verbose=bool(OPT.get("v")))
    hdr = open("cdna_kernels/" + NAME + ".s.ref").read().split("; Override launch")[0]
    out = hdr + f"; @launch grid=(256,1,1) block=(256,1,1) lds={LDS_BYTES}\n"
    out += '.amdgcn_target "amdgcn-amd-amdhsa--gfx950"\n.text\n'
    out += f".globl {NAME}_kernel\n.p2align 8\n.type {NAME}_kernel,@function\n{NAME}_kernel:\n"
    out += "\n".join(("" if l.endswith(":") else "    ") + l for l in lines) + "\n"
    out += f"L_code_end:\n.set CODE_BYTES, L_code_end - {NAME}_kernel - 128\n"
    out += f'.section .rodata,"a"\n.p2align 6\n.amdhsa_kernel {NAME}_kernel\n'
    out += "  .amdhsa_next_free_vgpr 512\n  .amdhsa_next_free_sgpr 102\n  .amdhsa_accum_offset 256\n"
    out += "  .amdhsa_group_segment_fixed_size 0\n  .amdhsa_kernarg_size 80\n  .amdhsa_user_sgpr_count 2\n"
    out += "  .amdhsa_user_sgpr_kernarg_segment_ptr 1\n  .amdhsa_system_sgpr_workgroup_id_x 1\n"
    out += "  .amdhsa_float_denorm_mode_32 3\n.end_amdhsa_kernel\n"
    open(sys.argv[1], "w").write(out)
    print(f"wrote {sys.argv[1]}: {len(lines)} lines, {nn} nop states inserted")


main()
```

```python
from collections import deque
import re
from asmlib import *

A = Asm()
OOL = []

class Clock:
    t = 0
    mf = 0
    bgn = 0

CK = Clock()
BG = deque()
SEEN, WAITED, SEENL = set(), set(), set()
V = lambda t: ("v", t)
S = lambda t: ("s", t)
BAR = ("bar",)
WV = lambda t: ("wvm", t)
WL = lambda t: ("wlg", t)
FN = lambda f, c=0: ("fn", f, c)

def opcost(op):
    k = op[0]
    if k == "v":
        t = op[1]
        if t.startswith(("v_exp", "v_rcp", "v_rsq")): return 8
        return 5 if t.startswith(("v_fma_", "v_pk", "v_cvt_pk", "v_max3", "v_accvgpr", "v_lshl_add", "v_add3", "v_bfe", "v_perm", "v_and_or")) else 4
    if k == "fn": return op[2]
    if k == "s": return 4 * (op[1].count("\n") + 1)
    if k == "lds" and op[1].startswith("ds_write_b128"): return 16
    return 4

VT = []
import os
TRACE = os.environ.get('TRACE')
DROP = []
def E(op):
    k = op[0]
    if k == "vm" and any(re.fullmatch(d[0] + r"\d*", op[2]) and d[1] in op[1] for d in DROP):
        SEEN.add(op[2]); return
    if k == "M" or k == "m":
        A(op[1])
        t = max(CK.t, CK.mf)
        CK.mf = t + (32 if k == "M" else 16)
        CK.t = t + 8
        return
    n0 = len(A.lines)
    if k in ("s", "v"): A(op[1])
    elif k == "vm":
        if op[2] in WAITED: print("WARNING: vm op issued after its tag was waited:", op)
        SEEN.add(op[2]); A.vmem(op[1], op[2]); VT.append((op[2], CK.t))
    elif k == "lds":
        SEENL.add(op[2]); A.lds(op[1], op[2])
    elif k == "wvm":
        tags = [op[1]] if isinstance(op[1], str) else op[1]
        while any(o[0] == "vm" and o[2] in tags for u in BG for o in u["ops"]):
            print("note: forcing background for", tags)
            bg_emit()
        for t_ in tags:
            assert t_ in SEEN or t_ == "all", ("wait on unseen tag", t_)
            WAITED.add(t_)
        n0 = len(A.lines)
        nb = len(A.vm)
        A.wait(vm=op[1])
        if TRACE and len(A.lines) > n0:
            done = VT[len(VT)-nb:len(VT)-len(A.vm)] if nb <= len(VT) else []
            print(f"  t={CK.t} wait {op[1]}: retires", [(a_, CK.t-b_) for a_, b_ in done[-4:]])
    elif k == "wlg":
        assert op[1] in SEENL or op[1] == "all", ("wait on unseen lds tag", op[1])
        A.wait(lg=op[1])
    elif k == "bar": A("s_barrier")
    elif k == "fn": op[1]()
    elif k == "bg":
        for _ in range(op[1]):
            if BG: bg_emit()
        return
    else: raise ValueError(op)
    if k in ("wvm", "wlg") and len(A.lines) == n0: return
    CK.t += opcost(op)

def bg_emit():
    u = BG.popleft()
    for o in u["ops"]: E(o)
    CK.bgn = max(CK.bgn, CK.t - 16) + u["ta"]

def bg_try():
    if BG and CK.t >= CK.bgn: bg_emit()

def bg_force(n=None):
    while BG and (n is None or n > 0):
        bg_emit()
        if n is not None: n -= 1
    CK.t = max(CK.t, CK.bgn - 128)

def bg_now(delay=0): CK.bgn = CK.t + delay

def unit(ops, lines): return dict(ops=ops, ta=lines * 8)

def run(ops, bg=True):
    for o in ops:
        E(o)
        if bg and o[0] in ("v", "M", "m", "lds"): bg_try()

def spread(ops, n=None):
    us = [BG[i]["ta"] for i in range(len(BG) if n is None else min(n, len(BG)))]
    tot = sum((32 if o[0] == "M" else 16 if o[0] == "m" else opcost(o)) for o in ops) or 1
    tta = sum(us) or 1
    done = 0; issued = 0; k = 0
    for o in ops:
        while k < len(us) and issued / tta <= done / tot:
            bg_emit(); issued += us[k]; k += 1
        E(o)
        done += 32 if o[0] == "M" else 16 if o[0] == "m" else opcost(o)
    while k < len(us):
        bg_emit(); k += 1
    CK.t = max(CK.t, CK.bgn - 128)

def cap(fn):
    keep = A.lines; A.lines = []
    fn()
    got = A.lines; A.lines = keep
    out = []
    for l in got:
        if l.startswith(("s_cselect", "s_subb", "s_addc")):
            p = out.pop(); out.append(("s", p[1] + "\n" + l))
        else: out.append(("v", l) if l.startswith("v_") else ("s", l))
    return out

def fuse_cmp(ops):
    out = []
    for o in ops:
        if o[0] == "fn" and o[2] == 4 and out and out[-1][0] == "v" and out[-1][1].startswith("v_cmp"):
            c = out.pop()
            out.append(("fn", (lambda c=c, o=o: (A(c[1]), o[1]())), 12))
        else: out.append(o)
    return out

def weave(main, streams=(), small=False, report=None, autobg=True):
    for s_ in streams: s_["ops"] = fuse_cmp(s_["ops"])
    st = [dict(ops=deque(s_["ops"]), g0=s_["g0"], g1=s_["g1"], greedy=s_.get("greedy", False),
               tot=max(1, sum(opcost(o) for o in s_["ops"])), done=0, end=None) for s_ in streams]
    MEM = ("vm", "lds", "wvm", "wlg", "s", "bar", "bg")
    i = 0; g = 0; n = len(main); tstart = max(CK.t, CK.mf)
    while i < n:
        o = main[i]; E(o); i += 1
        if o[0] not in ("M", "m"): continue
        while i < n and main[i][0] in ("lds", "vm", "bg"):
            E(main[i]); i += 1
        if o[0] == "m" and not small: continue
        if autobg: bg_try()
        g += 1
        j = i; res = 0
        while j < n and main[j][0] not in ("M", "m"):
            res += opcost(main[j]); j += 1
        def behind(s_):
            frac = (g - s_["g0"]) / max(1, s_["g1"] - s_["g0"])
            return s_["done"] < s_["tot"] * frac
        def late(s_):
            frac = (g - s_["g0"]) / max(1, s_["g1"] - s_["g0"])
            return frac >= 1 or s_["done"] < s_["tot"] * frac - 24
        def ok(s_):
            if not s_["ops"] or g <= s_["g0"]: return False
            fits = CK.t + opcost(s_["ops"][0]) + res <= CK.mf + 1
            return late(s_) or (fits and (s_["greedy"] or behind(s_)))
        for phase in (0, 1):
            for s_ in st:
                while ok(s_) and ((s_["ops"][0][0] in MEM) if phase == 0 else (s_["ops"][0][0] not in ("vm", "lds") or g >= s_["g1"])):
                    x = s_["ops"].popleft(); E(x); s_["done"] += opcost(x)
                    if not s_["ops"]: s_["end"] = g
    for s_ in st:
        while s_["ops"]: E(s_["ops"].popleft())
    if report: print(f"weave {report}: est {max(CK.t, CK.mf) - tstart} clk, {g} gaps, stream ends {[s_['end'] for s_ in st]}, bg left {len(BG)}")

def M32(d, x, y, zero=False):
    return ("M", f"v_mfma_f32_32x32x16_bf16 {r(d,16)}, {r(x,4)}, {r(y,4)}, {'0' if zero else r(d,16)}")
def M16(d, x, y, zero=False):
    return ("m", f"v_mfma_f32_16x16x32_bf16 {r(d,4)}, {r(x,4)}, {r(y,4)}, {'0' if zero else r(d,4)}")
def off(i): return f" offset:{i}" if i else ""
def DMA(voff, sr, soff, imm, tag):
    return ("vm", f"buffer_load_dwordx4 {v(voff)}, {s(sr,4)}, {soff} offen{off(imm)} lds", tag)
def TR(dst, addr, o, tag): return ("lds", f"ds_read_b64_tr_b16 {r(dst,2)}, {v(addr)}{off(o)}", tag)
def RD128(dst, addr, o, tag): return ("lds", f"ds_read_b128 {r(dst,4)}, {v(addr)}{off(o)}", tag)
def WR128(addr, src, o, tag): return ("lds", f"ds_write_b128 {v(addr)}, {r(src,4)}{off(o)}", tag)

def pkop(name, d, srcs, neg0=False):
    lo = ",".join("1" if m == 1 else "0" for _, m in srcs)
    hi = ",".join("0" if m == 0 else "1" for _, m in srcs)
    t = f"{name} {d}, " + ", ".join(x for x, _ in srcs) + f" op_sel:[{lo}] op_sel_hi:[{hi}]"
    if neg0:
        z = ",".join(["1"] + ["0"] * (len(srcs) - 1))
        t += f" neg_lo:[{z}] neg_hi:[{z}]"
    return V(t)

def max_lines(regs, tmp, first=True):
    out = []
    rest = list(regs)
    if first:
        out.append(f"v_max3_u32 {v(tmp)}, {v(rest[0])}, {v(rest[1])}, {v(rest[min(2, len(rest)-1)])}")
        rest = rest[3:]
    while rest:
        x1 = rest[1] if len(rest) > 1 else rest[0]
        out.append(f"v_max3_u32 {v(tmp)}, {v(tmp)}, {v(rest[0])}, {v(x1)}")
        rest = rest[2:]
    return out

def mix(a_, b_):
    out = []
    a_, b_ = list(a_), list(b_)
    while a_ or b_:
        if a_: out.append(a_.pop(0))
        if b_: out.append(b_.pop(0))
    return out
```

```python
import sys, struct
from sched import *

NAME = "sequential_preLN__linear_attn_block__glu_gated_geglu__prompt"
OPT = dict(ts=0, spin=200000, slp=2, rep=0, rot=2, hold=-1, warm=0)
for arg in sys.argv[2:]:
    k_, v_ = arg.split("=")
    OPT[k_] = int(v_) if v_.lstrip("-").isdigit() else v_
fh = lambda x: "0x%08x" % struct.unpack("<I", struct.pack("<f", x))[0]
if OPT.get("xdw"): DROP.append(("dw", ""))
if OPT.get("xst"): DROP.append(("gst", ""))
if OPT.get("xpoi"): DROP.extend([("zs", "dwordx2"), ("po", ""), ("ph", "")])
if OPT.get("xcw"): DROP.append(("cw", ""))
for d_ in str(OPT.get("drop", "")).split(","):
    if d_: DROP.append((d_, ""))
REP = lambda n: n if OPT["rep"] else None

KVP = 0
OO = 1 << 20
HH_ = 3 << 20
ST = 5 << 20
FL1 = 0x80000
SL1 = 0xC0000
FL2 = 0xA0000
EPO = 0xA8000
PFL = 0xA9000
HFL = (5 << 20) + (1 << 19)
CSW = 0xB0000
GG = 6 << 20
TSB = 15 << 20
WS_BYTES = 16 << 20

K = 1024
WL0 = 64 * K
WKL = 112 * K
HI = 96 * K
KVX = 120 * K
XB = 128 * K
XIMG = 148 * K
MISC = 156 * K
LDS_BYTES = 160 * K

sUP = 0
sW = 3
sT0, sT1, sT2, sT3 = 4, 5, 6, 7
SX, SQKV, SWO, SWG, SWU, SWD, SOUT, SWS = 8, 12, 16, 20, 24, 28, 32, 36
sTAG, sFL, sDBG, sG1 = 40, 41, 42, 43
sRB, sP, sHEAD, sCB, sFB, sIDLE, sW1K, sC0 = 44, 45, 46, 47, 48, 49, 50, 51
sXB, sW4K, sONES, sSPIN = 52, 53, 54, 55
sL2E, sEPS = 56, 58
sKVPW, sOW, sHW, sSTW = 60, 61, 62, 63
sM = 64
sG2 = 79
sKH = 87
sB0, sB1 = 88, 89
sHF, sGW, sDWK, sCA, sCB2 = 90, 91, 92, 93, 94
sOUTW, sWOL, sW7K = 95, 96, 97
sMK = 98
sTS = 100

vLANE, vL16 = 1, 15
vXO = 2
vWO = 6
vXR = 7
vWR = 11
vRO = 16
vMEAN = 18
vT = 20
vCW = 24
vCR = 26
vBC = 30
vTS = 31
CW = 256
STASH = 256 + 200
SEL = 256 + 224
CSA = 256 + 228
AS = 256 + 236
ACS = 256 + 240


NST = [0]


def fst(group):
    if OPT.get("fine") == group:
        stamp(-1)


def stamp(i):
    if OPT.get("fine") and i != 63:
        if i > 0 and i < OPT.get("from", 0):
            return
        print("stamp", NST[0], "=", i)
        i = NST[0]
        NST[0] += 1
        if i >= 30:
            return
    if OPT["hold"] == i:
        A(f"s_memrealtime {s(sTS,2)}")
        A.wait(lg="all")
    if not OPT["ts"]:
        return
    A(f"s_memrealtime {s(sTS,2)}")
    A.wait(lg="all")
    A(f"v_writelane_b32 {v(vTS)}, {s(sTS)}, {i}")
    if OPT["ts"] == 2 and i < 30:
        A(f"s_memtime {s(sTS,2)}")
        A.wait(lg="all")
        A(f"v_writelane_b32 {v(vTS)}, {s(sTS)}, {32+i}")


ST_ = lambda i: FN(lambda: stamp(i))
NOOL = [0]


def dbg_mark(name):
    i = NOOL[0]
    NOOL[0] += 1
    if OPT["rep"]:
        print("ool bit", i, name)
    return [f"s_bitset1_b32 {s(sDBG)}, {i}"] if OPT["ts"] else []


def srd(base, nbytes):
    A(f"s_mov_b32 {s(base+2)}, {nbytes}")
    A(f"s_mov_b32 {s(base+3)}, 0x20000")


def spin_tail(loop, back):
    return [f"s_add_u32 {s(sSPIN)}, {s(sSPIN)}, 1", f"s_cmp_lt_u32 {s(sSPIN)}, {OPT['spin']}", f"s_cbranch_scc1 {loop}", f"s_branch {back}"]


def check_ops(tag, regs, reloads, tmp=vT):
    lab = A.label("L_chk")
    back = A.label("L_bk")
    chk = max_lines(regs, tmp) + [f"v_cmp_eq_u32 vcc, -1, {v(tmp)}"]
    ops = [WV(tag)] + [V(c_) for c_ in chk] + [FN(lambda: (A(f"s_cbranch_vccnz {lab}"), A(f"{back}:")), 4)]
    OOL.append([f"{lab}:"] + dbg_mark(tag) + [f"s_mov_b32 {s(sSPIN)}, 0", f"{lab}_t:"] + reloads + ["s_waitcnt vmcnt(0)"] + chk +
               [f"s_cbranch_vccz {back}"] + spin_tail(f"{lab}_t", back))
    return ops


def tag_check(tag, loads, r0, r1):
    lab, back = A.label("L_tg"), A.label("L_tb")
    chk = [f"v_xor_b32 {v(r0)}, {s(sTAG)}, {v(r0)}", f"v_xor_b32 {v(r1)}, {s(sTAG)}, {v(r1)}", f"v_or_b32 {v(r0)}, {v(r0)}, {v(r1)}", f"v_cmp_ne_u32 vcc, 0, {v(r0)}"]
    OOL.append([f"{lab}:"] + dbg_mark(tag) + [f"s_mov_b32 {s(sSPIN)}, 0", f"{lab}_t:", f"s_sleep {OPT['slp']}"] + loads + ["s_waitcnt vmcnt(0)"] + chk +
               [f"s_cbranch_vccz {back}"] + spin_tail(f"{lab}_t", back))
    return [WV(tag)] + [V(c_) for c_ in chk] + [FN(lambda: (A(f"s_cbranch_vccnz {lab}"), A(f"{back}:")), 4)]


def flag_check(tag, reg, addr, so):
    lab = A.label("L_cc")
    back = A.label("L_cb")
    ld = f"buffer_load_dword {v(reg)}, {v(addr)}, {s(SWS,4)}, {so} offen sc1"
    chk = f"v_cmp_ne_u32 vcc, {s(sTAG)}, {v(reg)}"
    ops = [WV(tag), V(chk), FN(lambda: (A(f"s_cbranch_vccnz {lab}"), A(f"{back}:")), 4)]
    if OPT.get("xfl") and tag in ("f0", "f1", "f2", "f3"):
        ops = [WV(tag), V("v_cmp_ne_u32 vcc, 0, 0"), ops[2]]
    OOL.append([f"{lab}:"] + dbg_mark(tag) + [f"s_mov_b32 {s(sSPIN)}, 0", f"{lab}_t:", ld, "s_waitcnt vmcnt(0)", chk,
                f"s_cbranch_vccz {back}", f"s_sleep {OPT['slp']}"] + spin_tail(f"{lab}_t", back))
    return ("vm", ld, tag), ops


def refresh(name, groups):
    top = A.label("R_top")
    ool = A.label("R_ool")
    done = A.label("R_done")
    blk = [f"{ool}:"] + dbg_mark(name) + [f"{ool}_t:", "s_waitcnt vmcnt(0)", f"s_mov_b32 {s(sM)}, 0"]
    for G in groups:
        skip = A.label("R_s")
        blk += max_lines(G["regs"], vT) + [f"v_cmp_eq_u32 vcc, -1, {v(vT)}", f"s_cbranch_vccz {skip}"] + G["loads"] + [f"s_mov_b32 {s(sM)}, 1", f"{skip}:"]
    blk += [f"s_add_u32 {s(sSPIN)}, {s(sSPIN)}, 1", f"s_cmp_ge_u32 {s(sSPIN)}, {OPT['spin']}", f"s_cbranch_scc1 {ool}_x",
            f"s_cmp_eq_u32 {s(sM)}, 0", f"s_cbranch_scc1 {top}", f"s_branch {ool}_t", f"{ool}_x:", "s_waitcnt vmcnt(0)", f"s_branch {done}"]
    OOL.append(blk)
    return ([S(f"s_mov_b32 {s(sSPIN)}, 0"), FN(lambda: A(f"{top}:"))],
            [FN(lambda: (A(f"s_cbranch_vccnz {ool}"), A(f"{done}:")), 4)])


def bad_lines(G):
    if G.get("xor"):
        x = G["regs"]
        return [f"v_bitop3_b32 {v(vT)}, {v(x[0])}, {v(x[1])}, {v(x[2])} bitop3:0x96", f"v_bitop3_b32 {v(vT)}, {v(vT)}, {v(x[3])}, {v(x[4])} bitop3:0x96",
                f"v_bitop3_b32 {v(vT)}, {v(vT)}, {v(x[5])}, {v(x[6])} bitop3:0x96", f"v_xor_b32 {v(vT)}, {v(vT)}, {v(x[7])}", f"v_cmp_ne_u32 vcc, {s(sTAG)}, {v(vT)}"]
    return max_lines(G["regs"], vT) + [f"v_cmp_eq_u32 vcc, -1, {v(vT)}"]


def site_check(tag, G, later):
    lab, back = A.label("S_ool"), A.label("S_bk")
    ops = [WV(tag)] + [V(l) for l in bad_lines(G)] + [FN(lambda: (A(f"s_cbranch_vccnz {lab}"), A(f"{back}:")), 4)] + G.get("pre", [])
    blk = [f"{lab}:"] + dbg_mark(tag) + [f"s_mov_b32 {s(sSPIN)}, 0", f"{lab}_t:", "s_waitcnt vmcnt(0)", f"s_mov_b32 {s(sM)}, 0"]
    for X in [G] + later:
        skip = A.label("S_s")
        blk += bad_lines(X) + [f"s_cbranch_vccz {skip}"] + X["loads"] + [f"s_mov_b32 {s(sM)}, 1", f"{skip}:"]
    blk += [f"s_cmp_eq_u32 {s(sM)}, 0", f"s_cbranch_scc1 {back}", f"s_add_u32 {s(sSPIN)}, {s(sSPIN)}, 1", f"s_cmp_lt_u32 {s(sSPIN)}, {OPT['spin']}",
            f"s_cbranch_scc1 {lab}_t", "s_waitcnt vmcnt(0)", f"s_branch {back}"]
    OOL.append(blk)
    return ops


def gather_finish(name, groups, post={}):
    n = len(groups)
    A(f"s_mov_b32 {s(sM)}, {(1 << n) - 1}")
    A(f"s_mov_b32 {s(sSPIN)}, 0")
    top, done, retry = A.label("G_top"), A.label("G_done"), A.label("G_retry")
    A(f"{top}:")
    for g, G in enumerate(groups):
        skip = A.label("G_skip")
        E(WV(f"{name}{g}"))
        for l in bad_lines(G):
            A(l)
        A(f"s_bitcmp0_b32 {s(sM)}, {g}")
        A(f"s_cbranch_scc1 {skip}")
        A(f"s_cbranch_vccnz {skip}")
        for o in G.get("pre", []) + G["compute"]:
            A(o[1])
        A(f"s_bitset0_b32 {s(sM)}, {g}")
        A(f"{skip}:")
        for o in post.get(g, []):
            E(o)
    A(f"s_cmp_lg_u32 {s(sM)}, 0")
    A(f"s_cbranch_scc1 {retry}")
    A(f"{done}:")
    blk = [f"{retry}:"] + dbg_mark(name) + [f"s_sleep {OPT['slp']}", f"s_add_u32 {s(sSPIN)}, {s(sSPIN)}, 1", f"s_cmp_gt_u32 {s(sSPIN)}, {OPT['spin']}", f"s_cbranch_scc1 {done}"]
    for g, G in enumerate(groups):
        skip = A.label("G_rs")
        blk += [f"s_bitcmp0_b32 {s(sM)}, {g}", f"s_cbranch_scc1 {skip}"] + G["loads"] + [f"{skip}:"]
    blk += ["s_waitcnt vmcnt(0)", f"s_branch {top}"]
    OOL.append(blk)


def gather_loads(name, groups):
    return [("vm", t, f"{name}{g}") for g, G in enumerate(groups) for t in G["loads"]]


def prologue():
    if OPT["hold"] >= 0:
        A(f"s_memrealtime {s(sTS,2)}")
    A(f"s_getpc_b64 {s(sT0,2)}")
    A(f"s_lshr_b32 {s(sT2)}, s2, 3")
    A(f"s_lshl_b32 {s(sT3)}, {s(sT2)}, 10")
    A(f"v_lshl_add_u32 {v(vT)}, v0, 2, {s(sT3)}")
    A(f"s_cmp_ge_u32 {s(sT2)}, 32")
    A("s_cbranch_scc1 L_exit")
    A.vmem(f"global_load_dword v255, {v(vT)}, {s(sT0,2)}", "code")
    for sr_, o_ in ((SX, 0), (SQKV, 8), (SWS, 72), (SWO, 16), (SWG, 32), (SWU, 40), (SWD, 48), (SOUT, 56)):
        A(f"s_load_dwordx2 {s(sr_,2)}, s[0:1], {o_}")
    if OPT["ts"]:
        A(f"v_mov_b32 {v(vTS)}, 0")
        A(f"s_mov_b32 {s(sDBG)}, 0")
    A(f"v_lshrrev_b32 {v(vT+2)}, 6, v0")
    A(f"v_and_b32 {v(vLANE)}, 63, v0")
    A(f"v_readfirstlane_b32 {s(sW)}, {v(vT+2)}")
    A(f"s_and_b32 {s(sP)}, s2, 1")
    A(f"s_bfe_u32 {s(sRB)}, s2, 0x20001")
    A(f"s_lshr_b32 {s(sT3)}, s2, 6")
    A(f"s_lshl2_add_u32 {s(sRB)}, {s(sRB)}, {s(sT3)}")
    A(f"s_and_b32 {s(sT2)}, {s(sT2)}, 7")
    A(f"s_lshl3_add_u32 {s(sHEAD)}, {s(sP)}, {s(sT2)}")
    A(f"s_lshl1_add_u32 {s(sC0)}, {s(sT3)}, {s(sT2)}")
    A(f"s_sub_u32 {s(sT3)}, {s(sC0)}, 7")
    A(f"s_cselect_b32 {s(sC0)}, {s(sC0)}, {s(sT3)}")
    srd(SX, 2048 * 896)
    srd(SQKV, 448 * 2688)
    A(f"s_lshl4_add_u32 {s(sB1)}, {s(sRB)}, {s(sHEAD)}")
    A(f"s_lshl2_add_u32 {s(sB1)}, {s(sB1)}, {s(sW)}")
    A(f"s_mul_i32 {s(sT0)}, {s(sB1)}, {2*896}")
    A(f"v_and_b32 {v(T_)}, 31, {v(vLANE)}")
    A(f"v_lshrrev_b32 {v(T_+1)}, 5, {v(vLANE)}")
    A(f"v_cmp_lt_u32 vcc, 27, {v(T_)}")
    A(f"v_mul_u32_u24 {v(vT+1)}, 896, {v(T_+1)}")
    A(f"v_lshl_add_u32 {v(vT+1)}, {v(T_)}, 4, {v(vT+1)}")
    A(f"v_cndmask_b32 {v(vT)}, {v(vT+1)}, 2.0, vcc")
    A(f"s_mul_i32 {s(sT1)}, {s(sW)}, {16*2688}")
    A(f"s_mul_i32 {s(sT3)}, {s(sHEAD)}, 56")
    A(f"s_add_u32 {s(sT3)}, {s(sT3)}, {s(sT1)}")
    A(f"v_lshrrev_b32 {v(vT+2)}, 2, {v(vLANE)}")
    A(f"v_mul_u32_u24 {v(vT+2)}, 2688, {v(vT+2)}")
    A(f"v_and_b32 {v(vT+3)}, 3, {v(vLANE)}")
    A(f"v_lshlrev_b32 {v(vT+3)}, 4, {v(vT+3)}")
    A(f"v_min_u32 {v(vT+3)}, 40, {v(vT+3)}")
    A(f"v_add3_u32 {v(vWO)}, {v(vT+2)}, {v(vT+3)}, {s(sT3)}")
    A(f"s_lshl_b32 {s(sW1K)}, {s(sW)}, 10")
    A(f"s_lshl_b32 {s(sW4K)}, {s(sW)}, 12")
    A(f"s_lshl2_add_u32 {s(sXB)}, {s(sRB)}, {s(sW)}")
    A(f"s_mul_i32 {s(sXB)}, {s(sXB)}, {32*896}")
    A(f"v_lshrrev_b32 {v(vT+2)}, 3, {v(vLANE)}")
    A(f"v_mul_u32_u24 {v(vT+2)}, 896, {v(vT+2)}")
    A(f"v_add_u32 {v(vT+2)}, {s(sXB)}, {v(vT+2)}")
    A(f"v_lshrrev_b32 {v(vT+3)}, 4, {v(vLANE)}")
    A(f"v_and_b32 {v(vT+1)}, 7, {v(vLANE)}")
    A(f"v_xor_b32 {v(vT+3)}, {v(vT+3)}, {v(vT+1)}")
    A(f"v_lshl_add_u32 {v(vXO)}, {v(vT+3)}, 4, {v(vT+2)}")
    A(f"v_xor_b32 {v(vT+3)}, 4, {v(vT+3)}")
    A(f"v_lshl_add_u32 {v(vXO+1)}, {v(vT+3)}, 4, {v(vT+2)}")
    A(f"v_add_u32 {v(vXO+1)}, {7168-1024}, {v(vXO+1)}")
    A(f"v_add_u32 {v(vXO+2)}, {2*(7168-1024)}, {v(vXO)}")
    A(f"v_add_u32 {v(vXO+3)}, {2*(7168-1024)}, {v(vXO+1)}")
    A(f"s_lshl_b32 {s(sM+8)}, {s(sC0)}, 7")
    A(f"s_mul_i32 {s(sM+1)}, {s(sM+8)}, 1344")
    A.wait(lg="all")
    stamp(0)


def u_x(t):
    return [unit(([S(f"s_add_u32 m0, {s(sW4K)}, {(t+4 if t < 3 else t-3)*16*K}"), S("s_nop 0")] if i == 0 else []) +
                 [DMA(vXO+i, SX, s(sM+8+t), 1024*i, f"c{t}")], 8) for i in range(4)]


def u_w(part, t, lines=32):
    m = [f"s_add_u32 m0, {s(sW1K)}, {WKL + t*4096}", f"s_add_u32 m0, {s(sW4K)}, {64*K + (t >> 2)*16*K + (t & 3)*1024}",
         f"s_add_u32 m0, {s(sW4K)}, {32*K + (t >> 2)*16*K + (t & 3)*1024}"][part]
    return unit([S(m), S(f"s_add_u32 {s(sB0)}, {s(sM+1+t)}, {(896, 1792, 0)[part]}"), DMA(vWO, SQKV, s(sB0), 0, "cvq"[part] + str(t))], lines)


XF = 32
SLC = 192
vVR = 144
vKW, vKR, vSO, vWM, vXW, vXR2 = 148, 149, 150, 151, 157, 158
vXA = 28
RW = [256 + 160 + 4*i for i in range(8)]
ACK, ACV = 176, 192
PK, PV = 208, 216
BM, BR = 224, 240
vPOI = 256 + 248
vCS = 164
vCC = 166
vCSA, vCSR, vBW, vL8, vFA = 167, 172, 173, 174, 175
sROT, sCWK = sC0, sOUTW
sSLO, sF1W = sCA, sCB2
sWP = sMK


def phi_ops(acc, cs, mean, rs, dst, tmp):
    o = []
    P = lambda b, i: v(b + 2*i, 2)
    o += [pkop("v_pk_fma_f32", P(acc, i), [mean(i), cs(i), (P(acc, i), None)], neg0=True) for i in range(8)]
    o += [pkop("v_pk_mul_f32", P(acc, i), [(P(acc, i), None), rs(i)]) for i in range(8)]
    if tmp is not None:
        o += [V(f"v_pk_mul_f32 {P(tmp,i)}, {P(acc,i)}, {s(sL2E,2)}") for i in range(8)]
        for i in range(16):
            o += [V(f"v_exp_f32 {v(tmp+i)}, {v(tmp+i)} clamp"), V(f"v_max_f32 {v(acc+i)}, 0, {v(acc+i)}")]
        o += [V(f"v_pk_add_f32 {P(acc,i)}, {P(acc,i)}, {P(tmp,i)}") for i in range(8)]
        o += [V(f"v_pk_add_f32 {P(acc,i)}, {P(acc,i)}, {s(sEPS,2)}") for i in range(8)]
    o += [V(f"v_cvt_pk_bf16_f32 {v(dst+i)}, {v(acc+2*i)}, {v(acc+2*i+1)}") for i in range(8)]
    return o


def cs_sum(dst, b=168):
    return [V(f"v_add_f32 {v(b)}, {v(b)}, {v(b+1)}"), V(f"v_add_f32 {v(b+2)}, {v(b+2)}, {v(b+3)}"), V(f"v_add_f32 {v(dst)}, {v(b)}, {v(b+2)}")]


HORD = [0, 1, 3, 5, 7, 2, 4, 6]
NEARLY = 5
T_ = 152


def setup1():
    for t in range(1, 7):
        A(f"s_add_u32 {s(sM+8+t)}, {s(sM+7+t)}, 128")
        A(f"s_cmp_eq_u32 {s(sM+8+t)}, 896")
        A(f"s_cselect_b32 {s(sM+8+t)}, 0, {s(sM+8+t)}")
        A(f"s_mul_i32 {s(sM+1+t)}, {s(sM+8+t)}, 1344")
    T = T_
    A(f"v_lshlrev_b32 {v(vL16)}, 4, {v(vLANE)}")
    A(f"v_bfe_u32 {v(T+2)}, {v(vLANE)}, 2, 2")
    A(f"v_bfe_u32 {v(T+3)}, {v(vLANE)}, 4, 1")
    A(f"v_and_b32 {v(T+4)}, 3, {v(vLANE)}")
    A(f"v_bfe_u32 {v(vT)}, {v(vLANE)}, 1, 3")
    A(f"v_xor_b32 {v(vT)}, {v(vT)}, {v(T+1)}")
    A(f"v_lshlrev_b32 {v(vT)}, 4, {v(vT)}")
    A(f"v_lshl_add_u32 {v(vT)}, {v(T)}, 7, {v(vT)}")
    A(f"s_add_u32 {s(sT0)}, {s(sW4K)}, 0x10000")
    A(f"v_add_u32 {v(vT)}, {s(sT0)}, {v(vT)}")
    A(f"v_lshl_add_u32 {v(vT+1)}, {v(T+1)}, 3, {v(T+2)}")
    A(f"v_lshlrev_b32 {v(vT+1)}, 6, {v(vT+1)}")
    A(f"v_lshl_add_u32 {v(vT+2)}, {v(T+3)}, 2, {v(T+4)}")
    A(f"v_cmp_lt_u32 vcc, 5, {v(vT+2)}")
    A(f"v_xor_b32 {v(vT+3)}, 1, {v(vT+2)}")
    A(f"s_mov_b32 {s(sONES)}, 0x3f803f80")
    A(f"v_cndmask_b32 {v(vT+2)}, {v(vT+2)}, {v(vT+3)}, vcc")
    A(f"v_lshl_add_u32 {v(vT+1)}, {v(vT+2)}, 3, {v(vT+1)}")
    A(f"v_add_u32 {v(vT+2)}, {32*K}, {v(vT+1)}")
    A(f"v_add_u32 {v(vT+1)}, {WKL}, {v(vT+1)}")
    for i in range(4):
        A(f"s_add_u32 {s(sT0)}, {s(sW)}, {i}")
        A(f"s_and_b32 {s(sT0)}, {s(sT0)}, 3")
        A(f"s_lshl_b32 {s(sT1)}, {s(sT0)}, 5")
        A(f"v_xor_b32 {v(vXR+i)}, {s(sT1)}, {v(vT)}")
        A(f"v_lshl_add_u32 {v(vWR+i)}, {s(sT0)}, 10, {v(vT+1)}")
        A(f"v_lshl_add_u32 {v(vVR+i)}, {s(sT0)}, 12, {v(vT+2)}")
    A("s_mov_b32 vcc_lo, 0xf0f00f0f")
    A("s_mov_b32 vcc_hi, 0xf0f00f0f")
    A(f"v_mov_b32 {v(vT)}, {s(sONES)}")
    A(f"v_cndmask_b32 {v(vT)}, 0, {v(vT)}, vcc")
    for k in range(4):
        A(f"v_accvgpr_write_b32 {r(SEL+k)}, {v(vT)}")
        A(f"v_accvgpr_write_b32 {r(vPOI+k)}, -1")
    srd(SWS, WS_BYTES)
    A(f"v_lshlrev_b32 {v(vL8)}, 3, {v(vLANE)}")
    A(f"s_lshl2_add_u32 {s(sG1)}, {s(sHEAD)}, {s(sW)}")
    A(f"s_lshl_b32 {s(sG1)}, {s(sG1)}, 13")
    A(f"s_lshl_b32 {s(sT0)}, {s(sRB)}, 9")
    A(f"s_add_u32 {s(sKVPW)}, {s(sG1)}, {s(sT0)}")
    A(f"s_lshl_b32 {s(sB1)}, {s(sB1)}, 7")
    A(f"s_add_u32 {s(sB1)}, {s(sB1)}, {SL1}")
    A(f"v_lshlrev_b32 {v(vSO)}, 4, {v(T+4)}")
    A(f"v_lshl_add_u32 {v(vSO)}, {v(T+1)}, 6, {v(vSO)}")
    if OPT["warm"]:
        A(f"s_cmp_eq_u32 {s(sW)}, 1")
        A(f"s_cselect_b64 {s(sWP,2)}, {s(SWU,2)}, {s(SWG,2)}")
        A(f"s_cmp_eq_u32 {s(sW)}, 2")
        A(f"s_cselect_b64 {s(sWP,2)}, {s(SWD,2)}, {s(sWP,2)}")
        A(f"s_cmp_eq_u32 {s(sW)}, 3")
        A(f"s_cselect_b64 {s(sWP,2)}, {s(SWO,2)}, {s(sWP,2)}")
        A(f"s_cselect_b32 {s(sT0)}, 63, -1")
        A(f"s_and_b32 {s(sT0)}, {s(sT0)}, s2")
        A(f"s_mul_i32 {s(sT0)}, {s(sT0)}, 49")
        A(f"s_add_u32 {s(sT0)}, {s(sT0)}, 21")
        A(f"v_min_u32 {v(vWM)}, 6, {v(vLANE)}")
        A(f"v_add_lshl_u32 {v(vWM)}, {v(vWM)}, {s(sT0)}, 7")


def setup2():
    T = T_
    A(f"s_lshl4_add_u32 {s(sT0)}, {s(sHEAD)}, {s(sRB)}")
    A(f"s_lshl_b32 {s(sT0)}, {s(sT0)}, 7")
    A(f"s_add_u32 {s(sF1W)}, {s(sT0)}, {FL1}")
    A(f"s_lshl2_add_u32 {s(sT0)}, {s(sHEAD)}, {s(sW)}")
    A(f"s_lshl_b32 {s(sT0)}, {s(sT0)}, 9")
    A(f"s_add_u32 {s(sFL)}, {s(sT0)}, {FL1}")
    A(f"v_lshlrev_b32 {v(vFA)}, 7, {v(T+4)}")
    A(f"s_lshl2_add_u32 {s(sT0)}, {s(sRB)}, {s(sW)}")
    A(f"s_lshl_b32 {s(sT0)}, {s(sT0)}, 11")
    A(f"s_add_u32 {s(sSLO)}, {s(sT0)}, {SL1}")
    A(f"v_lshlrev_b32 {v(vSO)}, 6, {v(T)}")
    A(f"v_lshlrev_b32 {v(vCSR)}, 4, {v(T)}")
    A(f"v_add_u32 {v(vCSR)}, {MISC + 1024}, {v(vCSR)}")
    A(f"v_lshl_add_u32 {v(vCSA)}, {s(sW)}, 2, {v(vCSR)}")
    A(f"s_lshl_b32 {s(sT2)}, {s(sW)}, 8")
    A(f"s_add_u32 {s(sT2)}, {s(sT2)}, {MISC}")
    A(f"v_lshl_add_u32 {v(vBC)}, {v(T+1)}, 4, {s(sT2)}")
    A(f"v_lshl_add_u32 {v(vBW)}, {v(vLANE)}, 2, {s(sT2)}")
    A(f"s_mov_b32 {s(sUP)}, 0")
    A(f"s_mov_b32 {s(sUP+1)}, -1")
    A(f"s_and_b32 {s(sT2)}, {s(sHEAD)}, 7")
    A(f"s_mul_i32 {s(sT3)}, {s(sP)}, 7")
    A(f"s_cmp_eq_u32 {s(sT2)}, {s(sT3)}")
    A(f"s_cselect_b32 {s(sIDLE)}, 1, 0")
    A(f"s_cmp_gt_u32 {s(sT2)}, {s(sT3)}")
    A(f"s_cselect_b32 {s(sT3)}, 1, 0")
    A(f"s_sub_u32 {s(sCB)}, {s(sT2)}, {s(sT3)}")
    A(f"s_min_u32 {s(sCB)}, {s(sCB)}, 6")
    A(f"s_mul_i32 {s(sFB)}, {s(sP)}, 7")
    A(f"s_add_u32 {s(sFB)}, {s(sFB)}, {s(sCB)}")
    A(f"s_and_b32 {s(sKH)}, {s(sW)}, 1")
    srd(SWG, 448 * 3584)
    srd(SWU, 448 * 3584 + 1024)
    A(f"s_sub_u32 {s(SWU)}, {s(SWU)}, 1024")
    A(f"s_subb_u32 {s(SWU+1)}, {s(SWU+1)}, 0")
    A(f"s_lshl2_add_u32 {s(sT0)}, {s(sFB)}, {s(sW)}")
    A(f"s_lshl_b32 {s(sT1)}, {s(sT0)}, 6")
    A(f"v_lshrrev_b32 {v(vT)}, 2, {v(vLANE)}")
    A(f"v_mul_u32_u24 {v(vT)}, 3584, {v(vT)}")
    A(f"v_and_b32 {v(vT+1)}, 0x30, {v(vL16)}")
    A(f"v_add3_u32 {v(vCW)}, {v(vT)}, {v(vT+1)}, {s(sT1)}")
    A(f"v_xor_b32 {v(vCW+1)}, 32, {v(vCW)}")
    A(f"s_mul_i32 {s(sGW)}, {s(sRB)}, 224")
    A(f"s_add_u32 {s(sGW)}, {s(sGW)}, {s(sT0)}")
    A(f"s_lshl_b32 {s(sGW)}, {s(sGW)}, 11")
    A(f"s_add_u32 {s(sGW)}, {s(sGW)}, {GG}")
    if OPT["rot"] == 2:
        A(f"s_lshr_b32 {s(sT0)}, {s(sRB)}, 2")
        A(f"s_mul_i32 {s(sROT)}, {s(sT0)}, 7")
    elif OPT["rot"]:
        A(f"s_and_b32 {s(sT0)}, {s(sRB)}, 3")
        A(f"s_lshr_b32 {s(sT1)}, {s(sRB)}, 2")
        A(f"s_lshl2_add_u32 {s(sT0)}, {s(sT0)}, {s(sT1)}")
        A(f"s_mul_i32 {s(sT0)}, {s(sT0)}, 7")
        A(f"s_lshr_b32 {s(sROT)}, {s(sT0)}, 2")
    else:
        A(f"s_mov_b32 {s(sROT)}, 0")
    A(f"s_mul_i32 {s(sCWK)}, {s(sROT)}, {16*3584}")


def setup3():
    T = T_
    A(f"s_lshl_b32 {s(sT0)}, {s(sRB)}, 2")
    A(f"s_add_u32 {s(sOW)}, {s(sT0)}, {s(sW)}")
    A(f"s_lshl4_add_u32 {s(sOW)}, {s(sOW)}, {s(sHEAD)}")
    A(f"s_lshl_b32 {s(sOW)}, {s(sOW)}, 11")
    A(f"s_add_u32 {s(sOW)}, {s(sOW)}, {OO}")
    A(f"v_lshrrev_b32 {v(vT)}, 3, {v(vLANE)}")
    A(f"s_and_b32 {s(sT1)}, {s(sW)}, 2")
    A(f"s_add_u32 {s(sT1)}, {s(sT1)}, {s(sP)}")
    A(f"s_add_u32 {s(sT1)}, {s(sT1)}, {s(sT0)}")
    A(f"s_lshl1_add_u32 {s(sT3)}, {s(sCB)}, {s(sKH)}")
    A(f"s_mul_i32 {s(sSTW)}, {s(sT1)}, 14")
    A(f"s_add_u32 {s(sSTW)}, {s(sSTW)}, {s(sT3)}")
    A(f"v_mul_u32_u24 {v(vT)}, 896, {v(vT)}")
    A(f"s_lshl_b32 {s(sHW)}, {s(sSTW)}, 11")
    A(f"s_add_u32 {s(sHW)}, {s(sHW)}, {HH_}")
    A(f"s_lshl_b32 {s(sSTW)}, {s(sSTW)}, 8")
    A(f"s_add_u32 {s(sSTW)}, {s(sSTW)}, {ST}")
    A(f"s_lshl1_add_u32 {s(sT1)}, {s(sT1)}, {s(sKH)}")
    A(f"s_mul_i32 {s(sXB)}, {s(sT1)}, {16*896}")
    A(f"v_and_b32 {v(vT+1)}, 0x70, {v(vL16)}")
    A(f"s_lshl_b32 {s(sT1)}, {s(sT1)}, 3")
    A(f"s_sub_u32 {s(sT1)}, {s(sT1)}, {s(sKH)}")
    A(f"s_lshl_b32 {s(sT1)}, {s(sT1)}, 11")
    for i in range(8):
        A(f"s_add_u32 {s(sG2+i)}, {s(sT1)}, {OO + HORD[i]*2048}")
    A(f"s_lshl_b32 {s(sT2)}, {s(sKH)}, 14")
    A(f"s_add_u32 {s(sG2)}, {s(sG2)}, {s(sT2)}")
    A(f"v_lshlrev_b32 {v(vT+2)}, 6, {v(T+3)}")
    A(f"s_mov_b32 {s(sL2E)}, 0x3fb8aa3b")
    A(f"s_mov_b32 {s(sL2E+1)}, 0x3fb8aa3b")
    A(f"s_mov_b32 {s(sEPS)}, 0x358637bd")
    A(f"s_mov_b32 {s(sEPS+1)}, 0x358637bd")
    A(f"v_xor_b32 {v(vT+1)}, {v(vT+1)}, {v(vT+2)}")
    A(f"s_lshl_b32 {s(sT0)}, {s(sCB)}, 7")
    A(f"v_add3_u32 {v(vRO)}, {v(vT)}, {v(vT+1)}, {s(sT0)}")
    A(f"v_add_u32 {v(vRO+1)}, {7168-1024}, {v(vRO)}")
    srd(SWO, 448 * 896)
    srd(SWD, 1792 * 896)
    srd(SOUT, 2048 * 896)
    A(f"v_lshl_add_u32 {v(vT)}, {v(T+1)}, 2, {v(T+2)}")
    A(f"v_lshlrev_b32 {v(vT)}, 6, {v(vT)}")
    A(f"v_mul_u32_u24 {v(vT+1)}, {1024+32}, {v(T+3)}")
    A(f"v_lshlrev_b32 {v(vT+2)}, 3, {v(T+4)}")
    A(f"v_add3_u32 {v(vT)}, {v(vT)}, {v(vT+1)}, {v(vT+2)}")
    A(f"v_add_u32 {v(vCR)}, {s(sW4K)}, {v(vT)}")
    A(f"v_xor_b32 {v(vCR+1)}, 32, {v(vCR)}")
    A(f"s_mul_i32 {s(sW7K)}, {s(sW)}, {7*K}")
    A(f"s_mul_i32 {s(sDWK)}, {s(sW)}, {112*896}")
    A(f"s_mul_i32 {s(sWOL)}, {s(sW)}, {14*K}")
    A(f"s_add_u32 {s(sWOL)}, {s(sWOL)}, {WL0}")
    A(f"v_bfe_u32 {v(vXA)}, {v(vLANE)}, 1, 1")
    A(f"v_xor_b32 {v(vXA)}, {s(sKH)}, {v(vXA)}")
    A(f"v_lshlrev_b32 {v(vXA)}, 6, {v(vXA)}")
    A(f"v_lshl_add_u32 {v(vXA)}, {v(T)}, 7, {v(vXA)}")
    A(f"v_lshl_add_u32 {v(vXA)}, {v(T+1)}, 3, {v(vXA)}")
    A(f"s_lshr_b32 {s(sT0)}, {s(sW)}, 1")
    A(f"s_lshl_b32 {s(sT0)}, {s(sT0)}, 12")
    A(f"s_add_u32 {s(sT0)}, {s(sT0)}, {XIMG}")
    A(f"v_add_u32 {v(vXA)}, {s(sT0)}, {v(vXA)}")
    A(f"v_add_u32 {v(vKR)}, {96*K}, {v(vL16)}")
    A(f"v_add_u32 {v(vKW)}, {s(sW4K)}, {v(vKR)}")
    A(f"v_add_u32 {v(vKR)}, {s(sW1K)}, {v(vKR)}")
    A(f"s_lshr_b32 {s(sT0)}, {s(sW)}, 1")
    A(f"s_lshl_b32 {s(sT0)}, {s(sT0)}, 10")
    A(f"s_lshl3_add_u32 {s(sT0)}, {s(sKH)}, {s(sT0)}")
    A(f"v_add_u32 {v(vXR2)}, {KVX}, {v(vL16)}")
    A(f"v_add_u32 {v(vXW)}, {s(sT0)}, {v(vXR2)}")
    A(f"v_max_u32 {v(vT)}, 24, {v(T)}")
    A(f"v_lshlrev_b32 {v(vT)}, 2, {v(vT)}")
    A(f"s_mov_b32 {s(sT0)}, 0x30415533")
    A(f"v_bfe_u32 {v(vT)}, {s(sT0)}, {v(vT)}, 4")
    A(f"v_subrev_u32 {v(vT)}, 3, {v(vT)}")
    A(f"v_lshl_add_u32 {v(vXW)}, {v(vT)}, 4, {v(vXW)}")
    A(f"s_cmp_lt_u32 {s(sW)}, 2")
    A(f"s_cselect_b32 {s(sHF)}, {s(sHW)}, {WS_BYTES}")


def setup4():
    T = T_
    A(f"s_mov_b32 {s(sMK)}, 0x3f80")
    A(f"s_mov_b32 {s(sMK+1)}, 0x3f800000")
    A(f"v_lshrrev_b32 {v(4)}, 1, {v(T+2)}")
    A(f"v_xor_b32 {v(4)}, {s(sKH)}, {v(4)}")
    A(f"v_lshlrev_b32 {v(4)}, 6, {v(4)}")
    A(f"v_lshl_add_u32 {v(4)}, {v(T+2)}, 7, {v(4)}")
    A(f"v_lshl_add_u32 {v(4)}, {v(T+3)}, 5, {v(4)}")
    A(f"v_lshl_add_u32 {v(4)}, {v(T+4)}, 3, {v(4)}")
    A(f"s_mul_i32 {s(sT0)}, {s(sKH)}, {15*28*128}")
    A(f"s_add_u32 {s(sT0)}, {s(sT0)}, {WL0}")
    A(f"v_add_u32 {v(4)}, {s(sT0)}, {v(4)}")
    A(f"v_lshl_add_u32 {v(2)}, {v(T+1)}, 9, {v(4)}")
    A(f"v_mul_u32_u24 {v(3)}, {256+64}, {v(T+1)}")
    A(f"v_xor_b32 {v(4)}, {v(3)}, {v(4)}")
    A(f"v_xor_b32 {v(5)}, 64, {v(4)}")
    A(f"v_xor_b32 {v(3)}, 64, {v(2)}")
    A(f"s_and_b32 {s(sT0)}, s2, 7")
    A(f"s_min_u32 {s(sT0)}, {s(sT0)}, 6")
    A(f"s_lshl_b32 {s(sM+8)}, {s(sT0)}, 7")
    for t in range(1, 7):
        A(f"s_add_u32 {s(sM+8+t)}, {s(sM+7+t)}, 128")
        A(f"s_cmp_eq_u32 {s(sM+8+t)}, 896")
        A(f"s_cselect_b32 {s(sM+8+t)}, 0, {s(sM+8+t)}")


def flag_set(which):
    lab = A.label("L_cnt")
    A(f"s_cmp_lg_u32 {s(sW)}, 3")
    A(f"s_cbranch_scc1 {lab}")
    A(f"v_mov_b32 {v(vCS+1)}, {s(sTAG)}")
    A(f"v_mov_b32 {v(vCS)}, {s(sTAG)}")
    A("s_mov_b64 exec, 0xffff")
    A(f"buffer_store_dwordx2 {v(vCS,2)}, {v(vL8)}, {s(SWS,4)}, {s(sF1W)} offen sc1")
    A("s_mov_b64 exec, -1")
    A(f"{lab}:")


st4 = lambda so, imm, tag: ("vm", f"buffer_store_dwordx4 {r(vPOI,4)}, {v(vL16)}, {s(SWS,4)}, {so} offen{off(imm)} sc1", tag)


def u_cw(ks, pace=16):
    sl = ks % 8
    adv = [S(f"s_add_u32 {s(sCWK)}, {s(sCWK)}, {16*3584}"), S(f"s_cmp_eq_u32 {s(sCWK)}, {448*3584}"), S(f"s_cselect_b32 {s(sCWK)}, 0, {s(sCWK)}")] if ks else [S("s_nop 0")]
    if not OPT["rot"]:
        adv = [S(f"s_mov_b32 {s(sCWK)}, {ks*16*3584}")]
    return unit([S(f"s_add_u32 m0, {s(sW4K)}, {(sl >> 1)*16*K + (sl & 1)*2048}")] + adv +
                [DMA(vCW, SWG, s(sCWK), 0, f"cw{ks}"), DMA(vCW+1, SWU, s(sCWK), 1024, f"cw{ks}")], pace)


def cw_read(a_, b_):
    o = []
    for ks in range(a_, b_):
        sl = ks % 8
        o += [WV(f"cw{ks}")] + [TR(CW + (ks*2+t)*4 + rd*2, vCR + t, (sl >> 1)*16*K + (sl & 1)*2048 + rd*512, f"cr{ks}") for t in range(2) for rd in range(2)]
    return o


LAG = 6
CWN = [0]


def pump(n, pace=16):
    us = []
    for ks in range(CWN[0], min(28, CWN[0] + n)):
        u = u_cw(ks, pace)
        u["ops"] = ([WL(f"cr{ks-8}")] if ks >= 8 else []) + u["ops"] + (cw_read(ks - LAG, ks - LAG + 1) if ks >= LAG else [])
        us.append(u)
    CWN[0] += len(us)
    return us


def cw_cs(a_, b_):
    o = []
    for ks in range(a_, b_):
        o += [WL(f"cr{ks}")] + [M16(CSA + 4*t, SEL, CW + (ks*2+t)*4, ks == 0) for t in range(2)]
    return o


def wgemm(part, acc, swap, cso, bars, first, extra={}):
    nm = "kvq"[part]

    def reads(n):
        t, i = divmod(n, 4)
        oo = [WV(bars[n]), BAR] if n in bars else []
        return oo + [TR(RW[(first + n) % 8] + rd*2, vVR + i, (2 - part)*32*K + (t >> 2)*16*K + (t & 3)*1024 + rd*256, f"{nm}r{n}") for rd in range(2)]
    main = []
    for n in range(28):
        w_ = RW[(first + n) % 8]
        nxt = reads(n + 4) if n + 4 < 28 else []
        main += [o_ for o_ in nxt if o_[0] != "lds"]
        if n % 2 == 0:
            main.append(WL(f"{nm}r{n+1}"))
        if n % 4 == 0:
            main.append(M16(ACS + 4*(part % 2), SEL, w_, n == 0))
        main.append(M32(acc, w_, XF + n*4, n == 0) if swap else M32(acc, XF + n*4, w_, n == 0))
        main += [o_ for o_ in nxt if o_[0] == "lds"]
        if n == 26:
            main.append(("lds", f"ds_write_b32 {v(vCSA)}, {r(ACS + 4*(part % 2))}{off(cso)}", "csw"))
        main += extra.get(n, [])
    head = []
    for n in range(4):
        head += reads(n)
    return head, main


def phaseA():
    UP, LK = OPT.get("up", 2), OPT.get("lk", 4)
    for j in range(2):
        E(("vm", f"buffer_load_dwordx4 {v(SLC+4*j,4)}, {v(vT)}, {s(SX,4)}, {s(sT0)} offen{off(448*j)}", "sl"))
    A(f"s_mov_b32 {s(sT0)}, {EPO}")
    A(f"s_load_dword {s(sTAG)}, {s(SWS,2)}, {s(sT0)}")
    chunk = lambda t: [u_w(0, t, 16)] + u_x(t)
    BG.extend(chunk(0))
    bg_force()
    o1 = cap(setup1)
    run(o1[:18], bg=False)
    for t in range(1, UP):
        BG.extend(chunk(t))
    spread(o1[18:])
    for t in range(UP, LK):
        BG.extend(chunk(t))
    S0 = SLC + 8
    o = [V(f"v_mov_b32 {v(S0)}, 0"), V(f"v_mov_b32 {v(S0+2)}, 0"), WV("sl"), ST_(1)]
    for k in range(8):
        o += [V(f"v_dot2c_f32_bf16 {v(S0)}, {s(sONES)}, {v(SLC+k)}"), V(f"v_dot2c_f32_bf16 {v(S0+2)}, {v(SLC+k)}, {v(SLC+k)}")]
    for pat in ("quad_perm:[1,0,3,2]", "quad_perm:[2,3,0,1]", "row_half_mirror", "row_mirror"):
        o += [V(f"v_add_f32_dpp {v(S0+k)}, {v(S0+k)}, {v(S0+k)} {pat} row_mask:0xf bank_mask:0xf") for k in (0, 2)]
    o += [V(f"v_mov_b32 {v(S0+1+k)}, {v(S0+k)}") for k in (0, 2)]
    o += [V(f"v_permlane16_swap_b32 {v(S0+k)}, {v(S0+1+k)}") for k in (0, 2)]
    o += [V(f"v_add_f32 {v(S0+k)}, {v(S0+k)}, {v(S0+1+k)}") for k in (0, 2)]
    o += [V(f"v_mul_f32 {v(S0)}, 0x3b124925, {v(S0)}"), V(f"v_mul_f32 {v(S0+2)}, 0x3b124925, {v(S0+2)}"),
          V(f"v_fma_f32 {v(S0+2)}, -{v(S0)}, {v(S0)}, {v(S0+2)}"), V(f"v_max_f32 {v(S0+2)}, 0, {v(S0+2)}"),
          V(f"v_add_f32 {v(S0+2)}, 0x3727c5ac, {v(S0+2)}"), V(f"v_rsq_f32 {v(S0+2)}, {v(S0+2)}"), WL("all"),
          S(f"s_mul_i32 {s(sTAG)}, {s(sTAG)}, 0x9e3779b1"), S(f"s_add_u32 {s(sTAG)}, {s(sTAG)}, 0x7f4a7c15"),
          V(f"v_mov_b32 {v(S0+1)}, {s(sTAG)}"), V(f"v_mov_b32 {v(S0+3)}, {s(sTAG)}"),
          FN(lambda: run([S("s_mov_b32 exec_lo, 15"), S("s_mov_b32 exec_hi, 15"),
                          ("vm", f"buffer_store_dwordx4 {v(S0,4)}, {v(vSO)}, {s(SWS,4)}, {s(sB1)} offen sc1", "zs"), S("s_mov_b64 exec, -1")], bg=False)),
          ("vm", f"buffer_store_dwordx2 {r(vPOI,2)}, {v(vL8)}, {s(SWS,4)}, {s(sKVPW)} offen sc1", "zs")]
    run(o[:4], bg=False)
    spread(o[4:] + cap(setup2))
    stamp(2)

    def kreads(n):
        t, i = divmod(n, 4)
        oo = []
        if i == 0:
            oo += [WV([f"c{t}", "zs"] if t == 5 else f"c{t}"), BAR]
            if t == 5:
                oo.append(FN(lambda: flag_set(0), 8))
        if t == 3:
            oo.append(V(f"v_subrev_u32 {v(vXR+i)}, 0x10000, {v(vXR+i)}"))
        oo.append(RD128(XF + n*4, vXR + i, (t if t < 3 else t-3)*16*K, f"k{n}"))
        oo += [TR(RW[n % 8] + rd*2, vWR + i, t*4096 + rd*256, f"k{n}") for rd in range(2)]
        return oo
    SV = SLC
    sld = f"buffer_load_dwordx4 {v(SV,4)}, {v(vSO)}, {s(SWS,4)}, {s(sSLO)} offen sc1"
    body = {t: (chunk(t + LK) if t + LK < 7 else []) for t in range(7)}
    vq = [u_w(1, t) for t in range(7)]
    free = [t for t in range(7) if not body[t]]
    plan = [int(c_) for c_ in str(OPT.get('plan', 'p0111'))[1:]]
    assert len(plan) == len(free)
    for t, c_ in zip(free, plan):
        for _ in range(c_):
            body[t].append(vq.pop(0))
    body[OPT.get("sb", 3)].append(unit([("vm", sld, "sv")], 4))
    if OPT["warm"]:
        for t in range(7):
            body[t].append(unit([("vm", f"global_load_dword a255, {v(vWM)}, {s(sWP,2)} offset:{896*(t-3)}", "warm")], 7))
    LA = 3
    run(sum([kreads(n) for n in range(LA)], []), bg=False)
    bodies = [[] for _ in range(7)]
    s3 = cap(setup3)
    per = -(-len(s3) // 16)
    for n in range(28):
        t, i = divmod(n, 4)
        nxt = kreads(n + LA) if n + LA < 28 else []
        main = bodies[t]
        main += [o_ for o_ in nxt if o_[0] != "lds"]
        main.append(WL(f"k{n}"))
        if i == 0:
            main.append(M16(ACS, SEL, RW[n % 8], n == 0))
        main.append(M32(ACK, XF + n*4, RW[n % 8], n == 0))
        main += [o_ for o_ in nxt if o_[0] == "lds"]
        main += s3[n*per:(n+1)*per]
        if n == 26:
            main.append(("lds", f"ds_write_b32 {v(vCSA)}, {r(ACS)}", "csw"))
    lab, back = A.label("L_sv"), A.label("L_svb")
    schk = [f"v_xor_b32 {v(SV+1)}, {s(sTAG)}, {v(SV+1)}", f"v_xor_b32 {v(SV+3)}, {s(sTAG)}, {v(SV+3)}", f"v_or_b32 {v(SV+1)}, {v(SV+1)}, {v(SV+3)}",
            f"v_cmp_ne_u32 vcc, 0, {v(SV+1)}"]
    OOL.append([f"{lab}:"] + dbg_mark("sv") + [f"s_mov_b32 {s(sSPIN)}, 0", f"{lab}_t:", f"s_sleep {OPT['slp']}", sld, "s_waitcnt vmcnt(0)"] + schk +
               [f"s_cbranch_vccz {back}"] + spin_tail(f"{lab}_t", back))
    stt = [WV("sv")] + [V(c_) for c_ in schk] + [FN(lambda: (A(f"s_cbranch_vccnz {lab}"), A(f"{back}:")), 4),
           V(f"v_mov_b32 {v(vMEAN)}, {v(SV)}"), V(f"v_mov_b32 {v(vMEAN+1)}, {v(SV+2)}"),
           V(f"v_cndmask_b32 {v(SV)}, {v(SV)}, {v(SV+2)}, {s(sUP,2)}"), ("lds", f"ds_write_b32 {v(vBW)}, {v(SV)}", "st")]
    stt += [RD128(BM + 4*q, vBC, 32*q, "bm") for q in range(4)] + [RD128(BR + 4*q, vBC, 128 + 32*q, "br") for q in range(4)]
    for t in range(6):
        BG.extend(body[t])
        fst("K")
        spread(bodies[t])
    BG.extend(body[6])
    fst("K")
    bg_now()
    weave(bodies[6], [dict(ops=stt, g0=0, g1=3)])
    bg_force()
    stamp(3)
    BG.extend(vq)
    ccl, ccops = flag_check("cc", vCC, vFA, s(sFL))
    hv, mv = wgemm(1, ACV, False, 512, {1: {0: "v1", 8: "v3", 16: "v5", 24: "v6"}, 2: {0: "v2", 12: "v4", 20: "v6"}, 3: {0: "v2", 12: "v5", 24: "v6"}}[OPT.get("vb", 2)], 28,
                   extra={25: [ccl],
                          27: [WL("csw"), BAR, RD128(168, vCSR, 512, "csr2")]})
    ph = phi_ops(ACK, lambda i: (v(vCS, 2), 0), lambda i: (v(BM+2*i, 2), None), lambda i: (v(BR+2*i, 2), None), PK, PK)
    o = [WL("csw"), BAR, RD128(168, vCSR, 0, "csr"), ("bg", 1), WL("csr")] + cs_sum(vCS) + ph[:36] + [("bg", 1)] + ph[36:70] + [("bg", 1)] + hv + ph[70:]
    run(o, bg=False)
    stamp(4)
    BG.extend([u_w(2, t) for t in range(7)])
    bg_now(OPT.get("dq", 100))
    pre = [S("s_mov_b32 vcc_lo, 0x30000000"), S("s_mov_b32 vcc_hi, 0x30000000"), V(f"v_mov_b32 {v(vT+1)}, {s(sONES)}")] + cap(setup4)
    weave(mv, [dict(ops=pre, g0=0, g1=24, greedy=True)], report=REP("V"))
    stamp(5)
    o = [("bg", 1), WL("csr2")] + cs_sum(vCS)
    o += phi_ops(ACV, lambda i: (v(vCS, 2), 0), lambda i: (v(BM+2*i, 2), None), lambda i: (v(BR+2*i, 2), None), PV, None)
    o += [V(f"v_cndmask_b32 {v(PV+i)}, {v(PV+i)}, {v(vT+1)}, vcc") for i in range(8)]
    o += [M32(ACK, PK, PV, True), M32(ACK, PK + 4, PV + 4), ("bg", 1)]
    o += [WR128(vKW, ACK + 4*q, q*1024, "kw") for q in range(4)]
    o += [WL("kw"), BAR]
    o += [RD128(ACV + 4*w, vKR, w*4096, f"kr{w}") for w in range(4)] + [WL("kr1")]
    o += [V(f"v_pk_add_f32 {v(ACV+k,2)}, {v(ACV+k,2)}, {v(ACV+4+k,2)}") for k in (0, 2)]
    o += [WL("kr3")]
    o += [V(f"v_pk_add_f32 {v(ACV+8+k,2)}, {v(ACV+8+k,2)}, {v(ACV+12+k,2)}") for k in (0, 2)]
    o += [V(f"v_pk_add_f32 {v(ACV+k,2)}, {v(ACV+k,2)}, {v(ACV+8+k,2)}") for k in (0, 2)]
    o += [V(f"v_cvt_pk_bf16_f32 {v(ACV)}, {v(ACV)}, {v(ACV+1)}"), V(f"v_cvt_pk_bf16_f32 {v(ACV+1)}, {v(ACV+2)}, {v(ACV+3)}")]
    o += [("vm", f"buffer_store_dwordx2 {v(ACV,2)}, {v(vL8)}, {s(SWS,4)}, {s(sKVPW)} offen sc1", "kvst")]
    run(o, bg=False)
    stamp(6)
    bg_force()
    hq, mq = wgemm(2, ACK, True, 1024, {0: "q3", 16: "q5", 24: "q6"}, 0,
                   extra={21: [st4(s(sHF), 0, "ph")], 23: [st4(s(sHF), 1024, "ph")],
                          25: [S("s_mov_b64 exec, 0xffff"), st4(s(sSTW), 0, "ph"), S("s_mov_b64 exec, -1")],
                          27: [WL("csw"), BAR, RD128(168, vCSR, 1024, "csr3")]})
    run(ccops + hq, bg=False)
    stamp(7)
    BG.extend([u_wo(g_) for g_ in range(7)] + [u_xres()])
    bg_now(0)
    weave(mq, [dict(ops=[S(f"s_add_u32 {s(sM+1)}, {s(sG1)}, 4096"), S(f"s_mul_i32 {s(sT2)}, {s(sKH)}, {8*28*128}")], g0=6, g1=27)], report=REP("Q"))
    stamp(8)


def u_wo(g):
    return unit([S(f"s_lshl4_add_u32 m0, {s(sM+8+g)}, {s(sWOL)}"), S(f"s_mul_i32 {s(sB0)}, {s(sM+8+g)}, 112"), S(f"s_add_u32 {s(sB0)}, {s(sB0)}, {s(sDWK)}"),
                 DMA(vRO, SWO, s(sB0), 0, "wo"), DMA(vRO+1, SWO, s(sB0), 1024, "wo")], OPT.get("pw", 19))


def u_xres():
    return unit([S(f"s_lshl_b32 {s(sB0)}, {s(sW)}, 11"), S(f"s_add_u32 m0, {s(sB0)}, {XIMG}"), S("s_nop 0"),
                 DMA(vRO, SX, s(sXB), 0, "wo"), DMA(vRO+1, SX, s(sXB), 1024, "wo")], 16)


WOF = 32
G2 = 160
ACB = 224


def phaseQ():
    ACQ, QB, QT, PQ, KS, G1 = 176, 192, 208, 160, 168, 224
    G = [dict(loads=[f"buffer_load_dwordx2 {v(G1+4*g+2*j,2)}, {v(vL8)}, {s(SWS,4)}, {s(sG1) if g < 4 else s(sM+1)} offen{off(((2*g+j) % 8)*512)} sc1" for j in range(2)],
              regs=list(range(G1+4*g, G1+4*g+4))) for g in range(8)]
    lg_ = gather_loads("ga", G)
    rest = list(BG)
    BG.clear()
    print("wo units left after q:", len(rest)) if OPT["rep"] else None
    BG.extend([unit(lg_[2*g:2*g+2], 8) for g in range(8)] + rest)
    bg_now(OPT.get("dg1", 60))
    o = [WL("csr3")] + cs_sum(168) + [("lds", f"ds_write_b32 {v(vBW)}, {v(168)}", "st")]
    o += [RD128(QB + 4*q, vBC, 32*q, "bm") for q in range(4)] + [FN(lambda: None, 60), WL("bm")]
    o += phi_ops(ACQ, lambda i: (v(QB+2*i, 2), None), lambda i: (v(vMEAN, 2), 0), lambda i: (v(vMEAN, 2), 1), PQ, QT)
    o += [V(f"v_cndmask_b32 {v(PQ+i)}, {v(PQ+i)}, 0, {s(sUP,2)}") for i in (6, 7)]
    run(o)
    BG.extend(pump(OPT.get("n0", 1)))
    print("units forced before g1:", len(BG)) if OPT["rep"] else None
    bg_force()
    stamp(9)
    BG.extend(pump(OPT.get("n1", 4)))
    top, end = refresh("g1", G)
    o = top + [V(f"v_mov_b32 {v(KS+k)}, 0") for k in range(4)]
    for g in range(8):
        o.append(WV(f"ga{g}"))
        for j in range(2):
            for k in range(2):
                o += [V(f"v_dot2c_f32_bf16 {v(KS+2*k)}, {s(sMK)}, {v(G1+4*g+2*j+k)}"), V(f"v_dot2c_f32_bf16 {v(KS+2*k+1)}, {s(sMK+1)}, {v(G1+4*g+2*j+k)}")]
    o += [V(f"v_cmp_u_f32 vcc, {v(KS)}, {v(KS+2)}"),
          V(f"v_cvt_pk_bf16_f32 {v(KS)}, {v(KS)}, {v(KS+1)}"), V(f"v_cvt_pk_bf16_f32 {v(KS+1)}, {v(KS+2)}, {v(KS+3)}")] + end
    o += [ST_(10), ("lds", f"ds_write_b64 {v(vXW)}, {v(KS,2)}", "kf"), ("bg", 1), WV("ph"), WL("kf"), BAR,
          RD128(QT, vXR2, 0, "k0"), RD128(QT + 4, vXR2, 1024, "k1"), ("bg", 1),
          WL("k0"), M32(ACQ, QT, PQ, True), WL("k1"), M32(ACQ, QT + 4, PQ + 4), ("bg", 1),
          V(f"v_add_f32 {v(vT)}, {s(sEPS)}, {v(ACQ+14)}"), V(f"v_rcp_f32 {v(vT)}, {v(vT)}")]
    X3 = lambda d, a_, b_, c_: V(f"v_bitop3_b32 {d}, {a_}, {b_}, {c_} bitop3:0x96")
    for hf in range(2):
        R_ = range(4*hf, 4 + 3*hf)
        o += [V(f"v_pk_mul_f32 {v(ACQ+2*i,2)}, {v(ACQ+2*i,2)}, {v(vT,2)} op_sel_hi:[1,0]") for i in R_]
        o += [V(f"v_cvt_pk_bf16_f32 {v(PQ+i)}, {v(ACQ+2*i)}, {v(ACQ+2*i+1)}") for i in R_]
        if hf:
            o += [X3(v(PQ+7), v(PQ), v(PQ+1), s(sTAG)), X3(v(PQ+7), v(PQ+7), v(PQ+2), v(PQ+3)), X3(v(PQ+7), v(PQ+7), v(PQ+4), v(PQ+5)),
                  V(f"v_xor_b32 {v(PQ+7)}, {v(PQ+7)}, {v(PQ+6)}")]
        o += [("vm", f"buffer_store_dwordx4 {v(PQ+4*hf,4)}, {v(vL16)}, {s(SWS,4)}, {s(sOW)} offen{off(1024*hf)} sc1", "ost")]
    run(o, bg=False)
    stamp(11)
    A(f"s_cmp_eq_u32 {s(sIDLE)}, 1")
    A("s_cbranch_scc1 L_helper")
    bg_force()


def helper():
    L = ["L_helper:"]
    a_ = L.append
    SH = SQKV
    a_(f"s_lshl1_add_u32 {s(sT0)}, {s(sRB)}, {s(sP)}")
    a_(f"s_lshl2_add_u32 {s(sT0)}, {s(sT0)}, {s(sW)}")
    a_(f"s_cmp_ge_u32 {s(sT0)}, 112")
    a_("s_cbranch_scc1 L_help2")
    a_(f"s_lshr_b32 {s(sT1)}, {s(sT0)}, 1")
    a_(f"s_lshl_b32 {s(sT2)}, {s(sT1)}, 7")
    a_(f"s_sub_u32 {s(sT3)}, {s(sT2)}, {28*128 - 1024}")
    a_(f"s_cmp_ge_u32 {s(sT1)}, 28")
    a_(f"s_cselect_b64 {s(SH,2)}, {s(SWU,2)}, {s(SWG,2)}")
    a_(f"s_cselect_b32 {s(SH+2)}, {s(SWU+2)}, {s(SWG+2)}")
    a_(f"s_cselect_b32 {s(sT2)}, {s(sT3)}, {s(sT2)}")
    a_(f"s_mul_i32 {s(sT3)}, {s(sKH)}, {224*3584}")
    a_(f"s_add_u32 {s(sT2)}, {s(sT2)}, {s(sT3)}")
    a_(f"v_lshrrev_b32 {v(vT)}, 3, {v(vLANE)}")
    a_(f"v_and_b32 {v(vT+1)}, 7, {v(vLANE)}")
    a_(f"v_lshl_add_u32 {v(vT+2)}, {v(vT+1)}, 3, {v(vT)}")
    a_(f"v_lshlrev_b32 {v(vT+2)}, 3, {v(vT+2)}")
    a_(f"v_mul_u32_u24 {v(vT)}, 3584, {v(vT)}")
    a_(f"v_lshl_add_u32 {v(vT)}, {v(vT+1)}, 4, {v(vT)}")
    for i in range(28):
        a_(f"buffer_load_dwordx4 {v(32+4*i,4)}, {v(vT)}, {s(SH,4)}, {s(sT2)} offen")
        a_(f"s_add_u32 {s(sT2)}, {s(sT2)}, {8*3584}")
    AC = 144
    for k in range(8):
        a_(f"v_mov_b32 {v(AC+k)}, 0")
    for i in range(28):
        if i % 4 == 0:
            a_(f"s_waitcnt vmcnt({24-i})")
        for k in range(4):
            a_(f"v_dot2c_f32_bf16 {v(AC+2*k)}, {s(sMK)}, {v(32+4*i+k)}")
            a_(f"v_dot2c_f32_bf16 {v(AC+2*k+1)}, {s(sMK+1)}, {v(32+4*i+k)}")
    for j in range(4):
        a_(f"v_permlane32_swap_b32 {v(AC+j)}, {v(AC+4+j)}")
    for j in range(4):
        a_(f"v_add_f32 {v(AC+j)}, {v(AC+j)}, {v(AC+4+j)}")
    for j in range(2):
        a_(f"v_permlane16_swap_b32 {v(AC+j)}, {v(AC+2+j)}")
    for j in range(2):
        a_(f"v_add_f32 {v(AC+j)}, {v(AC+j)}, {v(AC+2+j)}")
    for j in range(2):
        a_(f"v_add_f32_dpp {v(AC+j)}, {v(AC+j)}, {v(AC+j)} row_ror:8 row_mask:0xf bank_mask:0xf")
    a_("s_mov_b32 vcc_lo, 0xff00ff00")
    a_("s_mov_b32 vcc_hi, 0xff00ff00")
    a_(f"v_cndmask_b32 {v(AC)}, {v(AC)}, {v(AC+1)}, vcc")
    a_(f"v_mov_b32 {v(AC+1)}, {s(sTAG)}")
    a_(f"s_mul_i32 {s(sT3)}, {s(sKH)}, 56")
    a_(f"s_add_u32 {s(sT1)}, {s(sT1)}, {s(sT3)}")
    a_(f"s_lshl_b32 {s(sT1)}, {s(sT1)}, 9")
    a_(f"s_add_u32 {s(sT1)}, {s(sT1)}, {CSW}")
    a_(f"buffer_store_dwordx2 {v(AC,2)}, {v(vT+2)}, {s(SWS,4)}, {s(sT1)} offen sc1")
    a_("L_help2:")
    if OPT.get("hw", 1):
        a_(f"s_mul_i32 {s(sT0)}, {s(sT0)}, {98*128}")
        a_(f"v_min_u32 {v(vT)}, 48, {v(vLANE)}")
        a_(f"v_lshlrev_b32 {v(vT)}, 8, {v(vT)}")
        a_(f"buffer_load_dword {v(32)}, {v(vT)}, {s(SWD,4)}, {s(sT0)} offen")
        a_(f"buffer_load_dword {v(33)}, {v(vT)}, {s(SWD,4)}, {s(sT0)} offen offset:128")
    a_(f"s_lshl3_add_u32 {s(sB0)}, {s(sRB)}, {s(sP)}")
    a_(f"s_lshl2_add_u32 {s(sB0)}, {s(sB0)}, {s(sW)}")
    a_(f"s_mul_i32 {s(sB0)}, {s(sB0)}, {14*K}")
    a_(f"s_add_u32 {s(sB0)}, {s(sB0)}, {GG + 224*K}")
    a_(f"s_lshl1_add_u32 {s(sB1)}, {s(sRB)}, {s(sP)}")
    a_(f"s_lshl_b32 {s(sB1)}, {s(sB1)}, 7")
    a_(f"s_add_u32 {s(sB1)}, {s(sB1)}, {PFL}")
    for k in range(4):
        a_(f"v_mov_b32 {v(152+k)}, {s(sTAG)}")
    a_(f"s_mov_b32 {s(sT2)}, 0")
    a_("L_help3:")
    for i in range(14):
        a_(f"buffer_store_dwordx4 {r(vPOI,4)}, {v(vL16)}, {s(SWS,4)}, {s(sB0)} offen sc1")
        a_(f"s_add_u32 {s(sB0)}, {s(sB0)}, {(112-13)*K if i == 13 else K}")
    a_("s_waitcnt vmcnt(0)")
    a_("s_barrier")
    a_(f"s_cmp_lg_u32 {s(sW)}, 0")
    a_("s_cbranch_scc1 L_help4")
    a_("s_mov_b64 exec, 0xff")
    a_(f"buffer_store_dwordx4 {v(152,4)}, {v(vL16)}, {s(SWS,4)}, {s(sB1)} offen sc1")
    a_("s_mov_b64 exec, -1")
    a_("L_help4:")
    a_(f"s_add_u32 {s(sB1)}, {s(sB1)}, 4096")
    a_(f"s_add_u32 {s(sT2)}, {s(sT2)}, 1")
    a_(f"s_cmp_lt_u32 {s(sT2)}, 2")
    a_("s_cbranch_scc1 L_help3")
    a_("s_branch L_fin")
    OOL.insert(0, L)


def phaseB():
    def grp(i):
        b = G2 + i*8
        return dict(loads=[f"buffer_load_dwordx4 {v(b+4*st,4)}, {v(vL16)}, {s(SWS,4)}, {s(sG2+i)} offen{off(1024*st)} sc1" for st in range(2)],
                    regs=list(range(b, b+8)), xor=True, pre=[V(f"v_mov_b32 {v(b+7)}, 0")],
                    compute=[M32(ACB + 16*nt, WOF + ((i*2+st)*2+nt)*4, b + 4*st, i == 0 and st == 0 and nt == 1) for st in range(2) for nt in (1, 0)])
    GE = [grp(i) for i in range(NEARLY)]
    GL = [grp(i) for i in range(NEARLY, 8)]
    P2 = OPT.get("p2", 18)
    NA = OPT.get("na", 2)
    le = gather_loads("ge", GE)
    ll = gather_loads("gl", GL)
    BG.extend(pump(NA, P2) + [unit(le[2*i:2*i+2], 16) for i in range(NEARLY)])
    bg_now(100)
    o = [WV("wo"), BAR]
    o += [("lds", f"ds_read_b64 {v(ACB+16+2*q,2)}, {v(vXA)}{off(16*q)}", "xr") for q in range(4)]
    for i in range(8):
        for st in range(2):
            for nt in range(2):
                for rd in range(2):
                    o += [TR(WOF + ((i*2+st)*2+nt)*4 + rd*2, (4 if (st == 1 and rd == 1) else 2) + nt, (28*HORD[i] + 16*st + 8*rd)*128, "wr"), FN(lambda: None, 4)]
        if i == 0:
            o += [V(f"v_subrev_u32 {v(2+j)}, {s(sT2)}, {v(2+j)}") for j in range(4)]
    o += [WL("xr")]
    for k in range(8):
        o += [V(f"v_lshlrev_b32 {v(ACB+2*k)}, 16, {v(ACB+16+k)}"), V(f"v_and_b32 {v(ACB+2*k+1)}, 0xffff0000, {v(ACB+16+k)}")]
    o += [V(f"v_add_u32 {v(vT+2)}, {s(sW4K)}, {v(vL16)}"), V(f"v_add_u32 {v(vT+2)}, {XB}, {v(vT+2)}"),
          V(f"v_xor_b32 {v(vT+3)}, 4096, {v(vT+2)}"), V(f"v_lshrrev_b32 {v(6)}, 1, {v(vL16)}")]
    run(o)
    print("units left in W2:", len(BG)) if OPT["rep"] else None
    bg_force()
    NB = OPT.get("nb", 1)
    BG.extend(pump(NB))
    bg_force()
    stamp(12)
    BG.extend([unit(ll[2*i:2*i+2], 16) for i in range(3)] + pump(OPT.get("n2", 4)))
    run([WL("wr")] + site_check("ge0", GE[0], GE[1:]), bg=False)
    bg_now()
    main, streams = [], []
    for i, G in enumerate(GE):
        main += G["compute"]
        if i + 1 < NEARLY:
            streams.append(dict(ops=site_check(f"ge{i+1}", GE[i+1], GE[i+2:]), g0=4*i + 1, g1=4*i + 4))
    weave(main, streams, report=REP("ge"))
    bg_force()
    gather_finish("gl", GL)
    stamp(13)
    BG.extend(pump(2))
    T0, HP, S0 = G2, G2 + 16, G2 + 24
    o = [("bg", 1)] + [WR128(vT + 2, ACB + 16 + 4*q, q*1024, "bw") for q in range(4)]
    o += [WL("bw"), BAR]
    o += [RD128(T0 + 4*q, vT + 3, q*1024, f"br{q >> 1}") for q in range(4)] + [("bg", 1)]
    o += [V(f"v_mov_b32 {v(S0+k)}, 0") for k in range(2)]
    for st in range(2):
        o += [WL(f"br{st}")]
        o += [V(f"v_pk_add_f32 {v(ACB+8*st+2*k,2)}, {v(ACB+8*st+2*k,2)}, {v(T0+8*st+2*k,2)}") for k in range(4)]
        o += [V(f"v_cvt_pk_bf16_f32 {v(HP+4*st+k)}, {v(ACB+8*st+2*k)}, {v(ACB+8*st+2*k+1)}") for k in range(4)]
        o += [("vm", f"buffer_store_dwordx4 {v(HP+4*st,4)}, {v(vL16)}, {s(SWS,4)}, {s(sHW)} offen{off(1024*st)} sc1", "hst")]
    o += [ST_(14)]
    run(o, bg=False)
    o = []
    for k in range(8):
        o += [V(f"v_dot2c_f32_bf16 {v(S0)}, {s(sONES)}, {v(HP+k)}"), V(f"v_dot2c_f32_bf16 {v(S0+1)}, {v(HP+k)}, {v(HP+k)}")]
    o += [V(f"v_mov_b32 {v(S0+2+k)}, {v(S0+k)}") for k in range(2)]
    o += [V(f"v_permlane32_swap_b32 {v(S0+k)}, {v(S0+2+k)}") for k in range(2)]
    o += [V(f"v_pk_add_f32 {v(S0,2)}, {v(S0,2)}, {v(S0+2,2)}")]
    return o, FN(lambda: run([WV("hst"), S("s_mov_b32 exec_hi, 0"),
                              ("vm", f"buffer_store_dwordx2 {v(S0,2)}, {v(6)}, {s(SWS,4)}, {s(sSTW)} offen sc1", "sst"), S("s_mov_b64 exec, -1")], bg=False))


AC0, AC1 = 32, 64
CS = 96
BRG = 128
SC = 152
ET = 160
RES = 168
SP = 176
vL8c = 6
vHR = 7
vDO = 2
vDX, vDY = 10, 16
vCL = SP + 60
vRS = 14
vTAG, vHF, vGO = 24, 25, 26
TLO = {0: HI, 1: HI + 32*K, 2: 28*K, 3: 0}
DWE = [256 + 224, 256 + 240] + [SP + 16*i for i in range(5)]
DW = DWE + [256 + 112 + 16*i for i in range(7)]
DSL = {0: 64, 1: 80, 2: 96, 3: 112, 4: 64, 5: 80, 6: 96, 7: 128, 8: 112, 9: 64, 10: 80, 11: 32, 12: 48, 13: 96}


sHT, sDT, sGT, sSO = sM + 1, sM + 8, sG2, sG2 + 7


def u_dw(m):
    return [unit([S(f"s_add_u32 m0, {s(sW4K)}, {DSL[m]*K}"), S(f"s_add_u32 {s(sB0)}, {s(sDT+(m >> 1))}, {(m & 1)*32*896}"),
                  DMA(vDO, SWD, s(sB0), 0, f"dw{m}")], OPT.get("pd", 9))] + \
        [unit([DMA(vDO+i, SWD, s(sB0), 1024*i, f"dw{m}")], OPT.get("pd", 9)) for i in range(1, 4)]


def dw_read(m):
    ad, o_ = (vDX, (DSL[m]-32)*K) if DSL[m] < 96 else (vDY, (DSL[m]-96)*K)
    return [WV(f"dw{m}")] + [TR(DW[m] + nt*4 + rd*2, ad + nt, o_ + rd*1024, f"dr{m}") for nt in range(4) for rd in range(2)]


def dw_next(wait, ms):
    return [WL(wait), FN(lambda: [BG.extend(u_dw(m)) for m in ms])]


def need_waited(tag):
    assert tag in WAITED, tag


def hh_store(acc, t, rt):
    return ("vm", f"buffer_store_dwordx4 {v(acc+16*t,4)}, {v(vL16)}, {s(SWS,4)}, {s(sT3)} offen{off(1024*t)} sc1", f"gst{rt}")


def hf_set(stage, rt):
    return [WV(f"gst{rt}"), S(f"s_add_u32 {s(sT2)}, {s(sHF)}, {stage*131072}"),
            FN(lambda: (A("s_mov_b32 exec_hi, 0"), E(("vm", f"buffer_store_dword {v(vTAG)}, {v(vL8c)}, {s(SWS,4)}, {s(sT2)} offen sc1", "hf")), A("s_mov_b64 exec, -1")), 8)]


def epilogue_ops(acc, rt):
    c = SC + 4*(rt & 1)
    mean, k1, k2, vp = c, c + 1, c + 2, c + 3
    ops = [S(f"s_add_u32 {s(sT3)}, {s(sGW)}, {rt*112*K}")]
    for t in range(2):
        for half in range(2):
            idx = [4*half + i for i in range(4)]
            g = [acc + 16*t + i for i in idx]
            u = [acc + 16*t + 8 + i for i in idx]
            cg = [CS + 16*t + i for i in idx]
            cu = [CS + 16*t + 8 + i for i in idx]
            T = [ET + 4*half + i for i in range(4)]
            ops += [V(f"v_fmac_f32 {v(g[i])}, {v(mean)}, {v(cg[i])}") for i in range(4)]
            ops += [V(f"v_mul_f32 {v(T[i])}, {v(g[i])}, {v(g[i])}") for i in range(4)]
            ops += [V(f"v_fma_f32 {v(T[i])}, {v(T[i])}, {v(k2)}, {v(k1)}") for i in range(4)]
            ops += [V(f"v_mul_f32 {v(T[i])}, {v(T[i])}, {v(g[i])}") for i in range(4)]
            for i in range(4):
                ops += [V(f"v_exp_f32 {v(T[i])}, {v(T[i])}"), V(f"v_fmac_f32 {v(u[i])}, {v(mean)}, {v(cu[i])}")]
            ops += [V(f"v_fma_f32 {v(T[i])}, {v(T[i])}, {v(vp)}, {v(vp)}") for i in range(4)]
            for i in range(4):
                ops += [V(f"v_rcp_f32 {v(T[i])}, {v(T[i])}"), V(f"v_mul_f32 {v(u[i])}, {v(u[i])}, {v(g[i])}")]
            ops += [V(f"v_mul_f32 {v(u[i])}, {v(u[i])}, {v(T[i])}") for i in range(4)]
            ops += [V(f"v_cvt_pk_bf16_f32 {v(acc+16*t+2*half+i)}, {v(u[2*i])}, {v(u[2*i+1])}") for i in range(2)]
        ops += [hh_store(acc, t, rt)] + ([FN(lambda: need_waited(f'p{rt}'))] if rt >= 2 else [])
    return ops


def epilogue_pk(acc, rt):
    c = SC + 4*(rt & 1)
    c01, c23 = v(c, 2), v(c + 2, 2)
    ops = [S(f"s_add_u32 {s(sT3)}, {s(sGW)}, {rt*112*K}")]
    N = None
    for t in range(2):
        g = [v(acc + 16*t + 2*i, 2) for i in range(4)]
        u = [v(acc + 16*t + 8 + 2*i, 2) for i in range(4)]
        cg = [v(CS + 16*t + 2*i, 2) for i in range(4)]
        cu = [v(CS + 16*t + 8 + 2*i, 2) for i in range(4)]
        T = [v(ET + 2*i, 2) for i in range(4)]
        ops += [pkop("v_pk_fma_f32", g[i], [(c01, 0), (cg[i], N), (g[i], N)]) for i in range(4)]
        ops += [pkop("v_pk_mul_f32", T[i], [(g[i], N), (g[i], N)]) for i in range(4)]
        ops += [pkop("v_pk_fma_f32", T[i], [(T[i], N), (c23, 0), (c01, 1)]) for i in range(4)]
        ops += [pkop("v_pk_mul_f32", T[i], [(T[i], N), (g[i], N)]) for i in range(4)]
        ops += [V(f"v_exp_f32 {v(ET+i)}, {v(ET+i)}") for i in range(8)]
        ops += [pkop("v_pk_fma_f32", u[i], [(c01, 0), (cu[i], N), (u[i], N)]) for i in range(4)]
        ops += [pkop("v_pk_fma_f32", T[i], [(T[i], N), (c23, 1), (c23, 1)]) for i in range(4)]
        ops += [V(f"v_rcp_f32 {v(ET+i)}, {v(ET+i)}") for i in range(8)]
        ops += [pkop("v_pk_mul_f32", u[i], [(u[i], N), (g[i], N)]) for i in range(4)]
        ops += [pkop("v_pk_mul_f32", u[i], [(u[i], N), (T[i], N)]) for i in range(4)]
        ops += [V(f"v_cvt_pk_bf16_f32 {v(acc+16*t+i)}, {v(acc+16*t+8+2*i)}, {v(acc+16*t+9+2*i)}") for i in range(4)]
        ops += [hh_store(acc, t, rt)] + ([FN(lambda: need_waited(f'p{rt}'))] if rt >= 2 else [])
    return ops


RING_D = [256 + 4*i for i in range(28)]
NRD = len(RING_D)


def d_load(n):
    o = [V(f"v_add_u32 {v(vGO)}, {112*K}, {v(vGO)}")] if (n % 14 == 0 and n) else []
    o.append(("vm", f"buffer_load_dwordx4 {r(RING_D[n % NRD],4)}, {v(vGO)}, {s(SWS,4)}, {s(sGT + (n % 14)//2)} offen{off((n % 2)*2048)} sc1", f"d{n}"))
    return o


def phaseC(stcalc, ststore):
    def addrh():
        A(f"v_add_u32 {v(vHR)}, {HI}, {v(vL16)}")
        A(f"v_add_u32 {v(vHR+1)}, {s(sW7K)}, {v(vHR)}")
        A(f"s_mul_i32 {s(sT0)}, {s(sRB)}, {112*K}")
        A(f"s_add_u32 {s(sT0)}, {s(sT0)}, {HH_}")
        A(f"s_lshl_b32 {s(sT1)}, {s(sROT)}, 10")
        A(f"s_add_u32 {s(sT1)}, {s(sT1)}, {s(sW7K)}")
        for c in range(7):
            A(f"s_add_u32 {s(sT2)}, {s(sT1)}, {c*K}")
            A(f"s_sub_u32 {s(sT3)}, {s(sT2)}, {28*K}")
            A(f"s_cselect_b32 {s(sT2)}, {s(sT2)}, {s(sT3)}")
            A(f"s_add_u32 {s(sHT+c)}, {s(sT2)}, {s(sT0)}")

    def addrd():
        A(f"s_mul_i32 {s(sDWK)}, {s(sW)}, {448*896}")
        A(f"s_lshl_b32 {s(sT0)}, {s(sRB)}, 4")
        A(f"s_add_u32 {s(sT0)}, {s(sT0)}, {s(sW)}")
        A(f"s_mul_i32 {s(sT0)}, {s(sT0)}, {28*K}")
        A(f"s_lshl_b32 {s(sT1)}, {s(sP)}, 8")
        A(f"s_add_u32 {s(sT0)}, {s(sT0)}, {s(sT1)}")
        A(f"s_add_u32 {s(sT0)}, {s(sT0)}, {GG}")
        if OPT["rot"] == 2:
            A(f"s_lshr_b32 {s(sT1)}, {s(sRB)}, 2")
            A(f"s_lshl1_add_u32 {s(sT1)}, {s(sT1)}, {s(sP)}")
        elif OPT["rot"]:
            A(f"s_and_b32 {s(sT1)}, {s(sRB)}, 3")
            A(f"s_lshl1_add_u32 {s(sT1)}, {s(sT1)}, {s(sCB)}")
            A(f"s_sub_u32 {s(sT2)}, {s(sT1)}, 7")
            A(f"s_cselect_b32 {s(sT1)}, {s(sT1)}, {s(sT2)}")
            A(f"s_lshr_b32 {s(sT2)}, {s(sRB)}, 3")
            A(f"s_add_u32 {s(sT1)}, {s(sT1)}, {s(sT2)}")
        else:
            A(f"s_mov_b32 {s(sT1)}, 0")
        for j in range(7):
            if j:
                A(f"s_add_u32 {s(sT1)}, {s(sT1)}, 1")
            A(f"s_cmp_eq_u32 {s(sT1)}, 7")
            A(f"s_cselect_b32 {s(sT1)}, 0, {s(sT1)}")
            A(f"s_mul_i32 {s(sDT+j)}, {s(sT1)}, {64*896}")
            A(f"s_add_u32 {s(sDT+j)}, {s(sDT+j)}, {s(sDWK)}")
            A(f"s_lshl_b32 {s(sT2)}, {s(sT1)}, 12")
            A(f"s_add_u32 {s(sGT+j)}, {s(sT2)}, {s(sT0)}")
        A(f"v_lshrrev_b32 {v(vDO)}, 3, {v(vLANE)}")
        A(f"v_mul_u32_u24 {v(vDO)}, 896, {v(vDO)}")
        A(f"v_and_b32 {v(vDO+1)}, 0x70, {v(vL16)}")
        A(f"v_lshrrev_b32 {v(vDO+2)}, 4, {v(vLANE)}")
        A(f"v_lshlrev_b32 {v(vDO+2)}, 5, {v(vDO+2)}")
        A(f"v_xor_b32 {v(vDO+1)}, {v(vDO+1)}, {v(vDO+2)}")
        A(f"s_lshl_b32 {s(sT0)}, {s(sCB)}, 7")
        A(f"v_add3_u32 {v(vDO)}, {v(vDO)}, {v(vDO+1)}, {s(sT0)}")
        for i in range(1, 4):
            A(f"v_add_u32 {v(vDO+i)}, {i*(7168-1024)}, {v(vDO)}")
    def addr0():
        A(f"s_lshl_b32 {s(sT0)}, {s(sRB)}, 2")
        A(f"s_add_u32 {s(sT0)}, {s(sT0)}, {s(sW)}")
        A(f"s_mul_i32 {s(sT0)}, {s(sT0)}, {14*256}")
        A(f"s_add_u32 {s(sSO)}, {s(sT0)}, {ST}")
        A(f"v_and_b32 {v(vT+2)}, 31, {v(vLANE)}")
        A(f"s_lshl_b32 {s(sT0)}, {s(sW)}, 8")
        A(f"s_add_u32 {s(sT0)}, {s(sT0)}, {MISC}")
        A(f"v_lshl_add_u32 {v(9)}, {v(vLANE)}, 2, {s(sT0)}")
        A(f"v_bfe_u32 {v(vCL)}, {v(vLANE)}, 4, 1")
        A(f"v_mul_u32_u24 {v(vCL)}, 14336, {v(vCL)}")
        A(f"v_lshrrev_b32 {v(vDX)}, 5, {v(vLANE)}")
        A(f"v_lshl_add_u32 {v(vCL)}, {v(vDX)}, 7, {v(vCL)}")
        A(f"v_and_b32 {v(vDX)}, 15, {v(vLANE)}")
        A(f"v_lshl_add_u32 {v(vCL)}, {v(vDX)}, 3, {v(vCL)}")
        A(f"s_lshl2_add_u32 {s(sT0)}, {s(sFB)}, {s(sW)}")
        A(f"s_lshl_b32 {s(sT0)}, {s(sT0)}, 8")
        A(f"s_add_u32 {s(sKVPW)}, {s(sT0)}, {CSW}")
        A(f"s_add_u32 {s(sOW)}, {s(sT0)}, {CSW + 28672}")
        A(f"v_lshlrev_b32 {v(vT+2)}, 4, {v(vT+2)}")
        A(f"v_add_u32 {v(vT+2)}, {MISC + 2048}, {v(vT+2)}")
        A(f"v_lshl_add_u32 {v(vT+3)}, {s(sW)}, 9, {v(vT+2)}")
        A(f"v_bfe_u32 {v(vRS)}, {v(vLANE)}, 2, 2")
        A(f"s_lshl_b32 {s(sT0)}, {s(sCB)}, 2")
        A(f"s_add_u32 {s(sT0)}, {s(sT0)}, 28")
        A(f"s_sub_u32 {s(sT0)}, {s(sT0)}, {s(sROT)}")
        A(f"v_add_u32 {v(vRS)}, {s(sT0)}, {v(vRS)}")
        A(f"v_subrev_u32 {v(vDX)}, 28, {v(vRS)}")
        A(f"v_min_u32 {v(vRS)}, {v(vRS)}, {v(vDX)}")
        A(f"v_lshlrev_b32 {v(vRS)}, 10, {v(vRS)}")
        A(f"v_and_b32 {v(vDX)}, 1, {v(vLANE)}")
        A(f"v_lshl_add_u32 {v(vRS)}, {v(vDX)}, 9, {v(vRS)}")
        A(f"v_and_b32 {v(vDX)}, 0x30, {v(vLANE)}")
        A(f"v_add_u32 {v(vRS)}, {v(vDX)}, {v(vRS)}")
        A(f"v_and_b32 {v(vDX)}, 2, {v(vLANE)}")
        A(f"v_lshl_add_u32 {v(vRS)}, {v(vDX)}, 2, {v(vRS)}")
        A(f"s_lshl2_add_u32 {s(sT0)}, {s(sP)}, {s(sW)}")
        A(f"s_lshl_b32 {s(sT0)}, {s(sT0)}, 6")
        A(f"s_add_u32 {s(sT0)}, {s(sT0)}, {HI}")
        A(f"v_add_u32 {v(vRS)}, {s(sT0)}, {v(vRS)}")
        A(f"v_bfe_u32 {v(vDX)}, {v(vLANE)}, 2, 3")
        A(f"v_lshrrev_b32 {v(vDX+1)}, 5, {v(vLANE)}")
        A(f"v_lshl_add_u32 {v(vDX)}, {v(vDX+1)}, 4, {v(vDX)}")
        A(f"v_lshlrev_b32 {v(vDX)}, 7, {v(vDX)}")
        A(f"v_bfe_u32 {v(vDX+1)}, {v(vLANE)}, 3, 2")
        A(f"v_lshl_add_u32 {v(vDX)}, {v(vDX+1)}, 5, {v(vDX)}")
        A(f"v_and_b32 {v(vDX+1)}, 3, {v(vLANE)}")
        A(f"v_lshl_add_u32 {v(vDX)}, {v(vDX+1)}, 3, {v(vDX)}")
        A(f"s_add_u32 {s(sT0)}, {s(sW4K)}, {32*K}")
        A(f"v_add_u32 {v(vDX)}, {s(sT0)}, {v(vDX)}")
        for i in range(1, 4):
            A(f"v_xor_b32 {v(vDX+i)}, {32*i}, {v(vDX)}")
        for i in range(4):
            A(f"v_add_u32 {v(vDY+i)}, 0x10000, {v(vDX+i)}")
    n0 = CWN[0]
    N3 = OPT.get("n3", 8)
    BG.extend(pump(N3))
    spread(stcalc + cap(addrh) + [BAR] + cap(addr0) + [ststore] + cap(addrd) +
           [V(f"v_add_u32 {v(28)}, {28*K}, {v(vL16)}"), V(f"v_add_u32 {v(29)}, {56*K}, {v(vL16)}")])
    stamp(15)
    HB = {0: AC0, 1: AC1}
    HV = {0: vL16, 1: 28, 2: 29, 3: 28}
    STR = SP + 64

    PH = OPT.get("ph", 9)
    hd = lambda rt, c: [f"s_add_u32 m0, {s(sW7K)}, {TLO[rt] + c*1024}", "s_nop 0", f"buffer_load_dwordx4 {v(HV[rt])}, {s(SWS,4)}, {s(sHT+c)} offen sc1 lds"]
    hdma = lambda rt, per=False: [unit([S(hd(rt, c)[0]), S(hd(rt, c)[1]), ("vm", hd(rt, c)[2], f"h{rt}_{c}" if per else f"h{rt}")], PH) for c in range(7)]

    def lds_check(rt, tmp):
        lab, back = A.label("L_hc"), A.label("L_hb")
        rdb = lambda c: RD128(HB[rt] + 4*c, vHR + 1, TLO[rt] - HI + c*1024, f"hr{rt}_{c}")
        regs = lambda c: list(range(HB[rt]+4*c, HB[rt]+4*c+4))
        ops = []
        for c in range(7):
            ops += [WV(f"h{rt}_{c}"), rdb(c)]
            if c >= 2:
                ops += [WL(f"hr{rt}_{c-2}")] + [V(l) for l in max_lines(regs(c-2), tmp, c == 2)]
        for c in (5, 6):
            ops += [WL(f"hr{rt}_{c}")] + [V(l) for l in max_lines(regs(c), tmp, False)]
        ops += [V(f"v_cmp_eq_u32 vcc, -1, {v(tmp)}"), FN(lambda: (A(f"s_cbranch_vccnz {lab}"), A(f"{back}:")), 4)]
        blk = [f"{lab}:"] + dbg_mark(f"h{rt}") + [f"s_mov_b32 {s(sG1)}, m0", f"s_mov_b32 {s(sSPIN)}, 0", f"{lab}_t:"]
        for c in range(7):
            skip = A.label("L_hs")
            blk += max_lines(regs(c), tmp) + [f"v_cmp_eq_u32 vcc, -1, {v(tmp)}", f"s_cbranch_vccz {skip}"] + hd(rt, c) + [f"{skip}:"]
        blk += ["s_waitcnt vmcnt(0)"] + [rdb(c)[1] for c in range(7)] + [f"s_mov_b32 m0, {s(sG1)}", "s_waitcnt lgkmcnt(0)"]
        blk += max_lines(list(range(HB[rt], HB[rt]+28)), tmp) + [f"v_cmp_eq_u32 vcc, -1, {v(tmp)}", f"s_cbranch_vccz {back}"] + spin_tail(f"{lab}_t", back)
        OOL.append(blk)
        return ops
    stl = [f"buffer_load_dwordx2 {v(STR+2*i,2)}, {v(vL8c)}, {s(SWS,4)}, {s(sSO)} offen{off(512*i)} sc1" for i in range(7)]
    n1 = CWN[0]
    BG.extend(hdma(0, True) + pump(OPT.get("n4", 3)))
    bg_force()
    n2 = CWN[0]
    print("cw issued before C:", n0, n1, n2) if OPT["rep"] else None
    run(lds_check(0, vT + 1) + [WL("all"), BAR], bg=False)
    stamp(16)

    sc_read = lambda rt: [("lds", f"ds_read_b128 {v(SC+4*(rt & 1),4)}, {v(vT+2)} offset:{rt*512}", f"sc{rt}")]
    res_read = lambda rt: [("lds", f"ds_read_b64 {v(RES+2*rt,2)}, {v(vRS)}{off(TLO[rt] - (HI if rt < 2 else 0))}", "rs")]

    CD = SP + 56
    cld = [f"buffer_load_dwordx2 {v(CD+2*j,2)}, {v(vCL)}, {s(SWS,4)}, {s((sKVPW, sOW)[j])} offen sc1" for j in range(2)]
    sc_ = tag_check("cl", cld, CD + 1, CD + 3) + [V(f"v_add_f32 {v(CD)}, {v(CD)}, {v(CD+2)}"), ("lds", f"ds_write_b32 {v(9)}, {v(CD)}", "cw_")]
    sc_ += [RD128(CS + 16*t + 4*q, vBC, 128*t + 32*q, "csb") for t in range(2) for q in range(4)]
    sb = check_ops("stl", list(range(STR, STR+14)), stl)
    for a_, b_ in ((0, 8), (2, 10), (4, 12), (0, 4), (2, 6), (0, 2)):
        sb += [V(f"v_add_f32 {v(STR+a_+k)}, {v(STR+a_+k)}, {v(STR+b_+k)}") for k in range(2)]
    sb += [V(f"v_mov_b32 {v(STR+2+k)}, {v(STR+k)}") for k in range(2)]
    sb += [V(f"v_permlane32_swap_b32 {v(STR+k)}, {v(STR+2+k)}") for k in range(2)]
    sb += [V(f"v_add_f32 {v(STR+k)}, {v(STR+k)}, {v(STR+2+k)}") for k in range(2)]
    C1 = -2.0 * 0.7978845608028654 * 1.4426950408889634
    d = STR + 4
    sb += [V(f"v_mul_f32 {v(d)}, 0xbb124925, {v(STR)}"), V(f"v_mul_f32 {v(d+3)}, 0x3b124925, {v(STR+1)}"),
           V(f"v_fma_f32 {v(d+3)}, -{v(d)}, {v(d)}, {v(d+3)}"), V(f"v_max_f32 {v(d+3)}, 0, {v(d+3)}"),
           V(f"v_add_f32 {v(d+3)}, 0x3727c5ac, {v(d+3)}"), V(f"v_rsq_f32 {v(d+1)}, {v(d+3)}"),
           V(f"v_mul_f32 {v(d+2)}, {v(d+1)}, {v(d+1)}"), V(f"v_mul_f32 {v(d+2)}, {v(d+2)}, {v(d+1)}"),
           V(f"v_mul_f32 {v(d+2)}, {fh(C1*0.044715)}, {v(d+2)}"), V(f"v_mul_f32 {v(d+1)}, {fh(C1)}, {v(d+1)}"),
           WR128(vT + 3, d, 0, "hw")]
    def addr3():
        A(f"s_lshl_b32 {s(sT0)}, {s(sRB)}, 13")
        A(f"s_add_u32 {s(sFL)}, {s(sT0)}, {HFL}")
        A(f"s_add_u32 {s(sHW)}, {s(sT0)}, {HFL + 131072}")
        A(f"s_lshl2_add_u32 {s(sT0)}, {s(sFB)}, {s(sW)}")
        A(f"s_lshl_b32 {s(sT0)}, {s(sT0)}, 7")
        A(f"s_add_u32 {s(sHF)}, {s(sFL)}, {s(sT0)}")
        A(f"s_mul_i32 {s(sT0)}, {s(sW)}, 14")
        A(f"v_min_u32 {v(vHF)}, 13, {v(vLANE)}")
        A(f"v_add_lshl_u32 {v(vHF)}, {v(vHF)}, {s(sT0)}, 7")
        A(f"v_mov_b32 {v(vTAG)}, {s(sTAG)}")
        A(f"v_lshlrev_b32 {v(vL8c)}, 2, {v(vLANE)}")
        A(f"s_lshl_b32 {s(sT0)}, {s(sRB)}, 8")
        A(f"s_add_u32 {s(sKVPW)}, {s(sT0)}, {PFL}")
        A(f"s_add_u32 {s(sOW)}, {s(sT0)}, {PFL + 4096}")
        A(f"v_and_b32 {v(9)}, 1, {v(vLANE)}")
        A(f"v_lshlrev_b32 {v(9)}, 7, {v(9)}")
        A(f"v_lshrrev_b32 {v(vGO)}, 4, {v(vLANE)}")
        A(f"v_and_b32 {v(vGO+1)}, 0xf0, {v(vL16)}")
        A(f"v_lshl_add_u32 {v(vGO)}, {v(vGO)}, 9, {v(vGO+1)}")
    f0l, f0c = flag_check("f0", vT + 3, vHF, s(sFL))
    f1l, f1c = flag_check("f1", vT + 3, vHF, s(sHW))
    p2l, p2c = flag_check("p2", vT + 1, 9, s(sKVPW))
    p3l, p3c = flag_check("p3", vT + 1, 9, s(sOW))
    PC = OPT.get("pc", 10)
    dun = lambda a_, b_: [unit(d_load(n), PC) for n in range(a_, b_)]
    ADD = lambda us: FN(lambda: BG.extend(us))
    h1u = hdma(1, True)
    for u in h1u:
        u["ta"] = 64
    BG.extend(h1u + pump(28 - n2) + [unit([("vm", x, "stl") for x in stl[i:i+2]], 8) for i in range(0, 7, 2)] +
              [unit([("vm", x, "cl") for x in cld], 8)] + u_dw(0) + u_dw(1))

    def rd(N):
        rt, n = divmod(N, 28)
        return RD128(BRG + (N % 6)*4, vHR if rt < 2 else vL16, TLO[rt] - (HI if rt < 2 else 0) + n*1024, f"b{N}")
    run([rd(N) for N in range(4)], bg=False)
    bg_now()
    after_bar = {0: [V(f"v_add_u32 {v(28)}, {84*K}, {v(vL16)}"), ], 1: [ADD(hdma(3) + u_dw(7))], 2: [ADD(u_dw(11) + u_dw(12))]}
    main = []
    for N in range(112):
        rt, n = divmod(N, 28)
        acc = AC0 if rt % 2 == 0 else AC1
        if n == 25 and rt < 3:
            main += ([WV(f"h{rt+1}")] if rt else []) + [WL("all"), BAR] + after_bar[rt]
        elif N == 0:
            main.append(WL("b0"))
        elif N % 2 == 1:
            main.append(WL(f"b{min(N+1, 111)}"))

        if n == 0 and rt:
            main.append(ST_(16 + rt))
        elif N < 34 and N % 2 == 0:
            main.append(FN(lambda: fst("C0")))
        main.append(M32(acc, CW + (n*2)*4, BRG + (N % 6)*4, n == 0))
        if N + 4 < 112 and n != 24:
            if n == 25:
                main.append(rd(N + 3))
            main.append(rd(N + 4))
        main.append(M32(acc + 16, CW + (n*2+1)*4, BRG + (N % 6)*4, n == 0))
    D_ = lambda ops, g0, g1, gr=False: dict(ops=ops, g0=g0, g1=g1, greedy=gr)
    L0 = 4*(28 - n2)
    ND = OPT.get("nd", 6)
    F0 = OPT.get("f0", 180)
    streams = [D_(res_read(0) + cw_read(28 - LAG, n2), 28, 38), D_(cw_read(n2, 28), 41, 49), D_(lds_check(1, ET), 26, 42),
               D_(sb + [WL("hw"), BAR, ADD(hdma(2) + u_dw(2) + u_dw(3))] + sc_read(0), 51, 61), D_(sc_, 56, 62),
               D_(res_read(1) + [V(f"v_subrev_u32 {v(vRS)}, {HI}, {v(vRS)}")], 51, 54),
               D_([WL("csb"), WL("sc0")] + epilogue_ops(AC0, 0), 64, 111, True),
               D_(dw_read(0) + dw_read(1) + dw_next("dr1", (4, 5)), 78, 90),
               D_(sc_read(1) + res_read(2), 107, 110),
               D_(dw_read(2) + dw_read(3) + dw_next("dr3", (6, 8)), 112, 126), D_(dw_read(4) + dw_read(5) + dw_next("dr5", (9, 10)), 136, 150),
               D_([WL("sc1")] + epilogue_ops(AC1, 1), 114, 167, True),
               D_(sc_read(2) + res_read(3), 163, 166), D_(dw_read(6) + dw_next("dr6", (13,)), 172, 178),
               D_(cap(addr3), 100, 128),
               D_(hf_set(0, 0), 134, 135), D_([f0l], F0, F0 + 1), D_(f0c + [ADD(dun(0, ND))], F0 + 24, F0 + 25),
               D_(hf_set(1, 1), 190, 191), D_([p2l], 156, 157), D_(p2c, 181, 182), D_([p3l], 198, 199), D_(p3c, 222, 223),
               D_([WL("sc2")] + epilogue_ops(AC0, 2) + sc_read(3), 170, 216, True)]
    streams += [D_(dw_read(m), 168 + 36 + 4*(m-7), 168 + 40 + 4*(m-7)) for m in range(7, 12)]
    weave(main, streams, report=REP("C"))
    bg_force()
    stamp(20)
    NPRE = ND + OPT.get("npre", 6)
    BG.extend([unit(d_load(n) + d_load(n+1), 24) for n in range(ND, NPRE, 2)])
    bg_now()
    ep = epilogue_pk(AC1, 3)
    run([WL("sc3")] + ep[:OPT.get("c1", 20)] + [f1l] + ep[OPT.get("c1", 20):])
    bg_force()
    stamp(21)
    return NPRE, f1c


def phaseD(NPRE, f1c):
    ACD = [32, 48]
    WA, RA, vOO = 64, 66, 67
    X, TT = 68, 72

    def addr():
        A(f"v_and_b32 {v(WA)}, 15, {v(vLANE)}")
        A(f"v_lshrrev_b32 {v(RA)}, 4, {v(vLANE)}")
        A(f"v_mul_u32_u24 {v(vOO)}, 896, {v(RA)}")
        A(f"v_lshl_add_u32 {v(vOO)}, {v(WA)}, 3, {v(vOO)}")
        A(f"v_and_b32 {v(X)}, 7, {v(vLANE)}")
        A(f"v_xor_b32 {v(X)}, {v(X)}, {v(RA)}")
        A(f"v_lshlrev_b32 {v(X)}, 4, {v(X)}")
        A(f"v_lshl_add_u32 {v(RA)}, {s(sW)}, 2, {v(RA)}")
        A(f"v_and_b32 {v(X+1)}, 7, {v(RA)}")
        A(f"v_xor_b32 {v(X+1)}, {v(X+1)}, {v(WA)}")
        A(f"v_lshlrev_b32 {v(X+1)}, 4, {v(X+1)}")
        A(f"v_lshl_add_u32 {v(RA)}, {v(RA)}, 8, {v(X+1)}")
        A(f"v_lshl_add_u32 {v(WA)}, {v(WA)}, 8, {v(X)}")
        A(f"v_add_u32 {v(WA)}, {s(sW4K)}, {v(WA)}")
        A(f"v_xor_b32 {v(WA+1)}, 64, {v(WA)}")
        A(f"s_lshl_b32 {s(sT0)}, {s(sRB)}, 3")
        A(f"s_add_u32 {s(sT0)}, {s(sT0)}, {s(sP)}")
        A(f"s_lshl_b32 {s(sT0)}, {s(sT0)}, 2")
        A(f"s_add_u32 {s(sT0)}, {s(sT0)}, {s(sW)}")
        A(f"s_mul_i32 {s(sOUTW)}, {s(sT0)}, {4*896}")
        A(f"s_lshl_b32 {s(sT0)}, {s(sCB)}, 7")
        A(f"s_add_u32 {s(sOUTW)}, {s(sOUTW)}, {s(sT0)}")

    def reduce_ops(rt, pk):
        buf = (rt & 1) * 16 * K
        acc = ACD[rt & 1]
        o = [WR128(WA + (nt & 1), acc + 4*nt, buf + 128*(nt >> 1), "dwr") for nt in range(4)]
        if not pk:
            o = sum([[x, FN(lambda: None, 12)] for x in o], [])
        o += [V(f"v_lshlrev_b32 {v(X)}, 16, {v(RES+2*rt)}"), V(f"v_and_b32 {v(X+1)}, 0xffff0000, {v(RES+2*rt)}"),
              V(f"v_lshlrev_b32 {v(X+2)}, 16, {v(RES+2*rt+1)}"), V(f"v_and_b32 {v(X+3)}, 0xffff0000, {v(RES+2*rt+1)}"),
              S(f"s_add_u32 {s(sT1)}, {s(sOUTW)}, {rt*32*896}")]
        o += [WL("dwr"), BAR]
        o += [RD128(TT + 4*w, RA, buf + w*4096, f"rr{w}") for w in range(4)]
        if pk:
            for w in range(4):
                o += [WL(f"rr{w}")] + [V(f"v_pk_add_f32 {v(X+2*k,2)}, {v(X+2*k,2)}, {v(TT+4*w+2*k,2)}") for k in range(2)]
        else:
            o += [FN(lambda: None, 40), WL("rr3")]
            o += [V(f"v_add_f32 {v(X+k)}, {v(X+k)}, {v(TT+4*w+k)}") for w in range(4) for k in range(4)]
        o += [V(f"v_cvt_pk_bf16_f32 {v(X+k)}, {v(X+2*k)}, {v(X+2*k+1)}") for k in range(2)]
        o += [("vm", f"buffer_store_dwordx2 {v(X,2)}, {v(vOO)}, {s(SOUT,4)}, {s(sT1)} offen", "out")]
        return o
    def nan_check(rt):
        lab, back = A.label("L_nn"), A.label("L_nb")
        acc = ACD[rt & 1]
        blk = [f"{lab}:"] + dbg_mark(f"nan{rt}") + [f"s_mov_b32 {s(sSPIN)}, 0", f"v_subrev_u32 {v(vGO+1)}, {112*K if rt < 3 else 0}, {v(vGO)}", f"{lab}_t:"]
        for m in range(14):
            blk.append(f"buffer_load_dwordx4 {r(RING_D[(14*rt+m) % NRD],4)}, {v(vGO+1)}, {s(SWS,4)}, {s(sGT + m//2)} offen{off((m % 2)*2048)} sc1")
        for m in range(14):
            blk.append(f"s_waitcnt vmcnt({13-m})")
            blk += [M16(acc + 4*nt, DW[m] + 4*nt, RING_D[(14*rt+m) % NRD], m == 0)[1] for nt in range(4)]
        blk += [f"v_cmp_u_f32 vcc, {v(acc)}, {v(acc)}", f"s_cbranch_vccz {back}"] + spin_tail(f"{lab}_t", back)
        OOL.append(blk)
        return [V(f"v_cmp_u_f32 vcc, {v(acc)}, {v(acc)}"), FN(lambda: (A(f"s_cbranch_vccnz {lab}"), A(f"{back}:")), 4)]
    T2, T3 = OPT.get("t2", 16), OPT.get("t3", 30)
    assert T3 >= T2 + 14 and NPRE <= 14 and 28 - NPRE <= T2
    when = {}
    for n in range(NPRE, 28):
        when[n - NPRE] = n
    for i in range(14):
        when[T2 + i] = 28 + i
        when[T3 + i] = 42 + i
    main = []
    for n in range(56):
        rt, m = divmod(n, 14)
        b = RING_D[n % NRD]
        if n % 14 == 0 and n:
            main.append(ST_(21 + n//14))
        if n == 43:
            main += nan_check(2)
        if when.get(n) == 14:
            main += f1c
        if n == 7:
            main.append(WL("dr13"))
        ld = d_load(when[n]) if n in when else []
        main += [WV(f"d{n}")] + ld[:-1]
        main.append(M16(ACD[rt & 1], DW[m], b, m == 0))
        main += ld[-1:]
        main.append(M16(ACD[rt & 1] + 4, DW[m] + 4, b, m == 0))
        main += [M16(ACD[rt & 1] + 4*nt, DW[m] + 4*nt, b, m == 0) for nt in (2, 3)]
    streams = [dict(ops=dw_read(12) + dw_read(13), g0=0, g1=20), dict(ops=cap(addr) + [BAR], g0=20, g1=50)]
    for rt in range(3):
        streams.append(dict(ops=reduce_ops(rt, False), g0=56*(rt+1) + 5, g1=56*(rt+1) + 50))
    weave(main, streams, small=True, report=REP("D"))
    stamp(25)
    run(nan_check(3) + reduce_ops(3, True), bg=False)
    stamp(26)
    A(f"s_xor_b32 {s(sT0)}, s2, 1")
    A(f"s_or_b32 {s(sT0)}, {s(sT0)}, {s(sW)}")
    A("s_cbranch_scc1 L_fin")
    A(f"s_mov_b32 {s(sT0)}, {EPO}")
    A(f"v_mov_b32 {v(vTAG)}, {s(sTAG)}")
    A("s_mov_b64 exec, 1")
    A(f"buffer_store_dword {v(vTAG)}, off, {s(SWS,4)}, {s(sT0)} sc1")
    A("s_mov_b64 exec, -1")


def finish():
    if OPT["ts"]:
        stamp(63)
        A(f"v_writelane_b32 {v(vTS)}, {s(sDBG)}, 62")
        A(f"s_lshl_b32 {s(sT0)}, s2, 2")
        A(f"s_add_u32 {s(sT0)}, {s(sT0)}, {s(sW)}")
        A(f"s_lshl_b32 {s(sT0)}, {s(sT0)}, 8")
        A(f"s_add_u32 {s(sT0)}, {s(sT0)}, {TSB}")
        A(f"v_lshlrev_b32 {v(vT)}, 2, {v(vLANE)}")
        A(f"buffer_store_dword {v(vTS)}, {v(vT)}, {s(SWS,4)}, {s(sT0)} offen")
    A("s_waitcnt vmcnt(0) lgkmcnt(0)")
    if OPT["hold"] >= 0:
        A(f"s_add_u32 {s(sTS)}, {s(sTS)}, 5000")
        A("L_hold:")
        A("s_memrealtime s[4:5]")
        A("s_waitcnt lgkmcnt(0)")
        A(f"s_sub_u32 s4, s4, {s(sTS)}")
        A("s_cmp_lt_i32 s4, 0")
        A("s_cbranch_scc1 L_hold")
    A("s_endpgm")


def main():
    prologue()
    phaseA()
    phaseQ()
    helper()
    npre = phaseC(*phaseB())
    phaseD(*npre)
    A("L_fin:")
    finish()
    for blk in OOL:
        for l in blk:
            A(l)
    A("L_exit:")
    A("s_endpgm")
    lines, nn = fix_hazards(A.lines, verbose=bool(OPT.get("v")))
    hdr = open("cdna_kernels/" + NAME + ".s.ref").read().split("; Override launch")[0]
    out = hdr + f"; @launch grid=(256,1,1) block=(256,1,1) lds={LDS_BYTES}\n"
    out += '.amdgcn_target "amdgcn-amd-amdhsa--gfx950"\n.text\n'
    out += f".globl {NAME}_kernel\n.p2align 8\n.type {NAME}_kernel,@function\n{NAME}_kernel:\n"
    out += "\n".join(("" if l.endswith(":") else "    ") + l for l in lines) + "\n"
    out += f"L_code_end:\n.if (L_code_end - {NAME}_kernel) < 33024\n.fill (33024 - (L_code_end - {NAME}_kernel)) / 4, 4, 0xbf810000\n.endif\n"
    out += f'.section .rodata,"a"\n.p2align 6\n.amdhsa_kernel {NAME}_kernel\n'
    out += "  .amdhsa_next_free_vgpr 512\n  .amdhsa_next_free_sgpr 102\n  .amdhsa_accum_offset 256\n"
    out += "  .amdhsa_group_segment_fixed_size 0\n  .amdhsa_kernarg_size 80\n  .amdhsa_user_sgpr_count 2\n"
    out += "  .amdhsa_user_sgpr_kernarg_segment_ptr 1\n  .amdhsa_system_sgpr_workgroup_id_x 1\n"
    out += "  .amdhsa_float_denorm_mode_32 3\n.end_amdhsa_kernel\n"
    open(sys.argv[1], "w").write(out)
    print(f"wrote {sys.argv[1]}: {len(lines)} lines, {nn} nop states inserted")


main()
```

```python
from collections import deque
import re
from asmlib import *

A = Asm()
OOL = []

class Clock:
    t = 0
    mf = 0
    bgn = 0

CK = Clock()
BG = deque()
SEEN, WAITED, SEENL = set(), set(), set()
V = lambda t: ("v", t)
S = lambda t: ("s", t)
BAR = ("bar",)
WV = lambda t: ("wvm", t)
WL = lambda t: ("wlg", t)
FN = lambda f, c=0: ("fn", f, c)

def opcost(op):
    k = op[0]
    if k == "v":
        t = op[1]
        if t.startswith(("v_exp", "v_rcp", "v_rsq")): return 8
        return 5 if t.startswith(("v_fma_", "v_pk", "v_cvt_pk", "v_max3", "v_accvgpr", "v_lshl_add", "v_add3", "v_bfe", "v_perm", "v_and_or")) else 4
    if k == "fn": return op[2]
    if k == "s": return 4 * (op[1].count("\n") + 1)
    if k == "lds" and op[1].startswith("ds_write_b128"): return 16
    return 4

VT = []
LT = {}
import os
TRACE = os.environ.get('TRACE')
DROP = []
def E(op):
    k = op[0]
    if k == "vm" and any(re.fullmatch(d[0] + r"\d*", op[2]) and d[1] in op[1] for d in DROP):
        SEEN.add(op[2]); return
    if k == "M" or k == "m":
        A(op[1])
        t = max(CK.t, CK.mf)
        CK.mf = t + (32 if k == "M" else 16)
        CK.t = t + 8
        return
    n0 = len(A.lines)
    if k in ("s", "v"): A(op[1])
    elif k == "vm":
        if op[2] in WAITED: print("WARNING: vm op issued after its tag was waited:", op)
        SEEN.add(op[2]); A.vmem(op[1], op[2]); VT.append((op[2], CK.t))
    elif k == "lds":
        SEENL.add(op[2]); A.lds(op[1], op[2]); LT[op[2]] = CK.t
    elif k == "wvm":
        tags = [op[1]] if isinstance(op[1], str) else op[1]
        while any(o[0] == "vm" and o[2] in tags for u in BG for o in u["ops"]):
            print("note: forcing background for", tags)
            bg_emit()
        for t_ in tags:
            assert t_ in SEEN or t_ == "all", ("wait on unseen tag", t_)
            WAITED.add(t_)
        n0 = len(A.lines)
        nb = len(A.vm)
        A.wait(vm=op[1])
        if TRACE and len(A.lines) > n0:
            done = VT[len(VT)-nb:len(VT)-len(A.vm)] if nb <= len(VT) else []
            print(f"  t={CK.t} wait {op[1]}: retires", [(a_, CK.t-b_) for a_, b_ in done[-4:]])
    elif k == "wlg":
        assert op[1] in SEENL or op[1] == "all", ("wait on unseen lds tag", op[1])
        A.wait(lg=op[1])
    elif k == "bar": A("s_barrier")
    elif k == "fn": op[1]()
    elif k == "bg":
        for _ in range(op[1]):
            if BG: bg_emit()
        return
    else: raise ValueError(op)
    if k in ("wvm", "wlg") and len(A.lines) == n0: return
    CK.t += opcost(op)

def bg_emit():
    u = BG.popleft()
    for o in u["ops"]: E(o)
    CK.bgn = max(CK.bgn, CK.t - 16) + u["ta"]

def bg_try():
    if BG and CK.t >= CK.bgn: bg_emit()

def bg_force(n=None):
    while BG and (n is None or n > 0):
        bg_emit()
        if n is not None: n -= 1
    CK.t = max(CK.t, CK.bgn - 128)

def bg_now(delay=0): CK.bgn = CK.t + delay

def unit(ops, lines): return dict(ops=ops, ta=lines * 8)

def run(ops, bg=True):
    for o in ops:
        E(o)
        if bg and o[0] in ("v", "M", "m", "lds"): bg_try()

def spread(ops, n=None):
    us = [BG[i]["ta"] for i in range(len(BG) if n is None else min(n, len(BG)))]
    tot = sum((32 if o[0] == "M" else 16 if o[0] == "m" else opcost(o)) for o in ops) or 1
    tta = sum(us) or 1
    done = 0; issued = 0; k = 0
    for o in ops:
        while k < len(us) and issued / tta <= done / tot:
            bg_emit(); issued += us[k]; k += 1
        E(o)
        done += 32 if o[0] == "M" else 16 if o[0] == "m" else opcost(o)
    while k < len(us):
        bg_emit(); k += 1
    CK.t = max(CK.t, CK.bgn - 128)

def cap(fn):
    keep = A.lines; A.lines = []
    fn()
    got = A.lines; A.lines = keep
    out = []
    for l in got:
        if l.startswith(("s_cselect", "s_subb", "s_addc")):
            p = out.pop(); out.append(("s", p[1] + "\n" + l))
        else: out.append(("v", l) if l.startswith("v_") else ("s", l))
    return out

def fuse_cmp(ops):
    out = []
    for o in ops:
        if o[0] == "fn" and o[2] == 4 and out and out[-1][0] == "v" and out[-1][1].startswith("v_cmp"):
            c = out.pop()
            out.append(("fn", (lambda c=c, o=o: (A(c[1]), o[1]())), 12))
        else: out.append(o)
    return out

def weave(main, streams=(), small=False, report=None, autobg=True):
    for s_ in streams: s_["ops"] = fuse_cmp(s_["ops"])
    st = [dict(ops=deque(s_["ops"]), g0=s_["g0"], g1=s_["g1"], greedy=s_.get("greedy", False),
               tot=max(1, sum(opcost(o) for o in s_["ops"])), done=0, end=None) for s_ in streams]
    MEM = ("vm", "lds", "wvm", "wlg", "s", "bar", "bg")
    i = 0; g = 0; n = len(main); tstart = max(CK.t, CK.mf)
    while i < n:
        o = main[i]; E(o); i += 1
        if o[0] not in ("M", "m"): continue
        while i < n and main[i][0] in ("lds", "vm", "bg"):
            E(main[i]); i += 1
        if o[0] == "m" and not small: continue
        if autobg: bg_try()
        g += 1
        j = i; res = 0
        while j < n and main[j][0] not in ("M", "m"):
            res += opcost(main[j]); j += 1
        def behind(s_):
            frac = (g - s_["g0"]) / max(1, s_["g1"] - s_["g0"])
            return s_["done"] < s_["tot"] * frac
        def late(s_):
            frac = (g - s_["g0"]) / max(1, s_["g1"] - s_["g0"])
            return frac >= 1 or s_["done"] < s_["tot"] * frac - 24
        def ok(s_):
            if not s_["ops"] or g <= s_["g0"]: return False
            h = s_["ops"][0]
            if h[0] == "wlg" and g < s_["g1"] and h[1] in A.lg and CK.t - LT.get(h[1], -999) < 150: return False
            fits = CK.t + opcost(s_["ops"][0]) + res <= CK.mf + 1
            return late(s_) or (fits and (s_["greedy"] or behind(s_)))
        for phase in (0, 1):
            for s_ in st:
                while ok(s_) and ((s_["ops"][0][0] in MEM) if phase == 0 else (s_["ops"][0][0] not in ("vm", "lds") or g >= s_["g1"])):
                    x = s_["ops"].popleft(); E(x); s_["done"] += opcost(x)
                    if not s_["ops"]: s_["end"] = g
    for s_ in st:
        while s_["ops"]: E(s_["ops"].popleft())
    if report: print(f"weave {report}: est {max(CK.t, CK.mf) - tstart} clk, {g} gaps, stream ends {[s_['end'] for s_ in st]}, bg left {len(BG)}")

def M32(d, x, y, zero=False):
    return ("M", f"v_mfma_f32_32x32x16_bf16 {r(d,16)}, {r(x,4)}, {r(y,4)}, {'0' if zero else r(d,16)}")
def M16(d, x, y, zero=False):
    return ("m", f"v_mfma_f32_16x16x32_bf16 {r(d,4)}, {r(x,4)}, {r(y,4)}, {'0' if zero else r(d,4)}")
def off(i): return f" offset:{i}" if i else ""
def DMA(voff, sr, soff, imm, tag):
    return ("vm", f"buffer_load_dwordx4 {v(voff)}, {s(sr,4)}, {soff} offen{off(imm)} lds", tag)
def TR(dst, addr, o, tag): return ("lds", f"ds_read_b64_tr_b16 {r(dst,2)}, {v(addr)}{off(o)}", tag)
def RD128(dst, addr, o, tag): return ("lds", f"ds_read_b128 {r(dst,4)}, {v(addr)}{off(o)}", tag)
def WR128(addr, src, o, tag): return ("lds", f"ds_write_b128 {v(addr)}, {r(src,4)}{off(o)}", tag)

def pkop(name, d, srcs, neg0=False):
    lo = ",".join("1" if m == 1 else "0" for _, m in srcs)
    hi = ",".join("0" if m == 0 else "1" for _, m in srcs)
    t = f"{name} {d}, " + ", ".join(x for x, _ in srcs) + f" op_sel:[{lo}] op_sel_hi:[{hi}]"
    if neg0:
        z = ",".join(["1"] + ["0"] * (len(srcs) - 1))
        t += f" neg_lo:[{z}] neg_hi:[{z}]"
    return V(t)

def max_lines(regs, tmp, first=True):
    out = []
    rest = list(regs)
    if first:
        out.append(f"v_max3_u32 {v(tmp)}, {v(rest[0])}, {v(rest[1])}, {v(rest[min(2, len(rest)-1)])}")
        rest = rest[3:]
    while rest:
        x1 = rest[1] if len(rest) > 1 else rest[0]
        out.append(f"v_max3_u32 {v(tmp)}, {v(tmp)}, {v(rest[0])}, {v(x1)}")
        rest = rest[2:]
    return out

def mix(a_, b_):
    out = []
    a_, b_ = list(a_), list(b_)
    while a_ or b_:
        if a_: out.append(a_.pop(0))
        if b_: out.append(b_.pop(0))
    return out
```

```python
import sys, struct
from sched import *

NAME = "sequential_preLN__linear_attn_block__glu_gated_geglu__prompt"
OPT = dict(ts=0, spin=200000, slp=2, rep=0, rot=1, cm=8, ck=0, w1=0, rw=1, ew='xbf', ep='x012', n0=0, n1=1, nf=4, na=4, ne=0, nb=0, ng=0, n2=5, n3=8, sl=1, so=2, rotd=0, hold=-1, warm=0, ev='x', eq='x37')
for arg in sys.argv[2:]:
    k_, v_ = arg.split("=")
    OPT[k_] = int(v_) if v_.lstrip("-").isdigit() else v_
fh = lambda x: "0x%08x" % struct.unpack("<I", struct.pack("<f", x))[0]
if OPT.get("xdw"): DROP.append(("dw", ""))
if OPT.get("xst"): DROP.append(("gst", ""))
if OPT.get("xpoi"): DROP.extend([("zs", "dwordx2"), ("po", ""), ("ph", "")])
if OPT.get("xcw"): DROP.append(("cw", ""))
for d_ in str(OPT.get("drop", "")).split(","):
    if d_: DROP.append((d_, ""))
REP = lambda n: n if OPT["rep"] else None

KVP = 0
OO = 1 << 20
HH_ = 3 << 20
ST = 5 << 20
FL1 = 0x80000
SL1 = 0xC0000
FL2 = 0xA0000
EPO = 0xA8000
PFL = 0xA9000
HFL = (5 << 20) + (1 << 19)
CSW = 0xB0000
GG = 6 << 20
TSB = 15 << 20
WS_BYTES = 16 << 20

K = 1024
WL0 = 64 * K
WKL = 112 * K
HI = 96 * K
KVX = 120 * K
XB = 128 * K
XIMG = 148 * K
MISC = 156 * K
LDS_BYTES = 160 * K

sUP = 0
sW = 3
sT0, sT1, sT2, sT3 = 4, 5, 6, 7
SX, SQKV, SWO, SWG, SWU, SWD, SOUT, SWS = 8, 12, 16, 20, 24, 28, 32, 36
sTAG, sFL, sDBG, sG1 = 40, 41, 42, 43
sRB, sP, sHEAD, sCB, sFB, sIDLE, sW1K, sC0 = 44, 45, 46, 47, 48, 49, 50, 51
sXB, sW4K, sONES, sSPIN = 52, 53, 54, 55
sL2E, sEPS = 56, 58
sKVPW, sOW, sHW, sSTW = 60, 61, 62, 63
sM = 64
sG2 = 79
sKH = 87
sB0, sB1 = 88, 89
sHF, sGW, sDWK, sCA, sCB2 = 90, 91, 92, 93, 94
sOUTW, sWOL, sW7K = 95, 96, 97
sMK = 98
sTS = 100

vLANE, vL16 = 1, 15
vXO = 2
vWO = 6
vXR = 7
vWR = 11
vRO = 16
vMEAN = 18
vT = 20
vCW = 24
vCR = 26
vBC = 30
vTS = 31
CW = 256
STASH = 256 + 200
SEL = 256 + 224
CSA = 256 + 228
AS = 256 + 236
ACS = 256 + 240


NST = [0]


def fst(group):
    if OPT.get("fine") == group:
        stamp(-1)


def stamp(i):
    if OPT.get("fine") and i != 63:
        if i > 0 and i < OPT.get("from", 0):
            return
        print("stamp", NST[0], "=", i)
        i = NST[0]
        NST[0] += 1
        if i >= 30:
            return
    if OPT["hold"] == i:
        A(f"s_memrealtime {s(sTS,2)}")
        A.wait(lg="all")
    if not OPT["ts"]:
        return
    A(f"s_memrealtime {s(sTS,2)}")
    A.wait(lg="all")
    A(f"v_writelane_b32 {v(vTS)}, {s(sTS)}, {i}")
    if OPT["ts"] == 2 and i < 30:
        A(f"s_memtime {s(sTS,2)}")
        A.wait(lg="all")
        A(f"v_writelane_b32 {v(vTS)}, {s(sTS)}, {32+i}")


ST_ = lambda i: FN(lambda: stamp(i))
NOOL = [0]


def dbg_mark(name):
    i = NOOL[0]
    NOOL[0] += 1
    if OPT["rep"]:
        print("ool bit", i, name)
    return [f"s_bitset1_b32 {s(sDBG)}, {i}"] if OPT["ts"] else []


def srd(base, nbytes):
    A(f"s_mov_b32 {s(base+2)}, {nbytes}")
    A(f"s_mov_b32 {s(base+3)}, 0x20000")


def spin_tail(loop, back):
    return [f"s_add_u32 {s(sSPIN)}, {s(sSPIN)}, 1", f"s_cmp_lt_u32 {s(sSPIN)}, {OPT['spin']}", f"s_cbranch_scc1 {loop}", f"s_branch {back}"]


def check_ops(tag, regs, reloads, tmp=vT):
    lab = A.label("L_chk")
    back = A.label("L_bk")
    chk = max_lines(regs, tmp) + [f"v_cmp_eq_u32 vcc, -1, {v(tmp)}"]
    ops = [WV(tag)] + [V(c_) for c_ in chk] + [FN(lambda: (A(f"s_cbranch_vccnz {lab}"), A(f"{back}:")), 4)]
    OOL.append([f"{lab}:"] + dbg_mark(tag) + [f"s_mov_b32 {s(sSPIN)}, 0", f"{lab}_t:"] + reloads + ["s_waitcnt vmcnt(0)"] + chk +
               [f"s_cbranch_vccz {back}"] + spin_tail(f"{lab}_t", back))
    return ops


def tag_check(tag, loads, r0, r1):
    lab, back = A.label("L_tg"), A.label("L_tb")
    chk = [f"v_xor_b32 {v(r0)}, {s(sTAG)}, {v(r0)}", f"v_xor_b32 {v(r1)}, {s(sTAG)}, {v(r1)}", f"v_or_b32 {v(r0)}, {v(r0)}, {v(r1)}", f"v_cmp_ne_u32 vcc, 0, {v(r0)}"]
    OOL.append([f"{lab}:"] + dbg_mark(tag) + [f"s_mov_b32 {s(sSPIN)}, 0", f"{lab}_t:", f"s_sleep {OPT['slp']}"] + loads + ["s_waitcnt vmcnt(0)"] + chk +
               [f"s_cbranch_vccz {back}"] + spin_tail(f"{lab}_t", back))
    return [WV(tag)] + [V(c_) for c_ in chk] + [FN(lambda: (A(f"s_cbranch_vccnz {lab}"), A(f"{back}:")), 4)]


def flag_check(tag, reg, addr, so):
    lab = A.label("L_cc")
    back = A.label("L_cb")
    ld = f"buffer_load_dword {v(reg)}, {v(addr)}, {s(SWS,4)}, {so} offen sc1"
    chk = f"v_cmp_ne_u32 vcc, {s(sTAG)}, {v(reg)}"
    ops = [WV(tag), V(chk), FN(lambda: (A(f"s_cbranch_vccnz {lab}"), A(f"{back}:")), 4)]
    if OPT.get("xfl") and tag in ("f0", "f1", "f2", "f3"):
        ops = [WV(tag), V("v_cmp_ne_u32 vcc, 0, 0"), ops[2]]
    OOL.append([f"{lab}:"] + dbg_mark(tag) + [f"s_mov_b32 {s(sSPIN)}, 0", f"{lab}_t:", ld, "s_waitcnt vmcnt(0)", chk,
                f"s_cbranch_vccz {back}", f"s_sleep {OPT['slp']}"] + spin_tail(f"{lab}_t", back))
    return ("vm", ld, tag), ops


def refresh(name, groups):
    top = A.label("R_top")
    ool = A.label("R_ool")
    done = A.label("R_done")
    blk = [f"{ool}:"] + dbg_mark(name) + [f"{ool}_t:", "s_waitcnt vmcnt(0)", f"s_mov_b32 {s(sM)}, 0"]
    for G in groups:
        skip = A.label("R_s")
        blk += max_lines(G["regs"], vT) + [f"v_cmp_eq_u32 vcc, -1, {v(vT)}", f"s_cbranch_vccz {skip}"] + G["loads"] + [f"s_mov_b32 {s(sM)}, 1", f"{skip}:"]
    blk += [f"s_add_u32 {s(sSPIN)}, {s(sSPIN)}, 1", f"s_cmp_ge_u32 {s(sSPIN)}, {OPT['spin']}", f"s_cbranch_scc1 {ool}_x",
            f"s_cmp_eq_u32 {s(sM)}, 0", f"s_cbranch_scc1 {top}", f"s_branch {ool}_t", f"{ool}_x:", "s_waitcnt vmcnt(0)", f"s_branch {done}"]
    OOL.append(blk)
    return ([S(f"s_mov_b32 {s(sSPIN)}, 0"), FN(lambda: A(f"{top}:"))],
            [FN(lambda: (A(f"s_cbranch_vccnz {ool}"), A(f"{done}:")), 4)])


def bad_lines(G):
    if G.get("xor"):
        x = G["regs"]
        return [f"v_bitop3_b32 {v(vT)}, {v(x[0])}, {v(x[1])}, {v(x[2])} bitop3:0x96", f"v_bitop3_b32 {v(vT)}, {v(vT)}, {v(x[3])}, {v(x[4])} bitop3:0x96",
                f"v_bitop3_b32 {v(vT)}, {v(vT)}, {v(x[5])}, {v(x[6])} bitop3:0x96", f"v_xor_b32 {v(vT)}, {v(vT)}, {v(x[7])}", f"v_cmp_ne_u32 vcc, {s(sTAG)}, {v(vT)}"]
    return max_lines(G["regs"], vT) + [f"v_cmp_eq_u32 vcc, -1, {v(vT)}"]


def site_check(tag, G, later):
    lab, back = A.label("S_ool"), A.label("S_bk")
    ops = [WV(tag)] + [V(l) for l in bad_lines(G)] + [FN(lambda: (A(f"s_cbranch_vccnz {lab}"), A(f"{back}:")), 4)] + G.get("pre", [])
    blk = [f"{lab}:"] + dbg_mark(tag) + [f"s_mov_b32 {s(sSPIN)}, 0", f"{lab}_t:", "s_waitcnt vmcnt(0)", f"s_mov_b32 {s(sM)}, 0"]
    for X in [G] + later:
        skip = A.label("S_s")
        blk += bad_lines(X) + [f"s_cbranch_vccz {skip}"] + X["loads"] + [f"s_mov_b32 {s(sM)}, 1", f"{skip}:"]
    blk += [f"s_cmp_eq_u32 {s(sM)}, 0", f"s_cbranch_scc1 {back}", f"s_add_u32 {s(sSPIN)}, {s(sSPIN)}, 1", f"s_cmp_lt_u32 {s(sSPIN)}, {OPT['spin']}",
            f"s_cbranch_scc1 {lab}_t", "s_waitcnt vmcnt(0)", f"s_branch {back}"]
    OOL.append(blk)
    return ops


def gather_finish(name, groups, post={}):
    n = len(groups)
    A(f"s_mov_b32 {s(sM)}, {(1 << n) - 1}")
    A(f"s_mov_b32 {s(sSPIN)}, 0")
    top, done, retry = A.label("G_top"), A.label("G_done"), A.label("G_retry")
    A(f"{top}:")
    for g, G in enumerate(groups):
        skip = A.label("G_skip")
        E(WV(f"{name}{g}"))
        for l in bad_lines(G):
            A(l)
        A(f"s_bitcmp0_b32 {s(sM)}, {g}")
        A(f"s_cbranch_scc1 {skip}")
        A(f"s_cbranch_vccnz {skip}")
        for o in G.get("pre", []) + G["compute"]:
            A(o[1])
        A(f"s_bitset0_b32 {s(sM)}, {g}")
        A(f"{skip}:")
        for o in post.get(g, []):
            E(o)
    A(f"s_cmp_lg_u32 {s(sM)}, 0")
    A(f"s_cbranch_scc1 {retry}")
    A(f"{done}:")
    blk = [f"{retry}:"] + dbg_mark(name) + [f"s_sleep {OPT['slp']}", f"s_add_u32 {s(sSPIN)}, {s(sSPIN)}, 1", f"s_cmp_gt_u32 {s(sSPIN)}, {OPT['spin']}", f"s_cbranch_scc1 {done}"]
    for g, G in enumerate(groups):
        skip = A.label("G_rs")
        blk += [f"s_bitcmp0_b32 {s(sM)}, {g}", f"s_cbranch_scc1 {skip}"] + G["loads"] + [f"{skip}:"]
    blk += ["s_waitcnt vmcnt(0)", f"s_branch {top}"]
    OOL.append(blk)


def gather_loads(name, groups):
    return [("vm", t, f"{name}{g}") for g, G in enumerate(groups) for t in G["loads"]]


def prologue():
    if OPT["hold"] >= 0 or OPT["ts"]:
        A(f"s_memrealtime {s(sTS,2)}")
    A(f"s_getpc_b64 {s(sT0,2)}")
    A(f"s_lshr_b32 {s(sT2)}, s2, 3")
    A(f"s_lshl_b32 {s(sT3)}, {s(sT2)}, 10")
    A(f"v_lshl_add_u32 {v(vT)}, v0, 2, {s(sT3)}")
    A(f"s_cmp_ge_u32 {s(sT2)}, 32")
    A("s_cbranch_scc1 L_exit")
    A.vmem(f"global_load_dword v255, {v(vT)}, {s(sT0,2)}", "code")
    for sr_, o_ in ((SX, 0), (SQKV, 8), (SWS, 72), (SWO, 16), (SWG, 32), (SWU, 40), (SWD, 48), (SOUT, 56)):
        A(f"s_load_dwordx2 {s(sr_,2)}, s[0:1], {o_}")
    if OPT["ts"]:
        A(f"v_mov_b32 {v(vTS)}, 0")
        A(f"s_mov_b32 {s(sDBG)}, 0")
    A(f"v_lshrrev_b32 {v(vT+2)}, 6, v0")
    A(f"v_and_b32 {v(vLANE)}, 63, v0")
    A(f"v_readfirstlane_b32 {s(sW)}, {v(vT+2)}")
    A(f"s_and_b32 {s(sP)}, s2, 1")
    A(f"s_bfe_u32 {s(sRB)}, s2, 0x20001")
    A(f"s_lshr_b32 {s(sT3)}, s2, 6")
    A(f"s_lshl2_add_u32 {s(sRB)}, {s(sRB)}, {s(sT3)}")
    A(f"s_and_b32 {s(sT2)}, {s(sT2)}, 7")
    A(f"s_lshl3_add_u32 {s(sHEAD)}, {s(sP)}, {s(sT2)}")
    A(f"s_lshl1_add_u32 {s(sC0)}, {s(sT3)}, {s(sT2)}")
    A(f"s_sub_u32 {s(sT3)}, {s(sC0)}, 7")
    A(f"s_cselect_b32 {s(sC0)}, {s(sC0)}, {s(sT3)}")
    srd(SX, 2048 * 896)
    srd(SQKV, 448 * 2688)
    A(f"s_lshl4_add_u32 {s(sB1)}, {s(sRB)}, {s(sHEAD)}")
    A(f"s_lshl2_add_u32 {s(sB1)}, {s(sB1)}, {s(sW)}")
    A(f"s_mul_i32 {s(sT0)}, {s(sB1)}, {2*896}")
    A(f"v_and_b32 {v(T_)}, 31, {v(vLANE)}")
    A(f"v_lshrrev_b32 {v(T_+1)}, 5, {v(vLANE)}")
    A(f"v_cmp_lt_u32 vcc, 27, {v(T_)}")
    A(f"v_mul_u32_u24 {v(vT+1)}, 896, {v(T_+1)}")
    A(f"v_lshl_add_u32 {v(vT+1)}, {v(T_)}, 4, {v(vT+1)}")
    A(f"v_cndmask_b32 {v(vT)}, {v(vT+1)}, 2.0, vcc")
    A(f"s_mul_i32 {s(sT1)}, {s(sW)}, {16*2688}")
    A(f"s_mul_i32 {s(sT3)}, {s(sHEAD)}, 56")
    A(f"s_add_u32 {s(sT3)}, {s(sT3)}, {s(sT1)}")
    A(f"v_lshrrev_b32 {v(vT+2)}, 2, {v(vLANE)}")
    A(f"v_mul_u32_u24 {v(vT+2)}, 2688, {v(vT+2)}")
    A(f"v_and_b32 {v(vT+3)}, 3, {v(vLANE)}")
    A(f"v_lshlrev_b32 {v(vT+3)}, 4, {v(vT+3)}")
    A(f"v_min_u32 {v(vT+3)}, 40, {v(vT+3)}")
    A(f"v_add3_u32 {v(vWO)}, {v(vT+2)}, {v(vT+3)}, {s(sT3)}")
    A(f"s_lshl_b32 {s(sW1K)}, {s(sW)}, 10")
    A(f"s_lshl_b32 {s(sW4K)}, {s(sW)}, 12")
    A(f"s_lshl2_add_u32 {s(sXB)}, {s(sRB)}, {s(sW)}")
    A(f"s_mul_i32 {s(sXB)}, {s(sXB)}, {32*896}")
    A(f"v_lshrrev_b32 {v(vT+2)}, 3, {v(vLANE)}")
    A(f"v_mul_u32_u24 {v(vT+2)}, 896, {v(vT+2)}")
    A(f"v_add_u32 {v(vT+2)}, {s(sXB)}, {v(vT+2)}")
    A(f"v_lshrrev_b32 {v(vT+3)}, 4, {v(vLANE)}")
    A(f"v_and_b32 {v(vT+1)}, 7, {v(vLANE)}")
    A(f"v_xor_b32 {v(vT+3)}, {v(vT+3)}, {v(vT+1)}")
    A(f"v_lshl_add_u32 {v(vXO)}, {v(vT+3)}, 4, {v(vT+2)}")
    A(f"v_xor_b32 {v(vT+3)}, 4, {v(vT+3)}")
    A(f"v_lshl_add_u32 {v(vXO+1)}, {v(vT+3)}, 4, {v(vT+2)}")
    A(f"v_add_u32 {v(vXO+1)}, {7168-1024}, {v(vXO+1)}")
    A(f"v_add_u32 {v(vXO+2)}, {2*(7168-1024)}, {v(vXO)}")
    A(f"v_add_u32 {v(vXO+3)}, {2*(7168-1024)}, {v(vXO+1)}")
    A(f"s_lshl_b32 {s(sM+8)}, {s(sC0)}, 7")
    A(f"s_mul_i32 {s(sM+1)}, {s(sM+8)}, 1344")
    A.wait(lg="all")
    if OPT["ts"]:
        A(f"v_writelane_b32 {v(vTS)}, {s(sTS)}, 31")
    stamp(0)


def u_x(t):
    return [unit(([S(f"s_add_u32 m0, {s(sW4K)}, {(t+4 if t < 3 else t-3)*16*K}"), S("s_nop 0")] if i == 0 else []) +
                 [DMA(vXO+i, SX, s(sM+8+t), 1024*i, f"c{t}")], 8) for i in range(4)]


def u_w(part, t, lines=32):
    m = [f"s_add_u32 m0, {s(sW1K)}, {WKL + t*4096}", f"s_add_u32 m0, {s(sW4K)}, {64*K + (t >> 2)*16*K + (t & 3)*1024}",
         f"s_add_u32 m0, {s(sW4K)}, {32*K + (t >> 2)*16*K + (t & 3)*1024}"][part]
    return unit([S(m), S(f"s_add_u32 {s(sB0)}, {s(sM+1+t)}, {(896, 1792, 0)[part]}"), DMA(vWO, SQKV, s(sB0), 0, "cvq"[part] + str(t))], lines)


XF = 32
SLC = 192
vVR = 144
vKW, vKR, vSO, vWM, vXW, vXR2, vKR2 = 148, 149, 150, 151, 157, 158, 159
vXA = 28
RW = [256 + 160 + 4*i for i in range(8)]
ACK, ACV = 176, 192
PK, PV = 208, 216
BM, BR = 224, 240
vPOI = 256 + 248
vCS = 164
vCC = 166
vCSA, vCSR, vBW, vL8, vFA = 167, 172, 173, 174, 175
sROT, sCWK = sC0, sOUTW
sRC = sIDLE
sSLO, sF1W = sCA, sCB2
sWP = sMK


def phi_ops(acc, cs, mean, rs, dst, tmp):
    o = []
    P = lambda b, i: v(b + 2*i, 2)
    o += [pkop("v_pk_fma_f32", P(acc, i), [mean(i), cs(i), (P(acc, i), None)], neg0=True) for i in range(8)]
    o += [pkop("v_pk_mul_f32", P(acc, i), [(P(acc, i), None), rs(i)]) for i in range(8)]
    if tmp is not None:
        o += [V(f"v_pk_mul_f32 {P(tmp,i)}, {P(acc,i)}, {s(sL2E,2)}") for i in range(8)]
        for i in range(16):
            o += [V(f"v_exp_f32 {v(tmp+i)}, {v(tmp+i)} clamp"), V(f"v_max_f32 {v(acc+i)}, 0, {v(acc+i)}")]
        o += [V(f"v_pk_add_f32 {P(acc,i)}, {P(acc,i)}, {P(tmp,i)}") for i in range(8)]
        o += [V(f"v_pk_add_f32 {P(acc,i)}, {P(acc,i)}, {s(sEPS,2)}") for i in range(8)]
    o += [V(f"v_cvt_pk_bf16_f32 {v(dst+i)}, {v(acc+2*i)}, {v(acc+2*i+1)}") for i in range(8)]
    return o


def cs_sum(dst, b=168):
    return [V(f"v_add_f32 {v(b)}, {v(b)}, {v(b+1)}"), V(f"v_add_f32 {v(b+2)}, {v(b+2)}, {v(b+3)}"), V(f"v_add_f32 {v(dst)}, {v(b)}, {v(b+2)}")]


HORD = [0, 1, 3, 5, 7, 2, 4, 6]
NEARLY = 5
T_ = 152


def setup1():
    for t in range(1, 7):
        A(f"s_add_u32 {s(sM+8+t)}, {s(sM+7+t)}, 128")
        A(f"s_cmp_eq_u32 {s(sM+8+t)}, 896")
        A(f"s_cselect_b32 {s(sM+8+t)}, 0, {s(sM+8+t)}")
        A(f"s_mul_i32 {s(sM+1+t)}, {s(sM+8+t)}, 1344")
    T = T_
    A(f"v_lshlrev_b32 {v(vL16)}, 4, {v(vLANE)}")
    A(f"v_bfe_u32 {v(T+2)}, {v(vLANE)}, 2, 2")
    A(f"v_bfe_u32 {v(T+3)}, {v(vLANE)}, 4, 1")
    A(f"v_and_b32 {v(T+4)}, 3, {v(vLANE)}")
    A(f"v_bfe_u32 {v(vT)}, {v(vLANE)}, 1, 3")
    A(f"v_xor_b32 {v(vT)}, {v(vT)}, {v(T+1)}")
    A(f"v_lshlrev_b32 {v(vT)}, 4, {v(vT)}")
    A(f"v_lshl_add_u32 {v(vT)}, {v(T)}, 7, {v(vT)}")
    A(f"s_add_u32 {s(sT0)}, {s(sW4K)}, 0x10000")
    A(f"v_add_u32 {v(vT)}, {s(sT0)}, {v(vT)}")
    A(f"v_lshl_add_u32 {v(vT+1)}, {v(T+1)}, 3, {v(T+2)}")
    A(f"v_lshlrev_b32 {v(vT+1)}, 6, {v(vT+1)}")
    A(f"v_lshl_add_u32 {v(vT+2)}, {v(T+3)}, 2, {v(T+4)}")
    A(f"v_cmp_lt_u32 vcc, 5, {v(vT+2)}")
    A(f"v_xor_b32 {v(vT+3)}, 1, {v(vT+2)}")
    A(f"s_mov_b32 {s(sONES)}, 0x3f803f80")
    A(f"v_cndmask_b32 {v(vT+2)}, {v(vT+2)}, {v(vT+3)}, vcc")
    A(f"v_lshl_add_u32 {v(vT+1)}, {v(vT+2)}, 3, {v(vT+1)}")
    A(f"v_add_u32 {v(vT+2)}, {32*K}, {v(vT+1)}")
    A(f"v_add_u32 {v(vT+1)}, {WKL}, {v(vT+1)}")
    for i in range(4):
        A(f"s_add_u32 {s(sT0)}, {s(sW)}, {i}")
        A(f"s_and_b32 {s(sT0)}, {s(sT0)}, 3")
        A(f"s_lshl_b32 {s(sT1)}, {s(sT0)}, 5")
        A(f"v_xor_b32 {v(vXR+i)}, {s(sT1)}, {v(vT)}")
        A(f"v_lshl_add_u32 {v(vWR+i)}, {s(sT0)}, 10, {v(vT+1)}")
        A(f"v_lshl_add_u32 {v(vVR+i)}, {s(sT0)}, 12, {v(vT+2)}")
    A("s_mov_b32 vcc_lo, 0xf0f00f0f")
    A("s_mov_b32 vcc_hi, 0xf0f00f0f")
    A(f"v_mov_b32 {v(vT)}, {s(sONES)}")
    A(f"v_cndmask_b32 {v(vT)}, 0, {v(vT)}, vcc")
    for k in range(4):
        A(f"v_accvgpr_write_b32 {r(SEL+k)}, {v(vT)}")
        A(f"v_accvgpr_write_b32 {r(vPOI+k)}, -1")
    srd(SWS, WS_BYTES)
    A(f"v_lshlrev_b32 {v(vL8)}, 3, {v(vLANE)}")
    A(f"s_lshl2_add_u32 {s(sG1)}, {s(sHEAD)}, {s(sW)}")
    A(f"s_lshl_b32 {s(sG1)}, {s(sG1)}, 13")
    A(f"s_lshl_b32 {s(sT0)}, {s(sRB)}, 9")
    A(f"s_add_u32 {s(sKVPW)}, {s(sG1)}, {s(sT0)}")
    A(f"s_lshl_b32 {s(sB1)}, {s(sB1)}, 7")
    A(f"s_add_u32 {s(sB1)}, {s(sB1)}, {SL1}")
    A(f"v_lshlrev_b32 {v(vSO)}, 4, {v(T+4)}")
    A(f"v_lshl_add_u32 {v(vSO)}, {v(T+1)}, 6, {v(vSO)}")
    if OPT["warm"]:
        A(f"s_cmp_eq_u32 {s(sW)}, 1")
        A(f"s_cselect_b64 {s(sWP,2)}, {s(SWU,2)}, {s(SWG,2)}")
        A(f"s_cmp_eq_u32 {s(sW)}, 2")
        A(f"s_cselect_b64 {s(sWP,2)}, {s(SWD,2)}, {s(sWP,2)}")
        A(f"s_cmp_eq_u32 {s(sW)}, 3")
        A(f"s_cselect_b64 {s(sWP,2)}, {s(SWO,2)}, {s(sWP,2)}")
        A(f"s_cselect_b32 {s(sT0)}, 63, -1")
        A(f"s_and_b32 {s(sT0)}, {s(sT0)}, s2")
        A(f"s_mul_i32 {s(sT0)}, {s(sT0)}, 49")
        A(f"s_add_u32 {s(sT0)}, {s(sT0)}, 21")
        A(f"v_min_u32 {v(vWM)}, 6, {v(vLANE)}")
        A(f"v_add_lshl_u32 {v(vWM)}, {v(vWM)}, {s(sT0)}, 7")


def setup2():
    T = T_
    A(f"s_lshl4_add_u32 {s(sT0)}, {s(sHEAD)}, {s(sRB)}")
    A(f"s_lshl_b32 {s(sT0)}, {s(sT0)}, 7")
    A(f"s_add_u32 {s(sF1W)}, {s(sT0)}, {FL1}")
    A(f"s_lshl2_add_u32 {s(sT0)}, {s(sHEAD)}, {s(sW)}")
    A(f"s_lshl_b32 {s(sT0)}, {s(sT0)}, 9")
    A(f"s_add_u32 {s(sFL)}, {s(sT0)}, {FL1}")
    A(f"v_lshlrev_b32 {v(vFA)}, 7, {v(T+4)}")
    A(f"s_lshl2_add_u32 {s(sT0)}, {s(sRB)}, {s(sW)}")
    A(f"s_lshl_b32 {s(sT0)}, {s(sT0)}, 11")
    A(f"s_add_u32 {s(sSLO)}, {s(sT0)}, {SL1}")
    A(f"v_lshlrev_b32 {v(vSO)}, 6, {v(T)}")
    A(f"v_lshlrev_b32 {v(vCSR)}, 4, {v(T)}")
    A(f"v_add_u32 {v(vCSR)}, {MISC + 1024}, {v(vCSR)}")
    A(f"v_lshl_add_u32 {v(vCSA)}, {s(sW)}, 2, {v(vCSR)}")
    A(f"s_lshl_b32 {s(sT2)}, {s(sW)}, 8")
    A(f"s_add_u32 {s(sT2)}, {s(sT2)}, {MISC}")
    A(f"v_lshl_add_u32 {v(vBC)}, {v(T+1)}, 4, {s(sT2)}")
    A(f"v_lshl_add_u32 {v(vBW)}, {v(vLANE)}, 2, {s(sT2)}")
    A(f"s_mov_b32 {s(sUP)}, 0")
    A(f"s_mov_b32 {s(sUP+1)}, -1")
    A(f"s_and_b32 {s(sT2)}, {s(sHEAD)}, 7")
    A(f"s_mul_i32 {s(sT3)}, {s(sP)}, 7")
    A(f"s_cmp_eq_u32 {s(sT2)}, {s(sT3)}")
    A(f"s_cselect_b32 {s(sIDLE)}, 0x100, 0")
    A(f"s_cmp_gt_u32 {s(sT2)}, {s(sT3)}")
    A(f"s_cselect_b32 {s(sT3)}, 1, 0")
    A(f"s_sub_u32 {s(sCB)}, {s(sT2)}, {s(sT3)}")
    A(f"s_min_u32 {s(sCB)}, {s(sCB)}, 6")
    A(f"s_and_b32 {s(sT3)}, {s(sRB)}, 3")
    A(f"s_and_b32 {s(sT2)}, s2, {dict([(16, 7), (8, 3), (4, 1)])[OPT['cm']]}")
    A(f"s_lshl2_add_u32 {s(sT3)}, {s(sT2)}, {s(sT3)}")
    A(f"s_mul_i32 {s(sT3)}, {s(sT3)}, 7")
    A(f"s_add_u32 {s(sT3)}, {s(sT3)}, {s(sCB)}")
    A(f"s_lshr_b32 {s(sFB)}, {s(sT3)}, {dict([(16, 4), (8, 3), (4, 2)])[OPT['cm']]}")
    A(f"s_and_b32 {s(sT3)}, {s(sT3)}, {OPT['cm'] - 1}")
    A(f"s_and_b32 {s(sT2)}, {s(sRB)}, {16 - OPT['cm']}")
    A(f"s_or_b32 {s(sT3)}, {s(sT3)}, {s(sT2)}")
    A(f"s_or_b32 {s(sRC)}, {s(sRC)}, {s(sT3)}")
    A(f"s_and_b32 {s(sKH)}, {s(sW)}, 1")
    srd(SWG, 448 * 3584)
    srd(SWU, 448 * 3584 + 1024)
    A(f"s_sub_u32 {s(SWU)}, {s(SWU)}, 1024")
    A(f"s_subb_u32 {s(SWU+1)}, {s(SWU+1)}, 0")
    A(f"s_lshl2_add_u32 {s(sT0)}, {s(sFB)}, {s(sW)}")
    A(f"s_lshl_b32 {s(sT1)}, {s(sT0)}, 6")
    A(f"v_lshrrev_b32 {v(vT)}, 2, {v(vLANE)}")
    A(f"v_mul_u32_u24 {v(vT)}, 3584, {v(vT)}")
    A(f"v_and_b32 {v(vT+1)}, 0x30, {v(vL16)}")
    A(f"v_add3_u32 {v(vCW)}, {v(vT)}, {v(vT+1)}, {s(sT1)}")
    A(f"v_xor_b32 {v(vCW+1)}, 32, {v(vCW)}")
    A(f"s_mul_i32 {s(sGW)}, {s(sT3)}, 224")
    A(f"s_add_u32 {s(sGW)}, {s(sGW)}, {s(sT0)}")
    A(f"s_lshl_b32 {s(sGW)}, {s(sGW)}, 11")
    A(f"s_add_u32 {s(sGW)}, {s(sGW)}, {GG}")
    if OPT["rot"]:
        sh = dict([(16, 4), (8, 3), (4, 2)])[OPT["cm"]]
        A(f"s_and_b32 {s(sT0)}, {s(sT3)}, {OPT['cm'] - 1}")
        A(f"s_lshl_b32 {s(sT0)}, {s(sT0)}, {4 - sh}")
        A(f"s_lshr_b32 {s(sT1)}, {s(sT3)}, {sh}")
        A(f"s_add_u32 {s(sT0)}, {s(sT0)}, {s(sT1)}")
        if OPT["rot"] > 1:
            A(f"s_andn2_b32 {s(sT0)}, {s(sT0)}, {OPT['rot'] - 1}")
        A(f"s_mul_i32 {s(sT0)}, {s(sT0)}, 7")
        A(f"s_lshr_b32 {s(sROT)}, {s(sT0)}, 2")
    else:
        A(f"s_mov_b32 {s(sROT)}, 0")
    A(f"s_mul_i32 {s(sCWK)}, {s(sROT)}, {16*3584}")


def setup3():
    T = T_
    A(f"s_lshl_b32 {s(sT0)}, {s(sRB)}, 2")
    A(f"s_add_u32 {s(sOW)}, {s(sT0)}, {s(sW)}")
    A(f"s_lshl4_add_u32 {s(sOW)}, {s(sOW)}, {s(sHEAD)}")
    A(f"s_lshl_b32 {s(sOW)}, {s(sOW)}, 11")
    A(f"s_add_u32 {s(sOW)}, {s(sOW)}, {OO}")
    A(f"v_lshrrev_b32 {v(vT)}, 3, {v(vLANE)}")
    A(f"s_and_b32 {s(sT1)}, {s(sW)}, 2")
    A(f"s_add_u32 {s(sT1)}, {s(sT1)}, {s(sP)}")
    A(f"s_add_u32 {s(sT1)}, {s(sT1)}, {s(sT0)}")
    A(f"s_lshl1_add_u32 {s(sT3)}, {s(sCB)}, {s(sKH)}")
    A(f"s_mul_i32 {s(sSTW)}, {s(sT1)}, 14")
    A(f"s_add_u32 {s(sSTW)}, {s(sSTW)}, {s(sT3)}")
    A(f"v_mul_u32_u24 {v(vT)}, 896, {v(vT)}")
    A(f"s_lshl_b32 {s(sHW)}, {s(sSTW)}, 11")
    A(f"s_add_u32 {s(sHW)}, {s(sHW)}, {HH_}")
    A(f"s_lshl_b32 {s(sSTW)}, {s(sSTW)}, 8")
    A(f"s_add_u32 {s(sSTW)}, {s(sSTW)}, {ST}")
    A(f"s_lshl1_add_u32 {s(sT1)}, {s(sT1)}, {s(sKH)}")
    A(f"s_mul_i32 {s(sXB)}, {s(sT1)}, {16*896}")
    A(f"v_and_b32 {v(vT+1)}, 0x70, {v(vL16)}")
    A(f"s_lshl_b32 {s(sT1)}, {s(sT1)}, 3")
    A(f"s_sub_u32 {s(sT1)}, {s(sT1)}, {s(sKH)}")
    A(f"s_lshl_b32 {s(sT1)}, {s(sT1)}, 11")
    for i in range(8):
        A(f"s_add_u32 {s(sG2+i)}, {s(sT1)}, {OO + HORD[i]*2048}")
    A(f"s_lshl_b32 {s(sT2)}, {s(sKH)}, 14")
    A(f"s_add_u32 {s(sG2)}, {s(sG2)}, {s(sT2)}")
    A(f"v_lshlrev_b32 {v(vT+2)}, 6, {v(T+3)}")
    A(f"s_mov_b32 {s(sL2E)}, 0x3fb8aa3b")
    A(f"s_mov_b32 {s(sL2E+1)}, 0x3fb8aa3b")
    A(f"s_mov_b32 {s(sEPS)}, 0x358637bd")
    A(f"s_mov_b32 {s(sEPS+1)}, 0x358637bd")
    A(f"v_xor_b32 {v(vT+1)}, {v(vT+1)}, {v(vT+2)}")
    A(f"s_lshl_b32 {s(sT0)}, {s(sCB)}, 7")
    A(f"v_add3_u32 {v(vRO)}, {v(vT)}, {v(vT+1)}, {s(sT0)}")
    A(f"v_add_u32 {v(vRO+1)}, {7168-1024}, {v(vRO)}")
    srd(SWO, 448 * 896)
    srd(SWD, 1792 * 896)
    srd(SOUT, 2048 * 896)
    A(f"v_lshl_add_u32 {v(vT)}, {v(T+1)}, 2, {v(T+2)}")
    A(f"v_lshlrev_b32 {v(vT)}, 6, {v(vT)}")
    A(f"v_mul_u32_u24 {v(vT+1)}, {1024+32}, {v(T+3)}")
    A(f"v_lshlrev_b32 {v(vT+2)}, 3, {v(T+4)}")
    A(f"v_add3_u32 {v(vT)}, {v(vT)}, {v(vT+1)}, {v(vT+2)}")
    A(f"v_add_u32 {v(vCR)}, {s(sW4K)}, {v(vT)}")
    A(f"v_xor_b32 {v(vCR+1)}, 32, {v(vCR)}")
    A(f"s_mul_i32 {s(sW7K)}, {s(sW)}, {7*K}")
    A(f"s_mul_i32 {s(sDWK)}, {s(sW)}, {112*896}")
    A(f"s_mul_i32 {s(sWOL)}, {s(sW)}, {14*K}")
    A(f"s_add_u32 {s(sWOL)}, {s(sWOL)}, {WL0}")
    A(f"v_bfe_u32 {v(vXA)}, {v(vLANE)}, 1, 3")
    A(f"s_lshl_b32 {s(sT0)}, {s(sKH)}, 2")
    A(f"v_xor_b32 {v(vXA)}, {s(sT0)}, {v(vXA)}")
    A(f"v_lshlrev_b32 {v(vXA)}, 4, {v(vXA)}")
    A(f"v_lshl_add_u32 {v(vXA)}, {v(T)}, 7, {v(vXA)}")
    A(f"v_lshl_add_u32 {v(vXA)}, {v(T+1)}, 3, {v(vXA)}")
    A(f"s_lshr_b32 {s(sT0)}, {s(sW)}, 1")
    A(f"s_lshl_b32 {s(sT0)}, {s(sT0)}, 12")
    A(f"s_add_u32 {s(sT0)}, {s(sT0)}, {XIMG}")
    A(f"v_add_u32 {v(vXA)}, {s(sT0)}, {v(vXA)}")
    A(f"v_add_u32 {v(vKW)}, {96*K}, {v(vL16)}")
    A(f"v_add_u32 {v(vKW)}, {s(sW4K)}, {v(vKW)}")
    A(f"v_lshrrev_b32 {v(vT)}, 4, {v(vLANE)}")
    A(f"v_and_b32 {v(vT+1)}, 0xf0, {v(vL16)}")
    A(f"v_lshl_add_u32 {v(vT)}, {v(vT)}, 9, {v(vT+1)}")
    A(f"s_lshr_b32 {s(sT0)}, {s(sW)}, 1")
    A(f"s_lshl_b32 {s(sT1)}, {s(sT0)}, 8")
    A(f"s_add_u32 {s(sT1)}, {s(sT1)}, {96*K}")
    A(f"v_add_u32 {v(vKR)}, {s(sT1)}, {v(vT)}")
    A(f"s_lshl_b32 {s(sT1)}, {s(sKH)}, 8")
    A(f"s_add_u32 {s(sT1)}, {s(sT1)}, {96*K + 2048}")
    A(f"v_add_u32 {v(vKR2)}, {s(sT1)}, {v(vT)}")
    A(f"v_add_u32 {v(vXR2)}, {KVX}, {v(vL16)}")
    A(f"v_and_b32 {v(vT+1)}, 7, {v(vLANE)}")
    A(f"v_lshl_add_u32 {v(vT+1)}, {v(vT+1)}, 1, {v(T+1)}")
    A(f"v_lshl_add_u32 {v(vT+1)}, {s(sKH)}, 4, {v(vT+1)}")
    A(f"v_max_u32 {v(vT)}, 24, {v(vT+1)}")
    A(f"v_lshlrev_b32 {v(vT)}, 2, {v(vT)}")
    A(f"s_mov_b32 {s(sT1)}, 0x30415533")
    A(f"v_bfe_u32 {v(vT)}, {s(sT1)}, {v(vT)}, 4")
    A(f"v_add_u32 {v(vT)}, {v(vT)}, {v(vT+1)}")
    A(f"v_bfe_u32 {v(vT+1)}, {v(vLANE)}, 3, 1")
    A(f"v_lshl_add_u32 {v(vT)}, {v(vT+1)}, 5, {v(vT)}")
    A(f"v_lshlrev_b32 {v(vT)}, 4, {v(vT)}")
    A(f"v_lshl_add_u32 {v(vT)}, {v(T+3)}, 3, {v(vT)}")
    A(f"s_lshl_b32 {s(sT0)}, {s(sT0)}, 10")
    A(f"s_add_u32 {s(sT0)}, {s(sT0)}, {KVX - 48}")
    A(f"v_add_u32 {v(vXW)}, {s(sT0)}, {v(vT)}")
    A(f"s_bitcmp1_b32 {s(sRC)}, 8")
    A(f"s_cselect_b32 {s(sHW)}, {WS_BYTES}, {s(sHW)}")
    A(f"s_cselect_b32 {s(sSTW)}, {WS_BYTES}, {s(sSTW)}")
    A(f"s_cmp_lt_u32 {s(sW)}, 2")
    A(f"s_cselect_b32 {s(sHF)}, {s(sHW)}, {WS_BYTES}")


def setup4():
    T = T_
    A(f"s_mov_b32 {s(sMK)}, 0x3f80")
    A(f"s_mov_b32 {s(sMK+1)}, 0x3f800000")
    A(f"s_lshl2_add_u32 {s(sT0)}, {s(sRB)}, {s(sW)}")
    A(f"s_mul_i32 {s(sT0)}, {s(sT0)}, {32*896}")
    A(f"s_lshl_b32 {s(sT1)}, {s(sCB)}, 7")
    A(f"s_add_u32 {s(sXB)}, {s(sXB)}, {s(sT1)}")
    A(f"v_subrev_u32 {v(160)}, {s(sT0)}, {v(vXO)}")
    A(f"v_subrev_u32 {v(161)}, {s(sT0)}, {v(vXO+1)}")
    A(f"v_lshrrev_b32 {v(4)}, 1, {v(T+2)}")
    A(f"v_xor_b32 {v(4)}, {s(sKH)}, {v(4)}")
    A(f"v_lshlrev_b32 {v(4)}, 6, {v(4)}")
    A(f"v_lshl_add_u32 {v(4)}, {v(T+2)}, 7, {v(4)}")
    A(f"v_lshl_add_u32 {v(4)}, {v(T+3)}, 5, {v(4)}")
    A(f"v_lshl_add_u32 {v(4)}, {v(T+4)}, 3, {v(4)}")
    A(f"s_mul_i32 {s(sT0)}, {s(sKH)}, {15*28*128}")
    A(f"s_add_u32 {s(sT0)}, {s(sT0)}, {WL0}")
    A(f"v_add_u32 {v(4)}, {s(sT0)}, {v(4)}")
    A(f"v_lshl_add_u32 {v(2)}, {v(T+1)}, 9, {v(4)}")
    A(f"v_mul_u32_u24 {v(3)}, {256+64}, {v(T+1)}")
    A(f"v_xor_b32 {v(4)}, {v(3)}, {v(4)}")
    A(f"v_xor_b32 {v(5)}, 64, {v(4)}")
    A(f"v_xor_b32 {v(3)}, 64, {v(2)}")
    if OPT.get("rw"):
        A(f"s_and_b32 {s(sT0)}, {s(sRB)}, 3")
        A(f"s_lshl_b32 {s(sT0)}, {s(sT0)}, 1")
    else:
        A(f"s_and_b32 {s(sT0)}, s2, 7")
        A(f"s_min_u32 {s(sT0)}, {s(sT0)}, 6")
    A(f"s_lshl_b32 {s(sM+8)}, {s(sT0)}, 7")
    for t in range(1, 7):
        A(f"s_add_u32 {s(sM+8+t)}, {s(sM+7+t)}, 128")
        A(f"s_cmp_eq_u32 {s(sM+8+t)}, 896")
        A(f"s_cselect_b32 {s(sM+8+t)}, 0, {s(sM+8+t)}")


def flag_set(d, l8):
    lab = A.label("L_cnt")
    A(f"s_cmp_lg_u32 {s(sW)}, 3")
    A(f"s_cbranch_scc1 {lab}")
    A(f"v_mov_b32 {v(d)}, {s(sTAG)}")
    A(f"v_mov_b32 {v(d+1)}, {s(sTAG)}")
    A("s_mov_b64 exec, 0xffff")
    A(f"buffer_store_dwordx2 {v(d,2)}, {v(l8)}, {s(SWS,4)}, {s(sF1W)} offen sc1")
    A("s_mov_b64 exec, -1")
    A(f"{lab}:")


st4 = lambda so, imm, tag: ("vm", f"buffer_store_dwordx4 {r(vPOI,4)}, {v(vL16)}, {s(SWS,4)}, {so} offen{off(imm)} sc1", tag)


def u_cw(ks, pace=16):
    sl = ks % 8
    pre = [WL(f"cr{ks-8}")] if ks >= 8 else []
    adv = [S(f"s_add_u32 {s(sCWK)}, {s(sCWK)}, {16*3584}"), S(f"s_cmp_eq_u32 {s(sCWK)}, {448*3584}"), S(f"s_cselect_b32 {s(sCWK)}, 0, {s(sCWK)}")] if ks else [S("s_nop 0")]
    if not OPT["rot"]:
        adv = [S(f"s_mov_b32 {s(sCWK)}, {ks*16*3584}")]
    return unit(pre + [S(f"s_add_u32 m0, {s(sW4K)}, {(sl >> 1)*16*K + (sl & 1)*2048}")] + adv +
                [DMA(vCW, SWG, s(sCWK), 0, f"cw{ks}"), DMA(vCW+1, SWU, s(sCWK), 1024, f"cw{ks}")], pace)


def cw_read(a_, b_):
    o = []
    for ks in range(a_, b_):
        sl = ks % 8
        o += [WV(f"cw{ks}")] + [TR(CW + (ks*2+t)*4 + rd*2, vCR + t, (sl >> 1)*16*K + (sl & 1)*2048 + rd*512, f"cr{ks}") for t in range(2) for rd in range(2)]
    return o


LAG = 6
CWN = [0]


def pump(n, pace=16):
    us = []
    for ks in range(CWN[0], min(28, CWN[0] + n)):
        u = u_cw(ks, pace)
        u["ops"] = u["ops"] + (cw_read(ks - LAG, ks - LAG + 1) if ks >= LAG else [])
        us.append(u)
    CWN[0] += len(us)
    return us


def pump1():
    assert CWN[0] < 4
    u = pump(1)[0]
    run(u["ops"], bg=False)
    CK.bgn = max(CK.bgn, CK.t) + u["ta"]


PUMP1 = FN(pump1)


def cw_cs(a_, b_):
    o = []
    for ks in range(a_, b_):
        o += [WL(f"cr{ks}")] + [M16(CSA + 4*t, SEL, CW + (ks*2+t)*4, ks == 0) for t in range(2)]
    return o


def wgemm(part, acc, swap, cso, bars, first, extra={}):
    nm = "kvq"[part]

    def reads(n):
        t, i = divmod(n, 4)
        oo = [WV(bars[n]), BAR] if n in bars else []
        return oo + [TR(RW[(first + n) % 8] + rd*2, vVR + i, (2 - part)*32*K + (t >> 2)*16*K + (t & 3)*1024 + rd*256, f"{nm}r{n}") for rd in range(2)]
    main = []
    for n in range(28):
        w_ = RW[(first + n) % 8]
        nxt = reads(n + 4) if n + 4 < 28 else []
        main += [o_ for o_ in nxt if o_[0] != "lds"]
        if n % 2 == 0:
            main.append(WL(f"{nm}r{n+1}"))
        if n % 4 == 0:
            main.append(M16(ACS + 4*(part % 2), SEL, w_, n == 0))
        main.append(M32(acc, w_, XF + n*4, n == 0) if swap else M32(acc, XF + n*4, w_, n == 0))
        main += [o_ for o_ in nxt if o_[0] == "lds"]
        if n == 26:
            main.append(("lds", f"ds_write_b32 {v(vCSA)}, {r(ACS + 4*(part % 2))}{off(cso)}", "csw"))
        main += extra.get(n, [])
    head = []
    for n in range(4):
        head += reads(n)
    return head, main


def phaseA():
    UP, LK = OPT.get("up", 2), OPT.get("lk", 4)
    for j in range(2):
        E(("vm", f"buffer_load_dwordx4 {v(SLC+4*j,4)}, {v(vT)}, {s(SX,4)}, {s(sT0)} offen{off(448*j)}", "sl"))
    A(f"s_mov_b32 {s(sT0)}, {EPO}")
    A(f"s_load_dword {s(sTAG)}, {s(SWS,2)}, {s(sT0)}")
    chunk = lambda t: [u_w(0, t, 16)] + u_x(t)
    BG.extend(chunk(0))
    bg_force()
    o1 = cap(setup1)
    run(o1[:18], bg=False)
    for t in range(1, UP):
        BG.extend(chunk(t))
    spread(o1[18:])
    for t in range(UP, LK):
        BG.extend(chunk(t))
    S0 = SLC + 8
    o = [V(f"v_mov_b32 {v(S0)}, 0"), V(f"v_mov_b32 {v(S0+2)}, 0"), WV("sl"), ST_(1)]
    for k in range(8):
        o += [V(f"v_dot2c_f32_bf16 {v(S0)}, {s(sONES)}, {v(SLC+k)}"), V(f"v_dot2c_f32_bf16 {v(S0+2)}, {v(SLC+k)}, {v(SLC+k)}")]
    for pat in ("quad_perm:[1,0,3,2]", "quad_perm:[2,3,0,1]", "row_half_mirror", "row_mirror"):
        o += [V(f"v_add_f32_dpp {v(S0+k)}, {v(S0+k)}, {v(S0+k)} {pat} row_mask:0xf bank_mask:0xf") for k in (0, 2)]
    o += [V(f"v_mov_b32 {v(S0+1+k)}, {v(S0+k)}") for k in (0, 2)]
    o += [V(f"v_permlane16_swap_b32 {v(S0+k)}, {v(S0+1+k)}") for k in (0, 2)]
    o += [V(f"v_add_f32 {v(S0+k)}, {v(S0+k)}, {v(S0+1+k)}") for k in (0, 2)]
    o += [V(f"v_mul_f32 {v(S0)}, 0x3b124925, {v(S0)}"), V(f"v_mul_f32 {v(S0+2)}, 0x3b124925, {v(S0+2)}"),
          V(f"v_fma_f32 {v(S0+2)}, -{v(S0)}, {v(S0)}, {v(S0+2)}"), V(f"v_max_f32 {v(S0+2)}, 0, {v(S0+2)}"),
          V(f"v_add_f32 {v(S0+2)}, 0x3727c5ac, {v(S0+2)}"), V(f"v_rsq_f32 {v(S0+2)}, {v(S0+2)}"), WL("all"),
          S(f"s_mul_i32 {s(sTAG)}, {s(sTAG)}, 0x9e3779b1"), S(f"s_add_u32 {s(sTAG)}, {s(sTAG)}, 0x7f4a7c15"),
          V(f"v_mov_b32 {v(S0+1)}, {s(sTAG)}"), V(f"v_mov_b32 {v(S0+3)}, {s(sTAG)}"),
          FN(lambda: run([S("s_mov_b32 exec_lo, 15"), S("s_mov_b32 exec_hi, 15"),
                          ("vm", f"buffer_store_dwordx4 {v(S0,4)}, {v(vSO)}, {s(SWS,4)}, {s(sB1)} offen sc1", "zs"), S("s_mov_b64 exec, -1")], bg=False)),
          ("vm", f"buffer_store_dwordx2 {r(vPOI,2)}, {v(vL8)}, {s(SWS,4)}, {s(sKVPW)} offen sc1", "zs")]
    run(o[:4], bg=False)
    spread(o[4:] + cap(setup2))
    stamp(2)

    def kreads(n):
        t, i = divmod(n, 4)
        oo = []
        if i == 0:
            oo += [WV([f"c{t}", "zs"] if t == 5 else f"c{t}"), BAR]
            if t == 5:
                oo.append(FN(lambda: flag_set(vCS, vL8), 8))
        if t == 3:
            oo.append(V(f"v_subrev_u32 {v(vXR+i)}, 0x10000, {v(vXR+i)}"))
        oo.append(RD128(XF + n*4, vXR + i, (t if t < 3 else t-3)*16*K, f"k{n}"))
        oo += [TR(RW[n % 8] + rd*2, vWR + i, t*4096 + rd*256, f"k{n}") for rd in range(2)]
        return oo
    SV = SLC
    sld = f"buffer_load_dwordx4 {v(SV,4)}, {v(vSO)}, {s(SWS,4)}, {s(sSLO)} offen sc1"
    body = {t: (chunk(t + LK) if t + LK < 7 else []) for t in range(7)}
    vq = [u_w(1, t) for t in range(7)]
    free = [t for t in range(7) if not body[t]]
    plan = [int(c_) for c_ in str(OPT.get('plan', 'p1121'))[1:]]
    assert len(plan) == len(free)
    for t, c_ in zip(free, plan):
        for _ in range(c_):
            body[t].append(vq.pop(0))
    body[OPT.get("sb", 3)].append(unit([("vm", sld, "sv")], 4))
    if OPT["warm"]:
        for t in range(7):
            body[t].append(unit([("vm", f"global_load_dword a255, {v(vWM)}, {s(sWP,2)} offset:{896*(t-3)}", "warm")], 7))
    LA = 3
    run(sum([kreads(n) for n in range(LA)], []), bg=False)
    bodies = [[] for _ in range(7)]
    s3 = cap(setup3)
    per = -(-len(s3) // 16)
    s4 = cap(setup4)
    per4 = -(-len(s4) // 8)
    assert LK >= 3 and not OPT["warm"]
    for n in range(28):
        t, i = divmod(n, 4)
        nxt = kreads(n + LA) if n + LA < 28 else []
        main = bodies[t]
        main += [o_ for o_ in nxt if o_[0] != "lds"]
        main.append(WL(f"k{n}"))
        if i == 0:
            main.append(M16(ACS, SEL, RW[n % 8], n == 0))
        main.append(M32(ACK, XF + n*4, RW[n % 8], n == 0))
        main += [o_ for o_ in nxt if o_[0] == "lds"]
        main += s3[n*per:(n+1)*per]
        if n >= 16:
            main += s4[(n-16)*per4:(n-15)*per4]
        if n == 26:
            main.append(("lds", f"ds_write_b32 {v(vCSA)}, {r(ACS)}", "csw"))
    lab, back = A.label("L_sv"), A.label("L_svb")
    schk = [f"v_xor_b32 {v(SV+1)}, {s(sTAG)}, {v(SV+1)}", f"v_xor_b32 {v(SV+3)}, {s(sTAG)}, {v(SV+3)}", f"v_or_b32 {v(SV+1)}, {v(SV+1)}, {v(SV+3)}",
            f"v_cmp_ne_u32 vcc, 0, {v(SV+1)}"]
    OOL.append([f"{lab}:"] + dbg_mark("sv") + [f"s_mov_b32 {s(sSPIN)}, 0", f"{lab}_t:", f"s_sleep {OPT['slp']}", sld, "s_waitcnt vmcnt(0)"] + schk +
               [f"s_cbranch_vccz {back}"] + spin_tail(f"{lab}_t", back))
    stt = [WV("sv")] + [V(c_) for c_ in schk] + [FN(lambda: (A(f"s_cbranch_vccnz {lab}"), A(f"{back}:")), 4),
           V(f"v_mov_b32 {v(vMEAN)}, {v(SV)}"), V(f"v_mov_b32 {v(vMEAN+1)}, {v(SV+2)}"),
           V(f"v_cndmask_b32 {v(SV)}, {v(SV)}, {v(SV+2)}, {s(sUP,2)}"), ("lds", f"ds_write_b32 {v(vBW)}, {v(SV)}", "st")]
    stt += [RD128(BM + 4*q, vBC, 32*q, "bm") for q in range(4)] + [RD128(BR + 4*q, vBC, 128 + 32*q, "br") for q in range(4)]
    for t in range(6):
        BG.extend(body[t])
        fst("K")
        spread(bodies[t])
    BG.extend(body[6])
    fst("K")
    bg_now()
    weave(bodies[6], [dict(ops=stt, g0=0, g1=3)])
    bg_force()
    stamp(3)
    BG.extend(vq)
    ccl, ccops = flag_check("cc", vCC, vFA, s(sFL))
    hv, mv = wgemm(1, ACV, False, 512, {1: {0: "v1", 8: "v3", 16: "v5", 24: "v6"}, 2: {0: "v2", 12: "v4", 20: "v6"}, 3: {0: "v2", 12: "v5", 24: "v6"}, 4: {0: "v1", 8: "v3", 16: "v4", 20: "v5", 24: "v6"}, 5: {0: "v1", 8: "v4", 20: "v6"}}[OPT.get("vb", 5)], 28,
                   extra={**{int(c_, 36): [PUMP1] for c_ in OPT["ev"][1:]}, 25: [ccl],
                          27: [WL("csw"), BAR, RD128(168, vCSR, 512, "csr2")]})
    pre = [S("s_mov_b32 vcc_lo, 0x30000000"), S("s_mov_b32 vcc_hi, 0x30000000"), V(f"v_mov_b32 {v(vT+1)}, {s(sONES)}")]
    if OPT.get("wv", 1):
        PT = PV
        ph = [WL("csr")] + cs_sum(vCS) + [V(f"v_xor_b32 {v(vCS)}, 0x80000000, {v(vCS)}"), V(f"v_mov_b32 {v(vT)}, {fh(-1e-6*1.4426950408889634)}")]
        for b in range(0, 16, 4):
            R4 = range(b, b + 4)
            tt = lambda i: PT + (i % 8)
            ph += [V(f"v_fmac_f32 {v(ACK+i)}, {v(BM+i)}, {v(vCS)}") for i in R4]
            ph += [V(f"v_fma_f32 {v(ACK+i)}, {v(ACK+i)}, {v(BR+i)}, {s(sEPS)}") for i in R4]
            ph += [V(f"v_fma_f32 {v(tt(i))}, {v(ACK+i)}, {s(sL2E)}, {v(vT)}") for i in R4]
            for i in R4:
                ph += [V(f"v_exp_f32 {v(tt(i))}, {v(tt(i))} clamp"), V(f"v_max_f32 {v(ACK+i)}, {s(sEPS)}, {v(ACK+i)}")]
            ph += [V(f"v_add_f32 {v(ACK+i)}, {v(ACK+i)}, {v(tt(i))}") for i in R4]
            ph += [V(f"v_cvt_pk_bf16_f32 {v(PK+i//2)}, {v(ACK+i)}, {v(ACK+i+1)}") for i in (b, b + 2)]
        ph += [WR128(vKW, PK + 4*j, j*1024, "pw") for j in range(2)]
        run([WL("csw")] + hv[:2] + [RD128(168, vCSR, 0, "csr")] + hv[2:] + [("bg", 1)] + pre, bg=False)
        stamp(4)
        BG.extend([u_w(2, t) for t in range(7)])
        weave(mv, [dict(ops=ph, g0=0, g1=OPT.get("pe", 24), greedy=True)], report=REP("V"))
    else:
        ph = phi_ops(ACK, lambda i: (v(vCS, 2), 0), lambda i: (v(BM+2*i, 2), None), lambda i: (v(BR+2*i, 2), None), PK, PK)
        o = [WL("csw"), BAR, RD128(168, vCSR, 0, "csr"), ("bg", 1), WL("csr")] + cs_sum(vCS) + ph[:36] + [("bg", 1)] + ph[36:70] + [("bg", 1)] + hv + ph[70:]
        run(o, bg=False)
        stamp(4)
        BG.extend([u_w(2, t) for t in range(7)])
        bg_now(OPT.get("dq", 100))
        weave(mv, [dict(ops=pre + [WR128(vKW, PK + 4*j, j*1024, "pw") for j in range(2)], g0=0, g1=24)], report=REP("V"))
    stamp(5)
    o = [RD128(ACK + 4*w, vKR, w*4096, "pr") for w in range(4)] + [("bg", 1), WL("csr2")] + cs_sum(vCS)
    pv = phi_ops(ACV, lambda i: (v(vCS, 2), 0), lambda i: (v(BM+2*i, 2), None), lambda i: (v(BR+2*i, 2), None), PV, None)
    for j in range(2):
        o += pv[4*j:4*j+4] + pv[8+4*j:12+4*j] + pv[16+4*j:20+4*j]
        o += [V(f"v_cndmask_b32 {v(PV+i)}, {v(PV+i)}, {v(vT+1)}, vcc") for i in range(4*j, 4*j+4)]
        o += [WR128(vKW, PV + 4*j, 2048 + j*1024, "kw")]
    o += [WL("kw"), BAR]
    o += [RD128(ACV + 4*w, vKR2, w*4096, f"kr{w}") for w in range(4)] + [("bg", 1)]
    for w in range(4):
        o += [WL(f"kr{w}"), M16(PK, ACK + 4*w, ACV + 4*w, w == 0)]
    o += [V(f"v_cvt_pk_bf16_f32 {v(PK)}, {v(PK)}, {v(PK+1)}"), V(f"v_cvt_pk_bf16_f32 {v(PK+1)}, {v(PK+2)}, {v(PK+3)}")]
    o += [("vm", f"buffer_store_dwordx2 {v(PK,2)}, {v(vL8)}, {s(SWS,4)}, {s(sKVPW)} offen sc1", "kvst")]
    run(o, bg=False)
    stamp(6)
    bg_force()
    PH = [st4(s(sHF), 0, "ph"), st4(s(sHF), 1024, "ph"), S("s_mov_b64 exec, 0xffff"), st4(s(sSTW), 0, "ph"), S("s_mov_b64 exec, -1")]
    hq, mq = wgemm(2, ACK, True, 1024, {0: "q3", 16: "q5", 24: "q6"}, 0,
                   extra={**{int(c_, 36): [PUMP1] for c_ in OPT["eq"][1:]}, **{int(c_, 36): [("bg", 1)] for c_ in OPT["ew"][1:]},
                          **{int(c_, 36): x for c_, x in zip(OPT["ep"][1:], (PH[:1], PH[1:2], PH[2:]))},
                          27: [WL("csw"), BAR, RD128(168, vCSR, 1024, "csr3")]})
    run(ccops + hq + [V(f"v_mov_b32 {v(7+j)}, {v(160+j)}") for j in range(2)] + [V(f"v_xor_b32 {v(8+q)}, {16*q}, {v(vXA)}") for q in range(1, 4)], bg=False)
    stamp(7)
    BG.extend([u_wo(g_) for g_ in range(7)] + [u_xres()])
    for _ in range(OPT.get("ck", 0)):
        pump1()
    E(("bg", OPT.get("w1", 0)))
    bg_now(OPT.get("dwo", 0))
    weave(mq, [dict(ops=[S(f"s_add_u32 {s(sM+1)}, {s(sG1)}, 4096"), S(f"s_mul_i32 {s(sT2)}, {s(sKH)}, {8*28*128}")], g0=6, g1=27)], report=REP("Q"), autobg=False)
    stamp(8)


def u_wo(g):
    return unit([S(f"s_lshl4_add_u32 m0, {s(sM+8+g)}, {s(sWOL)}"), S(f"s_mul_i32 {s(sB0)}, {s(sM+8+g)}, 112"), S(f"s_add_u32 {s(sB0)}, {s(sB0)}, {s(sDWK)}"),
                 DMA(vRO, SWO, s(sB0), 0, "wo"), DMA(vRO+1, SWO, s(sB0), 1024, "wo")], OPT.get("pw", 19))


def u_xres():
    return unit([S(f"s_lshl_b32 {s(sB0)}, {s(sW)}, 11"), S(f"s_add_u32 m0, {s(sB0)}, {XIMG}"), S("s_nop 0"),
                 DMA(7, SX, s(sXB), 0, "wo"), DMA(8, SX, s(sXB), 1024, "wo")], 16)


WOF = 32
G2 = 160
ACB = 224


def phaseQ():
    ACQ, QB, QT, PQ, KS, G1 = 176, 192, 208, 160, 168, 224
    G = [dict(loads=[f"buffer_load_dwordx4 {v(G1+4*g,4)}, {v(vL16)}, {s(SWS,4)}, {s(sG1) if g < 4 else s(sM+1)} offen{off((g % 4)*1024)} sc1"],
              regs=list(range(G1+4*g, G1+4*g+4))) for g in range(8)]
    lg_ = gather_loads("ga", G)
    rest = list(BG)
    BG.clear()
    print("wo units left after q:", len(rest)) if OPT["rep"] else None
    BG.extend([unit(lg_[2*g:2*g+2], 16) for g in range(4)] + rest)
    bg_now(OPT.get("dg1", 60))
    o = [WL("csr3")] + cs_sum(168) + [("lds", f"ds_write_b32 {v(vBW)}, {v(168)}", "st")]
    o += [RD128(QB + 4*q, vBC, 32*q, "bm") for q in range(4)] + [FN(lambda: None, 60), WL("bm")]
    o += phi_ops(ACQ, lambda i: (v(QB+2*i, 2), None), lambda i: (v(vMEAN, 2), 0), lambda i: (v(vMEAN, 2), 1), PQ, QT)
    o += [V(f"v_cndmask_b32 {v(PQ+i)}, {v(PQ+i)}, 0, {s(sUP,2)}") for i in (6, 7)]
    run(o)
    BG.extend(pump(OPT.get("n0", 1)))
    print("units before g1:", len(BG)) if OPT["rep"] else None
    bg_force(OPT.get("nf"))
    stamp(9)
    BG.extend(pump(OPT.get("n1", 4)))
    top, end = refresh("g1", G)
    o = top + [V(f"v_mov_b32 {v(KS+k)}, 0") for k in range(8)]
    for g in range(8):
        o.append(WV(f"ga{g}"))
        for k in range(4):
            o += [V(f"v_dot2c_f32_bf16 {v(KS+2*k)}, {s(sMK)}, {v(G1+4*g+k)}"), V(f"v_dot2c_f32_bf16 {v(KS+2*k+1)}, {s(sMK+1)}, {v(G1+4*g+k)}")]
    o += [V(f"v_permlane32_swap_b32 {v(KS+k)}, {v(KS+4+k)}") for k in range(4)]
    o += [V(f"v_pk_add_f32 {v(KS+k,2)}, {v(KS+k,2)}, {v(KS+4+k,2)}") for k in (0, 2)]
    o += [V(f"v_cmp_u_f32 vcc, {v(KS)}, {v(KS+2)}"),
          V(f"v_cvt_pk_bf16_f32 {v(KS)}, {v(KS)}, {v(KS+1)}"), V(f"v_cvt_pk_bf16_f32 {v(KS+1)}, {v(KS+2)}, {v(KS+3)}")] + end
    o += [ST_(10), ("lds", f"ds_write_b64 {v(vXW)}, {v(KS,2)}", "kf"), ("bg", 1), WV("ph"), WL("kf"), BAR,
          RD128(QT, vXR2, 0, "k0"), RD128(QT + 4, vXR2, 1024, "k1"), ("bg", 1),
          WL("k0"), M32(ACQ, QT, PQ, True), WL("k1"), M32(ACQ, QT + 4, PQ + 4), ("bg", 1),
          V(f"v_add_f32 {v(vT)}, {s(sEPS)}, {v(ACQ+14)}"), V(f"v_rcp_f32 {v(vT)}, {v(vT)}")]
    X3 = lambda d, a_, b_, c_: V(f"v_bitop3_b32 {d}, {a_}, {b_}, {c_} bitop3:0x96")
    for hf in range(2):
        R_ = range(4*hf, 4 + 3*hf)
        o += [V(f"v_pk_mul_f32 {v(ACQ+2*i,2)}, {v(ACQ+2*i,2)}, {v(vT,2)} op_sel_hi:[1,0]") for i in R_]
        o += [V(f"v_cvt_pk_bf16_f32 {v(PQ+i)}, {v(ACQ+2*i)}, {v(ACQ+2*i+1)}") for i in R_]
        if hf:
            o += [X3(v(PQ+7), v(PQ), v(PQ+1), s(sTAG)), X3(v(PQ+7), v(PQ+7), v(PQ+2), v(PQ+3)), X3(v(PQ+7), v(PQ+7), v(PQ+4), v(PQ+5)),
                  V(f"v_xor_b32 {v(PQ+7)}, {v(PQ+7)}, {v(PQ+6)}")]
        o += [("vm", f"buffer_store_dwordx4 {v(PQ+4*hf,4)}, {v(vL16)}, {s(SWS,4)}, {s(sOW)} offen{off(1024*hf)} sc1", "ost")]
    run(o, bg=False)
    stamp(11)
    A(f"s_bitcmp1_b32 {s(sRC)}, 8")
    A("s_cbranch_scc1 L_helper")
    A(f"s_mul_i32 {s(sT0)}, {s(sP)}, 7")
    A(f"s_add_u32 {s(sT0)}, {s(sT0)}, {s(sCB)}")
    A(f"s_lshl4_add_u32 {s(sT0)}, {s(sRB)}, {s(sT0)}")
    A(f"s_lshl_b32 {s(sT0)}, {s(sT0)}, 7")
    A(f"s_add_u32 {s(sF1W)}, {s(sT0)}, {FL2}")
    A(f"v_lshrrev_b32 {v(6)}, 1, {v(vL16)}")
    flag_set(vT, 6)
    bg_force()


def helper():
    L = ["L_helper:"]
    a_ = L.append
    SH = SQKV
    a_(f"s_lshl1_add_u32 {s(sT0)}, {s(sRB)}, {s(sP)}")
    a_(f"s_lshl2_add_u32 {s(sT0)}, {s(sT0)}, {s(sW)}")
    a_(f"s_cmp_ge_u32 {s(sT0)}, 112")
    a_("s_cbranch_scc1 L_help2")
    a_(f"s_lshr_b32 {s(sT1)}, {s(sT0)}, 1")
    a_(f"s_lshl_b32 {s(sT2)}, {s(sT1)}, 7")
    a_(f"s_sub_u32 {s(sT3)}, {s(sT2)}, {28*128 - 1024}")
    a_(f"s_cmp_ge_u32 {s(sT1)}, 28")
    a_(f"s_cselect_b64 {s(SH,2)}, {s(SWU,2)}, {s(SWG,2)}")
    a_(f"s_cselect_b32 {s(SH+2)}, {s(SWU+2)}, {s(SWG+2)}")
    a_(f"s_cselect_b32 {s(sT2)}, {s(sT3)}, {s(sT2)}")
    a_(f"s_mul_i32 {s(sT3)}, {s(sKH)}, {224*3584}")
    a_(f"s_add_u32 {s(sT2)}, {s(sT2)}, {s(sT3)}")
    a_(f"v_lshrrev_b32 {v(vT)}, 3, {v(vLANE)}")
    a_(f"v_and_b32 {v(vT+1)}, 7, {v(vLANE)}")
    a_(f"v_lshl_add_u32 {v(vT+2)}, {v(vT+1)}, 3, {v(vT)}")
    a_(f"v_lshlrev_b32 {v(vT+2)}, 3, {v(vT+2)}")
    a_(f"v_mul_u32_u24 {v(vT)}, 3584, {v(vT)}")
    a_(f"v_lshl_add_u32 {v(vT)}, {v(vT+1)}, 4, {v(vT)}")
    for i in range(28):
        if not OPT.get("xhc"):
            a_(f"buffer_load_dwordx4 {v(32+4*i,4)}, {v(vT)}, {s(SH,4)}, {s(sT2)} offen")
        a_(f"s_add_u32 {s(sT2)}, {s(sT2)}, {8*3584}")
    AC = 144
    for k in range(8):
        a_(f"v_mov_b32 {v(AC+k)}, 0")
    for i in range(28):
        if i % 4 == 0:
            a_(f"s_waitcnt vmcnt({24-i})")
        for k in range(4):
            a_(f"v_dot2c_f32_bf16 {v(AC+2*k)}, {s(sMK)}, {v(32+4*i+k)}")
            a_(f"v_dot2c_f32_bf16 {v(AC+2*k+1)}, {s(sMK+1)}, {v(32+4*i+k)}")
    for j in range(4):
        a_(f"v_permlane32_swap_b32 {v(AC+j)}, {v(AC+4+j)}")
    for j in range(4):
        a_(f"v_add_f32 {v(AC+j)}, {v(AC+j)}, {v(AC+4+j)}")
    for j in range(2):
        a_(f"v_permlane16_swap_b32 {v(AC+j)}, {v(AC+2+j)}")
    for j in range(2):
        a_(f"v_add_f32 {v(AC+j)}, {v(AC+j)}, {v(AC+2+j)}")
    for j in range(2):
        a_(f"v_add_f32_dpp {v(AC+j)}, {v(AC+j)}, {v(AC+j)} row_ror:8 row_mask:0xf bank_mask:0xf")
    a_("s_mov_b32 vcc_lo, 0xff00ff00")
    a_("s_mov_b32 vcc_hi, 0xff00ff00")
    a_(f"v_cndmask_b32 {v(AC)}, {v(AC)}, {v(AC+1)}, vcc")
    a_(f"v_mov_b32 {v(AC+1)}, {s(sTAG)}")
    a_(f"s_mul_i32 {s(sT3)}, {s(sKH)}, 56")
    a_(f"s_add_u32 {s(sT1)}, {s(sT1)}, {s(sT3)}")
    a_(f"s_lshl_b32 {s(sT1)}, {s(sT1)}, 9")
    a_(f"s_add_u32 {s(sT1)}, {s(sT1)}, {CSW}")
    a_(f"buffer_store_dwordx2 {v(AC,2)}, {v(vT+2)}, {s(SWS,4)}, {s(sT1)} offen sc1")
    a_("L_help2:")
    if OPT.get("hw", 1):
        a_(f"s_mul_i32 {s(sT0)}, {s(sT0)}, {98*128}")
        a_(f"v_min_u32 {v(vT)}, 48, {v(vLANE)}")
        a_(f"v_lshlrev_b32 {v(vT)}, 8, {v(vT)}")
        a_(f"buffer_load_dword {v(32)}, {v(vT)}, {s(SWD,4)}, {s(sT0)} offen")
        a_(f"buffer_load_dword {v(33)}, {v(vT)}, {s(SWD,4)}, {s(sT0)} offen offset:128")
    a_(f"s_lshl3_add_u32 {s(sB0)}, {s(sRB)}, {s(sP)}")
    a_(f"s_lshl2_add_u32 {s(sB0)}, {s(sB0)}, {s(sW)}")
    a_(f"s_mul_i32 {s(sB0)}, {s(sB0)}, {14*K}")
    a_(f"s_add_u32 {s(sB0)}, {s(sB0)}, {GG + 224*K}")
    a_(f"s_lshl1_add_u32 {s(sB1)}, {s(sRB)}, {s(sP)}")
    a_(f"s_lshl_b32 {s(sB1)}, {s(sB1)}, 7")
    a_(f"s_add_u32 {s(sB1)}, {s(sB1)}, {PFL}")
    for k in range(4):
        a_(f"v_mov_b32 {v(152+k)}, {s(sTAG)}")
    a_(f"s_mov_b32 {s(sT2)}, 0")
    a_("L_help3:")
    for i in range(14):
        if not OPT.get("xhp"):
            a_(f"buffer_store_dwordx4 {r(vPOI,4)}, {v(vL16)}, {s(SWS,4)}, {s(sB0)} offen sc1")
        a_(f"s_add_u32 {s(sB0)}, {s(sB0)}, {(112-13)*K if i == 13 else K}")
    a_("s_waitcnt vmcnt(0)")
    a_("s_barrier")
    a_(f"s_cmp_lg_u32 {s(sW)}, 0")
    a_("s_cbranch_scc1 L_help4")
    a_("s_mov_b64 exec, 0xff")
    a_(f"buffer_store_dwordx4 {v(152,4)}, {v(vL16)}, {s(SWS,4)}, {s(sB1)} offen sc1")
    a_("s_mov_b64 exec, -1")
    a_("L_help4:")
    a_(f"s_add_u32 {s(sB1)}, {s(sB1)}, 4096")
    a_(f"s_add_u32 {s(sT2)}, {s(sT2)}, 1")
    a_(f"s_cmp_lt_u32 {s(sT2)}, 2")
    a_("s_cbranch_scc1 L_help3")
    a_("s_branch L_fin")
    OOL.insert(0, L)


def phaseB():
    def grp(i):
        b = G2 + i*8
        return dict(loads=[f"buffer_load_dwordx4 {v(b+4*st,4)}, {v(vL16)}, {s(SWS,4)}, {s(sG2+i)} offen{off(1024*st)} sc1" for st in range(2)],
                    regs=list(range(b, b+8)), xor=True, pre=[V(f"v_mov_b32 {v(b+7)}, 0")],
                    compute=[M32(ACB + 16*nt, WOF + ((i*2+st)*2+nt)*4, b + 4*st, i == 0 and st == 0 and nt == 1) for st in range(2) for nt in (1, 0)])
    GE = [grp(i) for i in range(NEARLY)]
    GL = [grp(i) for i in range(NEARLY, 8)]
    P2 = OPT.get("p2", 18)
    NA = OPT.get("na", 2)
    le = gather_loads("ge", GE)
    ll = gather_loads("gl", GL)
    BG.extend(pump(NA, P2))
    o = [V(f"v_add_u32 {v(vT+2)}, {s(sW4K)}, {v(vL16)}"), V(f"v_add_u32 {v(vT+2)}, {XB}, {v(vT+2)}"), V(f"v_xor_b32 {v(vT+3)}, 4096, {v(vT+2)}"),
         V(f"v_and_b32 {v(12)}, 3, {v(vLANE)}"), V(f"v_lshl_add_u32 {v(12)}, {s(sW)}, 2, {v(12)}"), V(f"v_min_u32 {v(12)}, 13, {v(12)}"),
         V(f"v_lshlrev_b32 {v(12)}, 7, {v(12)}"), S(f"s_lshl_b32 {s(sFL)}, {s(sRC)}, 11"), S(f"s_add_u32 {s(sFL)}, {s(sFL)}, {FL2}")]
    c2l, c2ops = flag_check("fo", vT + 1, 12, s(sFL))
    spread(o, 1)
    fst("W2")
    run([WV("wo"), BAR], bg=False)
    fst("W2")
    NG = OPT.get("ng", 4)
    o = [("lds", f"ds_read_b64 {v(ACB+16+2*q,2)}, {v(8+q if q else vXA)}", "xr") for q in range(4)]
    for i in range(8):
        for st in range(2):
            for nt in range(2):
                for rd in range(2):
                    o += [TR(WOF + ((i*2+st)*2+nt)*4 + rd*2, (4 if (st == 1 and rd == 1) else 2) + nt, (28*HORD[i] + 16*st + 8*rd)*128, "wr" if i < NEARLY else "wl"), FN(lambda: None, 4)]
        if i == 0:
            o += [V(f"v_subrev_u32 {v(2+j)}, {s(sT2)}, {v(2+j)}") for j in range(4)]
    nw = 8 + 16*OPT.get("nwr", 8)
    wlate = [x for x in o[nw:] if x[0] == "lds"]
    o = o[:nw] + [WL("xr")]
    for k in range(8):
        o += [V(f"v_lshlrev_b32 {v(ACB+2*k)}, 16, {v(ACB+16+k)}"), V(f"v_and_b32 {v(ACB+2*k+1)}, 0xffff0000, {v(ACB+16+k)}")]
    BG.extend([unit([x], 8) for x in le[:OPT.get("ne", 4)]])
    spread(o)
    fst("W2")
    BG.extend([unit([x], 8) for x in le[OPT.get("ne", 4):]] + pump(OPT.get("nb", 1)) + [unit([x], 8) for x in ll[:NG]])
    bg_force()
    stamp(12)
    BG.extend([unit([x], 8) for x in ll[NG:]] + pump(OPT.get("n2", 4)))
    run([WL("wr")] + site_check("ge0", GE[0], GE[1:]), bg=False)
    bg_now()
    main, streams = [], [dict(ops=wlate, g0=0, g1=16)]
    for i, G in enumerate(GE):
        main += G["compute"]
        if i + 1 < NEARLY:
            streams.append(dict(ops=site_check(f"ge{i+1}", GE[i+1], GE[i+2:]), g0=4*i + 1, g1=4*i + 4))
    weave(main, streams, report=REP("ge"))
    bg_force()
    run([c2l, WL("wl")], bg=False)
    gather_finish("gl", GL)
    stamp(13)
    BG.extend(pump(2))
    T0, HP, S0 = G2, G2 + 16, G2 + 24
    o = [("bg", 1)] + [WR128(vT + 2, ACB + 16 + 4*q, q*1024, "bw") for q in range(4)]
    o += [WL("bw"), BAR]
    o += [RD128(T0 + 4*q, vT + 3, q*1024, f"br{q >> 1}") for q in range(4)] + [("bg", 1)]
    o += [V(f"v_mov_b32 {v(S0+k)}, 0") for k in range(2)]
    for st in range(2):
        o += [WL(f"br{st}")]
        o += [V(f"v_pk_add_f32 {v(ACB+8*st+2*k,2)}, {v(ACB+8*st+2*k,2)}, {v(T0+8*st+2*k,2)}") for k in range(4)]
        o += [V(f"v_cvt_pk_bf16_f32 {v(HP+4*st+k)}, {v(ACB+8*st+2*k)}, {v(ACB+8*st+2*k+1)}") for k in range(4)]
        o += [("vm", f"buffer_store_dwordx4 {v(HP+4*st,4)}, {v(vL16)}, {s(SWS,4)}, {s(sHW)} offen{off(1024*st)} sc1", "hst")]
    o += [ST_(14)]
    run(o, bg=False)
    o = fuse_cmp(c2ops)
    for k in range(8):
        o += [V(f"v_dot2c_f32_bf16 {v(S0)}, {s(sONES)}, {v(HP+k)}"), V(f"v_dot2c_f32_bf16 {v(S0+1)}, {v(HP+k)}, {v(HP+k)}")]
    o += [V(f"v_mov_b32 {v(S0+2+k)}, {v(S0+k)}") for k in range(2)]
    o += [V(f"v_permlane32_swap_b32 {v(S0+k)}, {v(S0+2+k)}") for k in range(2)]
    o += [V(f"v_pk_add_f32 {v(S0,2)}, {v(S0,2)}, {v(S0+2,2)}")]
    return o, FN(lambda: run([WV("hst"), S("s_mov_b32 exec_hi, 0"),
                              ("vm", f"buffer_store_dwordx2 {v(S0,2)}, {v(6)}, {s(SWS,4)}, {s(sSTW)} offen sc1", "sst"), S("s_mov_b64 exec, -1")], bg=False))


AC0, AC1 = 32, 64
CS = 96
BRG = 128
SC = 152
ET = 160
RES = 168
SP = 176
vL8c = 6
vHR = 7
vDO = 2
vDX, vDY = 10, 16
vCL = SP + 60
vRS = 14
vTAG, vHF, vGO = 24, 25, 26
TLO = {0: HI, 1: HI + 32*K, 2: 32*K, 3: 0}
DWE = [256 + 224, 256 + 240] + [SP + 16*i for i in range(5)]
DW = DWE + [256 + 112 + 16*i for i in range(7)]
DSL = {0: 64, 1: 80, 2: 96, 3: 112, 4: 64, 5: 80, 6: 96, 7: 128, 8: 112, 9: 64, 10: 80, 11: 32, 12: 48, 13: 96}


sHT, sDT, sGT, sSO = sM + 1, sM + 8, sG2, sG2 + 7


def u_dw(m):
    return [unit([S(f"s_add_u32 m0, {s(sW4K)}, {DSL[m]*K}"), S(f"s_add_u32 {s(sB0)}, {s(sDT+(m >> 1))}, {(m & 1)*32*896}"),
                  DMA(vDO, SWD, s(sB0), 0, f"dw{m}")], OPT.get("pd", 9))] + \
        [unit([DMA(vDO+i, SWD, s(sB0), 1024*i, f"dw{m}")], OPT.get("pd", 9)) for i in range(1, 4)]


def dw_read(m):
    ad, o_ = (vDX, (DSL[m]-32)*K) if DSL[m] < 96 else (vDY, (DSL[m]-96)*K)
    return [WV(f"dw{m}")] + [TR(DW[m] + nt*4 + rd*2, ad + nt, o_ + rd*1024, f"dr{m}") for nt in range(4) for rd in range(2)]


def dw_next(wait, ms):
    return [WL(wait), FN(lambda: [BG.extend(u_dw(m)) for m in ms])]


def need_waited(tag):
    assert tag in WAITED, tag


def hh_store(acc, t, rt):
    return ("vm", f"buffer_store_dwordx4 {v(acc+16*t,4)}, {v(vL16)}, {s(SWS,4)}, {s(sT3)} offen{off(1024*t)} sc1", f"gst{rt}")


def hf_set(stage, rt):
    return [WV(f"gst{rt}"), S(f"s_add_u32 {s(sT2)}, {s(sHF)}, {stage*131072}"),
            FN(lambda: (A("s_mov_b32 exec_hi, 0"), E(("vm", f"buffer_store_dword {v(vTAG)}, {v(vL8c)}, {s(SWS,4)}, {s(sT2)} offen sc1", "hf")), A("s_mov_b64 exec, -1")), 8)]


def epilogue_ops(acc, rt):
    c = SC + 4*(rt & 1)
    mean, k1, k2, vp = c, c + 1, c + 2, c + 3
    ops = [S(f"s_add_u32 {s(sT3)}, {s(sGW)}, {rt*112*K}")]
    for t in range(2):
        for half in range(2):
            idx = [4*half + i for i in range(4)]
            g = [acc + 16*t + i for i in idx]
            u = [acc + 16*t + 8 + i for i in idx]
            cg = [CS + 16*t + i for i in idx]
            cu = [CS + 16*t + 8 + i for i in idx]
            T = [ET + 4*half + i for i in range(4)]
            ops += [V(f"v_fmac_f32 {v(g[i])}, {v(mean)}, {v(cg[i])}") for i in range(4)]
            ops += [V(f"v_mul_f32 {v(T[i])}, {v(g[i])}, {v(g[i])}") for i in range(4)]
            ops += [V(f"v_fma_f32 {v(T[i])}, {v(T[i])}, {v(k2)}, {v(k1)}") for i in range(4)]
            ops += [V(f"v_mul_f32 {v(T[i])}, {v(T[i])}, {v(g[i])}") for i in range(4)]
            for i in range(4):
                ops += [V(f"v_exp_f32 {v(T[i])}, {v(T[i])}"), V(f"v_fmac_f32 {v(u[i])}, {v(mean)}, {v(cu[i])}")]
            ops += [V(f"v_fma_f32 {v(T[i])}, {v(T[i])}, {v(vp)}, {v(vp)}") for i in range(4)]
            for i in range(4):
                ops += [V(f"v_rcp_f32 {v(T[i])}, {v(T[i])}"), V(f"v_mul_f32 {v(u[i])}, {v(u[i])}, {v(g[i])}")]
            ops += [V(f"v_mul_f32 {v(u[i])}, {v(u[i])}, {v(T[i])}") for i in range(4)]
            ops += [V(f"v_cvt_pk_bf16_f32 {v(acc+16*t+2*half+i)}, {v(u[2*i])}, {v(u[2*i+1])}") for i in range(2)]
        ops += [hh_store(acc, t, rt)] + ([FN(lambda: need_waited(f'p{rt}'))] if rt >= 2 else [])
    return ops


def epilogue_pk(acc, rt):
    c = SC + 4*(rt & 1)
    c01, c23 = v(c, 2), v(c + 2, 2)
    ops = [S(f"s_add_u32 {s(sT3)}, {s(sGW)}, {rt*112*K}")]
    N = None
    for t in range(2):
        g = [v(acc + 16*t + 2*i, 2) for i in range(4)]
        u = [v(acc + 16*t + 8 + 2*i, 2) for i in range(4)]
        cg = [v(CS + 16*t + 2*i, 2) for i in range(4)]
        cu = [v(CS + 16*t + 8 + 2*i, 2) for i in range(4)]
        T = [v(ET + 2*i, 2) for i in range(4)]
        ops += [pkop("v_pk_fma_f32", g[i], [(c01, 0), (cg[i], N), (g[i], N)]) for i in range(4)]
        ops += [pkop("v_pk_mul_f32", T[i], [(g[i], N), (g[i], N)]) for i in range(4)]
        ops += [pkop("v_pk_fma_f32", T[i], [(T[i], N), (c23, 0), (c01, 1)]) for i in range(4)]
        ops += [pkop("v_pk_mul_f32", T[i], [(T[i], N), (g[i], N)]) for i in range(4)]
        ops += [V(f"v_exp_f32 {v(ET+i)}, {v(ET+i)}") for i in range(8)]
        ops += [pkop("v_pk_fma_f32", u[i], [(c01, 0), (cu[i], N), (u[i], N)]) for i in range(4)]
        ops += [pkop("v_pk_fma_f32", T[i], [(T[i], N), (c23, 1), (c23, 1)]) for i in range(4)]
        ops += [V(f"v_rcp_f32 {v(ET+i)}, {v(ET+i)}") for i in range(8)]
        ops += [pkop("v_pk_mul_f32", u[i], [(u[i], N), (g[i], N)]) for i in range(4)]
        ops += [pkop("v_pk_mul_f32", u[i], [(u[i], N), (T[i], N)]) for i in range(4)]
        ops += [V(f"v_cvt_pk_bf16_f32 {v(acc+16*t+i)}, {v(acc+16*t+8+2*i)}, {v(acc+16*t+9+2*i)}") for i in range(4)]
        ops += [hh_store(acc, t, rt)] + ([FN(lambda: need_waited(f'p{rt}'))] if rt >= 2 else [])
    return ops


RING_D = [256 + 4*i for i in range(28)]
NRD = len(RING_D)


def d_load(n):
    o = [V(f"v_add_u32 {v(vGO)}, {112*K}, {v(vGO)}")] if (n % 14 == 0 and n) else []
    o.append(("vm", f"buffer_load_dwordx4 {r(RING_D[n % NRD],4)}, {v(vGO)}, {s(SWS,4)}, {s(sGT + (n % 14)//2)} offen{off((n % 2)*2048)} sc1", f"d{n}"))
    return o


def phaseC(stcalc, ststore):
    def addrh():
        A(f"v_add_u32 {v(vHR)}, {HI}, {v(vL16)}")
        A(f"v_add_u32 {v(vHR+1)}, {s(sW7K)}, {v(vHR)}")
        A(f"s_mul_i32 {s(sT0)}, {s(sRC)}, {112*K}")
        A(f"s_add_u32 {s(sT0)}, {s(sT0)}, {HH_}")
        A(f"s_lshl_b32 {s(sT1)}, {s(sROT)}, 10")
        A(f"s_add_u32 {s(sT1)}, {s(sT1)}, {s(sW7K)}")
        for c in range(7):
            A(f"s_add_u32 {s(sT2)}, {s(sT1)}, {c*K}")
            A(f"s_sub_u32 {s(sT3)}, {s(sT2)}, {28*K}")
            A(f"s_cselect_b32 {s(sT2)}, {s(sT2)}, {s(sT3)}")
            A(f"s_add_u32 {s(sHT+c)}, {s(sT2)}, {s(sT0)}")

    def addrd():
        A(f"s_mul_i32 {s(sDWK)}, {s(sW)}, {448*896}")
        A(f"s_lshl_b32 {s(sT0)}, {s(sRB)}, 4")
        A(f"s_add_u32 {s(sT0)}, {s(sT0)}, {s(sW)}")
        A(f"s_mul_i32 {s(sT0)}, {s(sT0)}, {28*K}")
        A(f"s_lshl_b32 {s(sT1)}, {s(sP)}, 8")
        A(f"s_add_u32 {s(sT0)}, {s(sT0)}, {s(sT1)}")
        A(f"s_add_u32 {s(sT0)}, {s(sT0)}, {GG}")
        if OPT["rotd"] == 2:
            A(f"s_lshr_b32 {s(sT1)}, {s(sRB)}, 2")
            A(f"s_lshl1_add_u32 {s(sT1)}, {s(sT1)}, {s(sP)}")
        elif OPT["rotd"]:
            A(f"s_and_b32 {s(sT1)}, {s(sRB)}, 3")
            A(f"s_lshl1_add_u32 {s(sT1)}, {s(sT1)}, {s(sCB)}")
            A(f"s_sub_u32 {s(sT2)}, {s(sT1)}, 7")
            A(f"s_cselect_b32 {s(sT1)}, {s(sT1)}, {s(sT2)}")
            A(f"s_lshr_b32 {s(sT2)}, {s(sRB)}, 3")
            A(f"s_add_u32 {s(sT1)}, {s(sT1)}, {s(sT2)}")
        else:
            A(f"s_mov_b32 {s(sT1)}, 0")
        for j in range(7):
            if j:
                A(f"s_add_u32 {s(sT1)}, {s(sT1)}, 1")
            A(f"s_cmp_eq_u32 {s(sT1)}, 7")
            A(f"s_cselect_b32 {s(sT1)}, 0, {s(sT1)}")
            A(f"s_mul_i32 {s(sDT+j)}, {s(sT1)}, {64*896}")
            A(f"s_add_u32 {s(sDT+j)}, {s(sDT+j)}, {s(sDWK)}")
            A(f"s_lshl_b32 {s(sT2)}, {s(sT1)}, 12")
            A(f"s_add_u32 {s(sGT+j)}, {s(sT2)}, {s(sT0)}")
        A(f"v_lshrrev_b32 {v(vDO)}, 3, {v(vLANE)}")
        A(f"v_mul_u32_u24 {v(vDO)}, 896, {v(vDO)}")
        A(f"v_and_b32 {v(vDO+1)}, 0x70, {v(vL16)}")
        A(f"v_lshrrev_b32 {v(vDO+2)}, 4, {v(vLANE)}")
        A(f"v_lshlrev_b32 {v(vDO+2)}, 5, {v(vDO+2)}")
        A(f"v_xor_b32 {v(vDO+1)}, {v(vDO+1)}, {v(vDO+2)}")
        A(f"s_lshl_b32 {s(sT0)}, {s(sCB)}, 7")
        A(f"v_add3_u32 {v(vDO)}, {v(vDO)}, {v(vDO+1)}, {s(sT0)}")
        for i in range(1, 4):
            A(f"v_add_u32 {v(vDO+i)}, {i*(7168-1024)}, {v(vDO)}")
    def addr0():
        A(f"s_lshl2_add_u32 {s(sT0)}, {s(sRC)}, {s(sW)}")
        A(f"s_mul_i32 {s(sT0)}, {s(sT0)}, {14*256}")
        A(f"s_add_u32 {s(sSO)}, {s(sT0)}, {ST}")
        A(f"v_and_b32 {v(vT+2)}, 31, {v(vLANE)}")
        A(f"s_lshl_b32 {s(sT0)}, {s(sW)}, 8")
        A(f"s_add_u32 {s(sT0)}, {s(sT0)}, {MISC}")
        A(f"v_lshl_add_u32 {v(9)}, {v(vLANE)}, 2, {s(sT0)}")
        A(f"v_bfe_u32 {v(vCL)}, {v(vLANE)}, 4, 1")
        A(f"v_mul_u32_u24 {v(vCL)}, 14336, {v(vCL)}")
        A(f"v_lshrrev_b32 {v(vDX)}, 5, {v(vLANE)}")
        A(f"v_lshl_add_u32 {v(vCL)}, {v(vDX)}, 7, {v(vCL)}")
        A(f"v_and_b32 {v(vDX)}, 15, {v(vLANE)}")
        A(f"v_lshl_add_u32 {v(vCL)}, {v(vDX)}, 3, {v(vCL)}")
        A(f"s_lshl2_add_u32 {s(sT0)}, {s(sFB)}, {s(sW)}")
        A(f"s_lshl_b32 {s(sT0)}, {s(sT0)}, 8")
        A(f"s_add_u32 {s(sKVPW)}, {s(sT0)}, {CSW}")
        A(f"s_add_u32 {s(sOW)}, {s(sT0)}, {CSW + 28672}")
        A(f"v_lshlrev_b32 {v(vT+2)}, 4, {v(vT+2)}")
        A(f"v_add_u32 {v(vT+2)}, {MISC + 2048}, {v(vT+2)}")
        A(f"v_and_b32 {v(vT+3)}, 15, {v(vLANE)}")
        A(f"v_lshrrev_b32 {v(vDX)}, 5, {v(vLANE)}")
        A(f"v_lshl_add_u32 {v(vT+3)}, {v(vT+3)}, 1, {v(vDX)}")
        A(f"s_lshl_b32 {s(sT0)}, {s(sW)}, 9")
        A(f"s_add_u32 {s(sT0)}, {s(sT0)}, {MISC + 2048}")
        A(f"v_lshl_add_u32 {v(vT+3)}, {v(vT+3)}, 4, {s(sT0)}")
        A(f"v_bfe_u32 {v(vRS)}, {v(vLANE)}, 2, 2")
        A(f"v_lshlrev_b32 {v(vRS)}, 10, {v(vRS)}")
        A(f"v_and_b32 {v(vDX)}, 1, {v(vLANE)}")
        A(f"v_lshl_add_u32 {v(vRS)}, {v(vDX)}, 9, {v(vRS)}")
        A(f"v_and_b32 {v(vDX)}, 0x30, {v(vLANE)}")
        A(f"v_add_u32 {v(vRS)}, {v(vDX)}, {v(vRS)}")
        A(f"v_and_b32 {v(vDX)}, 2, {v(vLANE)}")
        A(f"v_lshl_add_u32 {v(vRS)}, {v(vDX)}, 2, {v(vRS)}")
        A(f"s_mul_i32 {s(sT0)}, {s(sRB)}, 28")
        A(f"s_add_u32 {s(sT0)}, {s(sT0)}, {s(sCB)}")
        A(f"s_lshl4_add_u32 {s(sT0)}, {s(sT0)}, {s(sP)}")
        A(f"s_lshl2_add_u32 {s(sT0)}, {s(sT0)}, {s(sW)}")
        A(f"s_lshl_b32 {s(sT0)}, {s(sT0)}, 6")
        A(f"v_add_u32 {v(vRS)}, {s(sT0)}, {v(vRS)}")
        A(f"v_bfe_u32 {v(vDX)}, {v(vLANE)}, 2, 3")
        A(f"v_lshrrev_b32 {v(vDX+1)}, 5, {v(vLANE)}")
        A(f"v_lshl_add_u32 {v(vDX)}, {v(vDX+1)}, 4, {v(vDX)}")
        A(f"v_lshlrev_b32 {v(vDX)}, 7, {v(vDX)}")
        A(f"v_bfe_u32 {v(vDX+1)}, {v(vLANE)}, 3, 2")
        A(f"v_lshl_add_u32 {v(vDX)}, {v(vDX+1)}, 5, {v(vDX)}")
        A(f"v_and_b32 {v(vDX+1)}, 3, {v(vLANE)}")
        A(f"v_lshl_add_u32 {v(vDX)}, {v(vDX+1)}, 3, {v(vDX)}")
        A(f"s_add_u32 {s(sT0)}, {s(sW4K)}, {32*K}")
        A(f"v_add_u32 {v(vDX)}, {s(sT0)}, {v(vDX)}")
        for i in range(1, 4):
            A(f"v_xor_b32 {v(vDX+i)}, {32*i}, {v(vDX)}")
        for i in range(4):
            A(f"v_add_u32 {v(vDY+i)}, 0x10000, {v(vDX+i)}")
    n0 = CWN[0]
    N3 = OPT.get("n3", 8)
    BG.extend(pump(N3))
    spread(stcalc + cap(addrh) + [BAR] + cap(addr0) + ([] if OPT.get('sl') else [ststore]) + cap(addrd) +
           [V(f"v_add_u32 {v(28)}, {28*K}, {v(vL16)}"), V(f"v_add_u32 {v(29)}, {56*K}, {v(vL16)}")])
    stamp(15)
    HB = {0: AC0, 1: AC1}
    HV = {0: vL16, 1: 28, 2: 29, 3: 28}
    STR = SP + 64

    PH = OPT.get("ph", 9)
    hd = lambda rt, c: [f"s_add_u32 m0, {s(sW7K)}, {TLO[rt] + c*1024}", "s_nop 0", f"buffer_load_dwordx4 {v(HV[rt])}, {s(SWS,4)}, {s(sHT+c)} offen sc1 lds"]
    hdma = lambda rt, per=False: [unit([S(hd(rt, c)[0]), S(hd(rt, c)[1]), ("vm", hd(rt, c)[2], f"h{rt}_{c}" if per else f"h{rt}")], PH) for c in range(7)]

    def lds_check(rt, tmp):
        lab, back = A.label("L_hc"), A.label("L_hb")
        rdb = lambda c: RD128(HB[rt] + 4*c, vHR + 1, TLO[rt] - HI + c*1024, f"hr{rt}_{c}")
        regs = lambda c: list(range(HB[rt]+4*c, HB[rt]+4*c+4))
        ops = []
        for c in range(7):
            ops += [WV(f"h{rt}_{c}"), rdb(c)]
            if c >= 2:
                ops += [WL(f"hr{rt}_{c-2}")] + [V(l) for l in max_lines(regs(c-2), tmp, c == 2)]
        for c in (5, 6):
            ops += [WL(f"hr{rt}_{c}")] + [V(l) for l in max_lines(regs(c), tmp, False)]
        ops += [V(f"v_cmp_eq_u32 vcc, -1, {v(tmp)}"), FN(lambda: (A(f"s_cbranch_vccnz {lab}"), A(f"{back}:")), 4)]
        blk = [f"{lab}:"] + dbg_mark(f"h{rt}") + [f"s_mov_b32 {s(sG1)}, m0", f"s_mov_b32 {s(sSPIN)}, 0", f"{lab}_t:"]
        for c in range(7):
            skip = A.label("L_hs")
            blk += max_lines(regs(c), tmp) + [f"v_cmp_eq_u32 vcc, -1, {v(tmp)}", f"s_cbranch_vccz {skip}"] + hd(rt, c) + [f"{skip}:"]
        blk += ["s_waitcnt vmcnt(0)"] + [rdb(c)[1] for c in range(7)] + [f"s_mov_b32 m0, {s(sG1)}", "s_waitcnt lgkmcnt(0)"]
        blk += max_lines(list(range(HB[rt], HB[rt]+28)), tmp) + [f"v_cmp_eq_u32 vcc, -1, {v(tmp)}", f"s_cbranch_vccz {back}"] + spin_tail(f"{lab}_t", back)
        OOL.append(blk)
        return ops
    stl = [f"buffer_load_dwordx4 {v(STR+4*i,4)}, {v(vL16)}, {s(SWS,4)}, {s(sSO)} offen{off(min(1024*i, 2560))} sc1" for i in range(4)]
    n1 = CWN[0]
    if OPT.get("sl"):
        E(ststore)
    h1u = hdma(1, True)
    NH1 = OPT.get("nh1", 6)
    BG.extend(hdma(0, True) + h1u[:NH1])
    bg_force()
    BG.extend(h1u[NH1:] + pump(min(OPT.get("n4", 2), 28 - n1)))
    n2 = CWN[0]
    assert n2 >= 24
    print("cw issued before C:", n0, n1, n2) if OPT["rep"] else None
    lc = fuse_cmp(lds_check(0, vT + 1))
    run(lc[:4], bg=False)
    spread(lc[4:-7])
    run(lc[-7:] + [BAR], bg=False)
    stamp(16)

    sc_read = lambda rt: [("lds", f"ds_read_b128 {v(SC+4*(rt & 1),4)}, {v(vT+2)} offset:{rt*512}", f"sc{rt}")]
    resu = [unit([S(f"s_mov_b32 {s(sB1)}, {HH_ + rt*28*K}"), ("vm", f"buffer_load_dwordx2 {v(RES+2*rt,2)}, {v(vRS)}, {s(SWS,4)}, {s(sB1)} offen sc1", f"rs{rt}")], 10) for rt in range(4)]

    CD = SP + 56
    cld = [f"buffer_load_dwordx2 {v(CD+2*j,2)}, {v(vCL)}, {s(SWS,4)}, {s((sKVPW, sOW)[j])} offen sc1" for j in range(2)]
    sc_ = tag_check("cl", cld, CD + 1, CD + 3) + [V(f"v_add_f32 {v(CD)}, {v(CD)}, {v(CD+2)}"), ("lds", f"ds_write_b32 {v(9)}, {v(CD)}", "cw_")]
    sc_ += [RD128(CS + 16*t + 4*q, vBC, 128*t + 32*q, "csb") for t in range(2) for q in range(4)]
    sb = check_ops("stl", list(range(STR, STR+16)), stl)
    sb += [V(f"v_cndmask_b32 {v(STR+12+k)}, 0, {v(STR+12+k)}, {s(sUP,2)}") for k in range(4)]
    for a_, b_ in ((0, 8), (4, 12), (0, 4)):
        sb += [V(f"v_add_f32 {v(STR+a_+k)}, {v(STR+a_+k)}, {v(STR+b_+k)}") for k in range(4)]
    sb += [V(f"v_permlane32_swap_b32 {v(STR+k)}, {v(STR+2+k)}") for k in range(2)]
    sb += [V(f"v_add_f32 {v(STR+k)}, {v(STR+k)}, {v(STR+2+k)}") for k in range(2)]
    sb += [V(f"v_mov_b32 {v(STR+2+k)}, {v(STR+k)}") for k in range(2)]
    sb += [V(f"v_permlane16_swap_b32 {v(STR+k)}, {v(STR+2+k)}") for k in range(2)]
    sb += [V(f"v_add_f32 {v(STR+k)}, {v(STR+k)}, {v(STR+2+k)}") for k in range(2)]
    C1 = -2.0 * 0.7978845608028654 * 1.4426950408889634
    d = STR + 4
    sb += [V(f"v_mul_f32 {v(d)}, 0xbb124925, {v(STR)}"), V(f"v_mul_f32 {v(d+3)}, 0x3b124925, {v(STR+1)}"),
           V(f"v_fma_f32 {v(d+3)}, -{v(d)}, {v(d)}, {v(d+3)}"), V(f"v_max_f32 {v(d+3)}, 0, {v(d+3)}"),
           V(f"v_add_f32 {v(d+3)}, 0x3727c5ac, {v(d+3)}"), V(f"v_rsq_f32 {v(d+1)}, {v(d+3)}"),
           V(f"v_mul_f32 {v(d+2)}, {v(d+1)}, {v(d+1)}"), V(f"v_mul_f32 {v(d+2)}, {v(d+2)}, {v(d+1)}"),
           V(f"v_mul_f32 {v(d+2)}, {fh(C1*0.044715)}, {v(d+2)}"), V(f"v_mul_f32 {v(d+1)}, {fh(C1)}, {v(d+1)}"),
           WR128(vT + 3, d, 0, "hw")]
    def addr3():
        A(f"s_lshl_b32 {s(sT0)}, {s(sRB)}, 13")
        A(f"s_add_u32 {s(sFL)}, {s(sT0)}, {HFL}")
        A(f"s_add_u32 {s(sHW)}, {s(sT0)}, {HFL + 131072}")
        A(f"s_lshl2_add_u32 {s(sT0)}, {s(sFB)}, {s(sW)}")
        A(f"s_lshl_b32 {s(sT0)}, {s(sT0)}, 7")
        A(f"s_lshl_b32 {s(sHF)}, {s(sRC)}, 13")
        A(f"s_add_u32 {s(sHF)}, {s(sHF)}, {s(sT0)}")
        A(f"s_add_u32 {s(sHF)}, {s(sHF)}, {HFL}")
        A(f"s_mul_i32 {s(sT0)}, {s(sW)}, 14")
        A(f"v_min_u32 {v(vHF)}, 13, {v(vLANE)}")
        A(f"v_add_lshl_u32 {v(vHF)}, {v(vHF)}, {s(sT0)}, 7")
        A(f"v_mov_b32 {v(vTAG)}, {s(sTAG)}")
        A(f"v_lshlrev_b32 {v(vL8c)}, 2, {v(vLANE)}")
        A(f"s_mov_b32 {s(sKVPW)}, {PFL}")
        A(f"s_mov_b32 {s(sOW)}, {PFL + 4096}")
        A(f"v_mov_b32 {v(9)}, {s(sRB)}")
        A(f"v_mov_b32 {v(8)}, {s(sRC)}")
        A(f"v_cndmask_b32 {v(9)}, {v(9)}, {v(8)}, {s(sUP,2)}")
        A(f"v_and_b32 {v(8)}, 1, {v(vLANE)}")
        A(f"v_lshl_add_u32 {v(9)}, {v(9)}, 1, {v(8)}")
        A(f"v_lshlrev_b32 {v(9)}, 7, {v(9)}")
        A(f"v_lshrrev_b32 {v(vGO)}, 4, {v(vLANE)}")
        A(f"v_and_b32 {v(vGO+1)}, 0xf0, {v(vL16)}")
        A(f"v_lshl_add_u32 {v(vGO)}, {v(vGO)}, 9, {v(vGO+1)}")
    f0l, f0c = flag_check("f0", vT + 3, vHF, s(sFL))
    f1l, f1c = flag_check("f1", vT + 3, vHF, s(sHW))
    p2l, p2c = flag_check("p2", vT + 1, 9, s(sKVPW))
    p3l, p3c = flag_check("p3", vT + 1, 9, s(sOW))
    PC = OPT.get("pc", 10)
    dun = lambda a_, b_: [unit(d_load(n), PC) for n in range(a_, b_)]
    ADD = lambda us: FN(lambda: BG.extend(us))
    def split(u):
        return [dict(ops=u["ops"][:-1], ta=64), dict(ops=u["ops"][-1:], ta=64)]
    lateu = sum([split(u_cw(ks)) for ks in range(n2, 28)], [])
    small = [unit([("vm", x, "stl")], 8) for x in stl] + [unit([("vm", x, "cl")], 8) for x in cld]
    run(cw_read(n2 - LAG, 20) + [WL("all")], bg=False) if n2 - LAG < 20 and False else None
    SO = OPT.get("so", 0)
    BG.extend(lateu[:SO] + small + lateu[SO:] + u_dw(0) + u_dw(1))

    def rd(N):
        rt, n = divmod(N, 28)
        return RD128(BRG + (N % 6)*4, vHR if rt < 2 else vL16, TLO[rt] - (HI if rt < 2 else 0) + n*1024, f"b{N}")
    run([rd(N) for N in range(4)], bg=False)
    bg_now()
    after_bar = {0: [V(f"v_add_u32 {v(28)}, {84*K}, {v(vL16)}"),  ADD(hdma(2) + u_dw(2) + u_dw(3))], 1: [ADD(hdma(3) + u_dw(7))], 2: [ADD(u_dw(11) + u_dw(12))]}
    main = []
    for N in range(112):
        rt, n = divmod(N, 28)
        acc = AC0 if rt % 2 == 0 else AC1
        if n == 25 and rt < 3:
            main += ([WV(f"h{rt+1}")] if rt else []) + [WL("all"), BAR] + after_bar[rt]
        elif N == 0:
            main.append(WL("b0"))
        elif N % 2 == 1:
            main.append(WL(f"b{min(N+1, 111)}"))

        if 16 <= N < 28:
            main.append(WL(f"cr{N}"))
        if n == 0 and rt:
            main.append(ST_(16 + rt))
        elif N < 34 and N % 2 == 0:
            main.append(FN(lambda: fst("C0")))
        main.append(M32(acc, CW + (n*2)*4, BRG + (N % 6)*4, n == 0))
        if N + 4 < 112 and n != 24:
            if n == 25:
                main.append(rd(N + 3))
            main.append(rd(N + 4))
        main.append(M32(acc + 16, CW + (n*2+1)*4, BRG + (N % 6)*4, n == 0))
    D_ = lambda ops, g0, g1, gr=False: dict(ops=ops, g0=g0, g1=g1, greedy=gr)
    L0 = 4*(28 - n2)
    ND = OPT.get("nd", 6)
    F0 = OPT.get("f0", 180)
    streams = [D_(cw_read(n2 - LAG, n2 - 2), 0, 8), D_(cw_read(n2 - 2, n2), 16, 24), D_(lds_check(1, ET), 10, 30),
               D_(sb, 30 + 2*SO, 48), D_(sc_[:8], 35 + 2*SO, 38 + 2*SO), D_(sc_[8:], 39 + 2*SO, 57)]
    streams += [D_(cw_read(ks, ks + 1), 2*ks - 9, 2*ks - 5) for ks in range(n2, 28)]
    streams += [D_(sc_read(0), 51, 52),
               D_([WL("csb"), WL("sc0")] + epilogue_ops(AC0, 0), 58, 111, True),
               D_(dw_read(0) + dw_read(1) + dw_next("dr1", (4, 5)), 70, 82),
               D_(sc_read(1), 107, 110),
               D_(dw_read(2) + dw_read(3) + dw_next("dr3", (6, 8)), 106, 122), D_(dw_read(4) + dw_read(5) + dw_next("dr5", (9, 10)), 130, 146),
               D_([WL("sc1")] + epilogue_ops(AC1, 1), 114, 167, True),
               D_(sc_read(2), 163, 166), D_(dw_read(6) + dw_next("dr6", (13,)), 166, 174),
               D_(cap(addr3), 100, 128),
               D_(hf_set(0, 0), 134, 135), D_([f0l], F0, F0 + 1), D_(f0c + [ADD(dun(0, ND))], F0 + 24, F0 + 25),
               D_(hf_set(1, 1), 190, 191), D_([p2l], 156, 157), D_(p2c, 181, 182), D_([p3l], 198, 199), D_(p3c, 222, 223),
               D_([WL("sc2")] + epilogue_ops(AC0, 2) + sc_read(3), 170, 216, True)]
    streams += [D_(dw_read(m), 168 + 36 + 4*(m-7), 168 + 40 + 4*(m-7)) for m in range(7, 12)]
    weave(main, streams, report=REP("C"))
    bg_force()
    stamp(20)
    NPRE = ND + OPT.get("npre", 6)
    BG.extend([unit(d_load(n) + d_load(n+1), 24) for n in range(ND, NPRE, 2)])
    bg_now()
    ep = epilogue_pk(AC1, 3)
    run([WL("sc3")] + ep[:OPT.get("c1", 20)] + [f1l] + ep[OPT.get("c1", 20):])
    bg_force()
    stamp(21)
    return NPRE, f1c, resu


def phaseD(NPRE, f1c, resu):
    ACD = [32, 48]
    WA, RA, vOO = 64, 66, 67
    X, TT = 68, 72

    def addr():
        A(f"v_and_b32 {v(WA)}, 15, {v(vLANE)}")
        A(f"v_lshrrev_b32 {v(RA)}, 4, {v(vLANE)}")
        A(f"v_mul_u32_u24 {v(vOO)}, 896, {v(RA)}")
        A(f"v_lshl_add_u32 {v(vOO)}, {v(WA)}, 3, {v(vOO)}")
        A(f"v_and_b32 {v(X)}, 7, {v(vLANE)}")
        A(f"v_xor_b32 {v(X)}, {v(X)}, {v(RA)}")
        A(f"v_lshlrev_b32 {v(X)}, 4, {v(X)}")
        A(f"v_lshl_add_u32 {v(RA)}, {s(sW)}, 2, {v(RA)}")
        A(f"v_and_b32 {v(X+1)}, 7, {v(RA)}")
        A(f"v_xor_b32 {v(X+1)}, {v(X+1)}, {v(WA)}")
        A(f"v_lshlrev_b32 {v(X+1)}, 4, {v(X+1)}")
        A(f"v_lshl_add_u32 {v(RA)}, {v(RA)}, 8, {v(X+1)}")
        A(f"v_lshl_add_u32 {v(WA)}, {v(WA)}, 8, {v(X)}")
        A(f"v_add_u32 {v(WA)}, {s(sW4K)}, {v(WA)}")
        A(f"v_xor_b32 {v(WA+1)}, 64, {v(WA)}")
        A(f"s_lshl_b32 {s(sT0)}, {s(sRB)}, 3")
        A(f"s_add_u32 {s(sT0)}, {s(sT0)}, {s(sP)}")
        A(f"s_lshl_b32 {s(sT0)}, {s(sT0)}, 2")
        A(f"s_add_u32 {s(sT0)}, {s(sT0)}, {s(sW)}")
        A(f"s_mul_i32 {s(sOUTW)}, {s(sT0)}, {4*896}")
        A(f"s_lshl_b32 {s(sT0)}, {s(sCB)}, 7")
        A(f"s_add_u32 {s(sOUTW)}, {s(sOUTW)}, {s(sT0)}")

    def reduce_ops(rt, pk):
        buf = (rt & 1) * 16 * K
        acc = ACD[rt & 1]
        o = [WR128(WA + (nt & 1), acc + 4*nt, buf + 128*(nt >> 1), "dwr") for nt in range(4)]
        if not pk:
            o = sum([[x, FN(lambda: None, 12)] for x in o], [])
        o += [WV(f"rs{rt}"), V(f"v_lshlrev_b32 {v(X)}, 16, {v(RES+2*rt)}"), V(f"v_and_b32 {v(X+1)}, 0xffff0000, {v(RES+2*rt)}"),
              V(f"v_lshlrev_b32 {v(X+2)}, 16, {v(RES+2*rt+1)}"), V(f"v_and_b32 {v(X+3)}, 0xffff0000, {v(RES+2*rt+1)}"),
              S(f"s_add_u32 {s(sT1)}, {s(sOUTW)}, {rt*32*896}")]
        o += [WL("dwr"), BAR]
        o += [RD128(TT + 4*w, RA, buf + w*4096, f"rr{w}") for w in range(4)]
        if pk:
            for w in range(4):
                o += [WL(f"rr{w}")] + [V(f"v_pk_add_f32 {v(X+2*k,2)}, {v(X+2*k,2)}, {v(TT+4*w+2*k,2)}") for k in range(2)]
        else:
            o += [FN(lambda: None, 40), WL("rr3")]
            o += [V(f"v_add_f32 {v(X+k)}, {v(X+k)}, {v(TT+4*w+k)}") for w in range(4) for k in range(4)]
        o += [V(f"v_cvt_pk_bf16_f32 {v(X+k)}, {v(X+2*k)}, {v(X+2*k+1)}") for k in range(2)]
        o += [("vm", f"buffer_store_dwordx2 {v(X,2)}, {v(vOO)}, {s(SOUT,4)}, {s(sT1)} offen" + (" sc1" if rt < OPT.get("os", 0) else ""), "out")]
        return o
    def nan_check(rt):
        lab, back = A.label("L_nn"), A.label("L_nb")
        acc = ACD[rt & 1]
        blk = [f"{lab}:"] + dbg_mark(f"nan{rt}") + [f"s_mov_b32 {s(sSPIN)}, 0", f"v_subrev_u32 {v(vGO+1)}, {112*K if rt < 3 else 0}, {v(vGO)}", f"{lab}_t:"]
        for m in range(14):
            blk.append(f"buffer_load_dwordx4 {r(RING_D[(14*rt+m) % NRD],4)}, {v(vGO+1)}, {s(SWS,4)}, {s(sGT + m//2)} offen{off((m % 2)*2048)} sc1")
        for m in range(14):
            blk.append(f"s_waitcnt vmcnt({13-m})")
            blk += [M16(acc + 4*nt, DW[m] + 4*nt, RING_D[(14*rt+m) % NRD], m == 0)[1] for nt in range(4)]
        blk += [f"v_cmp_u_f32 vcc, {v(acc)}, {v(acc)}", f"s_cbranch_vccz {back}"] + spin_tail(f"{lab}_t", back)
        OOL.append(blk)
        return [V(f"v_cmp_u_f32 vcc, {v(acc)}, {v(acc)}"), FN(lambda: (A(f"s_cbranch_vccnz {lab}"), A(f"{back}:")), 4)]
    T2, T3 = OPT.get("t2", 16), OPT.get("t3", 30)
    assert T3 >= T2 + 14 and NPRE <= 14 and 28 - NPRE <= T2
    when = {}
    for n in range(NPRE, 28):
        when[n - NPRE] = n
    for i in range(14):
        when[T2 + i] = 28 + i
        when[T3 + i] = 42 + i
    main = []
    for n in range(56):
        rt, m = divmod(n, 14)
        b = RING_D[n % NRD]
        if n % 14 == 0 and n:
            main.append(ST_(21 + n//14))
        if n == 43:
            main += nan_check(2)
        if when.get(n) == 14:
            main += f1c
        if n == 7:
            main.append(WL("dr13"))
        ld = d_load(when[n]) if n in when else []
        main += ([WV(f"d{n+1}")] if n % 2 == 0 else []) + ld[:-1]
        main.append(M16(ACD[rt & 1], DW[m], b, m == 0))
        main += ld[-1:]
        main.append(M16(ACD[rt & 1] + 4, DW[m] + 4, b, m == 0))
        if m == 3:
            main[-1:-1] = resu[rt]["ops"][:1]
            main.append(resu[rt]["ops"][1])
        main += [M16(ACD[rt & 1] + 4*nt, DW[m] + 4*nt, b, m == 0) for nt in (2, 3)]
    streams = [dict(ops=dw_read(12) + dw_read(13), g0=0, g1=20), dict(ops=cap(addr) + [BAR], g0=20, g1=50)]
    for rt in range(3):
        streams.append(dict(ops=reduce_ops(rt, False), g0=56*(rt+1) + 5, g1=56*(rt+1) + 50))
    weave(main, streams, small=True, report=REP("D"))
    stamp(25)
    run(nan_check(3) + reduce_ops(3, True), bg=False)
    stamp(26)
    A(f"s_xor_b32 {s(sT0)}, s2, 1")
    A(f"s_or_b32 {s(sT0)}, {s(sT0)}, {s(sW)}")
    A("s_cbranch_scc1 L_fin")
    A(f"s_mov_b32 {s(sT0)}, {EPO}")
    A(f"v_mov_b32 {v(vTAG)}, {s(sTAG)}")
    A("s_mov_b64 exec, 1")
    A(f"buffer_store_dword {v(vTAG)}, off, {s(SWS,4)}, {s(sT0)} sc1")
    A("s_mov_b64 exec, -1")


def finish():
    if OPT["ts"]:
        stamp(63)
        A(f"v_writelane_b32 {v(vTS)}, {s(sDBG)}, 62")
        A(f"s_lshl_b32 {s(sT0)}, s2, 2")
        A(f"s_add_u32 {s(sT0)}, {s(sT0)}, {s(sW)}")
        A(f"s_lshl_b32 {s(sT0)}, {s(sT0)}, 8")
        A(f"s_add_u32 {s(sT0)}, {s(sT0)}, {TSB}")
        A(f"v_lshlrev_b32 {v(vT)}, 2, {v(vLANE)}")
        A(f"buffer_store_dword {v(vTS)}, {v(vT)}, {s(SWS,4)}, {s(sT0)} offen")
    A("s_waitcnt vmcnt(0) lgkmcnt(0)")
    if OPT["hold"] >= 0:
        A(f"s_add_u32 {s(sTS)}, {s(sTS)}, 5000")
        A("L_hold:")
        A("s_memrealtime s[4:5]")
        A("s_waitcnt lgkmcnt(0)")
        A(f"s_sub_u32 s4, s4, {s(sTS)}")
        A("s_cmp_lt_i32 s4, 0")
        A("s_cbranch_scc1 L_hold")
    A("s_endpgm")


def main():
    prologue()
    phaseA()
    phaseQ()
    helper()
    npre = phaseC(*phaseB())
    phaseD(*npre)
    A("L_fin:")
    finish()
    for blk in OOL:
        for l in blk:
            A(l)
    A("L_exit:")
    A("s_endpgm")
    lines, nn = fix_hazards(A.lines, verbose=bool(OPT.get("v")))
    hdr = open("cdna_kernels/" + NAME + ".s.ref").read().split("; Override launch")[0]
    out = hdr + f"; @launch grid=(256,1,1) block=(256,1,1) lds={LDS_BYTES}\n"
    out += '.amdgcn_target "amdgcn-amd-amdhsa--gfx950"\n.text\n'
    out += f".globl {NAME}_kernel\n.p2align 8\n.type {NAME}_kernel,@function\n{NAME}_kernel:\n"
    out += "\n".join(("" if l.endswith(":") else "    ") + l for l in lines) + "\n"
    out += f"L_code_end:\n.if (L_code_end - {NAME}_kernel) < 33024\n.fill (33024 - (L_code_end - {NAME}_kernel)) / 4, 4, 0xbf810000\n.endif\n"
    out += f'.section .rodata,"a"\n.p2align 6\n.amdhsa_kernel {NAME}_kernel\n'
    out += "  .amdhsa_next_free_vgpr 512\n  .amdhsa_next_free_sgpr 102\n  .amdhsa_accum_offset 256\n"
    out += "  .amdhsa_group_segment_fixed_size 0\n  .amdhsa_kernarg_size 80\n  .amdhsa_user_sgpr_count 2\n"
    out += "  .amdhsa_user_sgpr_kernarg_segment_ptr 1\n  .amdhsa_system_sgpr_workgroup_id_x 1\n"
    out += "  .amdhsa_float_denorm_mode_32 3\n.end_amdhsa_kernel\n"
    open(sys.argv[1], "w").write(out)
    print(f"wrote {sys.argv[1]}: {len(lines)} lines, {nn} nop states inserted")


main()
```

```python
import re

class Asm:
    def __init__(self):
        self.lines = []
        self.vm = []
        self.lg = []
        self.nlabel = 0
    def __call__(self, s):
        for l in s.split("\n"):
            l = l.strip()
            if l: self.lines.append(l)
    def label(self, base="L"):
        self.nlabel += 1
        return f"{base}_{self.nlabel}"
    def vmem(self, s, tag):
        self(s); self.vm.append(tag)
    def lds(self, s, tag):
        self(s); self.lg.append(tag)
    def _cnt(self, q, tags):
        if isinstance(tags, str): tags = [tags]
        last = -1
        for i, t in enumerate(q):
            if t in tags: last = i
        return last
    def wait(self, vm=None, lg=None):
        parts = []
        if vm is not None:
            if vm == "all":
                parts.append("vmcnt(0)"); self.vm = []
            else:
                last = self._cnt(self.vm, vm)
                if last >= 0:
                    n = len(self.vm) - 1 - last
                    n2 = min(n, 63)
                    parts.append(f"vmcnt({n2})"); self.vm = self.vm[len(self.vm)-n2:] if n2 else []
        if lg is not None:
            if lg == "all":
                parts.append("lgkmcnt(0)"); self.lg = []
            else:
                last = self._cnt(self.lg, lg)
                if last >= 0:
                    n = len(self.lg) - 1 - last
                    n2 = min(n, 15)
                    parts.append(f"lgkmcnt({n2})"); self.lg = self.lg[len(self.lg)-n2:] if n2 else []
        if parts: self("s_waitcnt " + " ".join(parts))

def v(b, n=1): return f"v{b}" if n == 1 else f"v[{b}:{b+n-1}]"
def a(b, n=1): return f"a{b}" if n == 1 else f"a[{b}:{b+n-1}]"
def s(b, n=1): return f"s{b}" if n == 1 else f"s[{b}:{b+n-1}]"
def r(x, n=1):
    return v(x, n) if x < 256 else a(x-256, n)

REG = re.compile(r"^(-|abs\(|\|)?([vas])(?:(\d+)|\[(\d+):(\d+)\])\)?\|?$")
def regs_of(op):
    op = op.strip()
    if op in ("vcc",): return {("s", "vcc")}
    if op == "exec": return {("s", "exec")}
    if op == "m0": return {("s", "m0")}
    m = REG.match(op)
    if not m: return set()
    k = m.group(2)
    if m.group(3) is not None: lo = hi = int(m.group(3))
    else: lo, hi = int(m.group(4)), int(m.group(5))
    return {(k, i) for i in range(lo, hi+1)}

TRANS = ("v_exp_f32", "v_log_f32", "v_rcp_f32", "v_rsq_f32", "v_sqrt_f32", "v_sin_f32", "v_cos_f32")
class Ins:
    def __init__(self, text):
        self.text = text
        t = text.split(";")[0].strip()
        self.label = t.endswith(":")
        self.directive = t.startswith(".") or t == ""
        self.op = ""; self.w = set(); self.r = set(); self.kind = "other"
        self.srcc = set(); self.srcab = set(); self.sdata = set()
        if self.label or self.directive: return
        sp = t.split(None, 1)
        self.op = op = sp[0]
        rest = sp[1] if len(sp) > 1 else ""
        ops = []; cur = ""; d = 0
        for ch in rest:
            if ch == "[": d += 1
            if ch == "]": d -= 1
            if ch == "," and d == 0: ops.append(cur.strip()); cur = ""
            else: cur += ch
        if cur.strip(): ops.append(cur.strip())
        mods = ""
        if ops:
            lastp = ops[-1].split(None, 1)
            ops[-1] = lastp[0]; mods = lastp[1] if len(lastp) > 1 else ""
        self.ops = ops; self.mods = mods
        R = [regs_of(o) for o in ops]
        U = lambda l: set().union(*l) if l else set()
        if op.startswith("v_mfma"):
            self.kind = "mfma"; self.w = R[0]; self.srcab = R[1] | R[2]; self.srcc = R[3]; self.r = self.srcab | self.srcc
            self.passes = 8 if "32x32x16" in op else 4
        elif op == "v_nop":
            self.kind = "other"
        elif op.startswith("v_"):
            self.kind = "valu"
            if op.startswith("v_cmp"):
                self.w = R[0]; self.r = U(R[1:])
            elif op.startswith("v_permlane") and "swap" in op:
                self.w = R[0] | R[1]; self.r = R[0] | R[1]
            elif op.startswith("v_readfirstlane") or op.startswith("v_readlane"):
                self.w = R[0]; self.r = U(R[1:])
            elif "_co_" in op:
                self.w = R[0] | R[1]; self.r = U(R[2:])
            else:
                self.w = R[0]; self.r = U(R[1:])
                if op.startswith(("v_fmac", "v_dot2c", "v_writelane")) or "_dpp" in op or "sdwa" in op: self.r |= R[0]
            if op == "v_nop": self.kind = "other"
        elif op.startswith("buffer_") or op.startswith("global_"):
            self.kind = "vmem"
            if " lds" in (" " + mods) or "load_lds" in op:
                self.r = U(R) | {("s", "m0")}; self.dma = True
            elif "load" in op:
                self.w = R[0]; self.r = U(R[1:])
            else:
                self.r = U(R)
                di = 0 if op.startswith("buffer_") else 1
                if "x3" in op or "x4" in op: self.sdata = R[di]
                if "atomic" in op and "sc0" in mods: self.w = R[0]
        elif op.startswith("ds_"):
            self.kind = "ds"
            if "read" in op or "permute" in op or "swizzle" in op:
                self.w = R[0]; self.r = U(R[1:])
            else: self.r = U(R)
        elif op.startswith("s_"):
            self.kind = "salu"
            if op.startswith(("s_cmp", "s_bitcmp", "s_cbranch", "s_branch", "s_waitcnt", "s_barrier", "s_nop", "s_endpgm", "s_setprio", "s_sleep")):
                self.r = U(R)
            else:
                self.w = R[0] if R else set(); self.r = U(R[1:])
    def states(self):
        if self.label or self.directive: return 0
        if self.op == "s_nop": return int(self.ops[0]) + 1
        return 1

def vec(x): return {q for q in x if q[0] in "va"}
def sca(x): return {q for q in x if q[0] == "s"}

def need(p, c):
    n = 0
    pv = p.kind == "valu"
    if pv and c.kind == "mfma" and vec(p.w) & c.r: n = max(n, 2)
    if p.kind == "mfma":
        big = {8: 12, 4: 8}[p.passes]; ovl = {8: 10, 4: 6}[p.passes]; war = {8: 7, 4: 3}[p.passes]
        if c.kind == "mfma":
            if p.w & c.srcab: n = max(n, big)
            if p.w & c.srcc and not (p.w == c.srcc and p.passes == c.passes): n = max(n, ovl)
            if p.w & c.w and not (p.w == c.w and p.w == c.srcc): n = max(n, ovl)
        elif c.kind in ("valu", "vmem", "ds"):
            if p.w & (c.r | c.w): n = max(n, big)
            if p.srcc & c.w: n = max(n, war)
    if pv:
        if p.op.startswith(TRANS) and c.kind in ("valu", "mfma", "vmem", "ds") and p.w & c.r: n = max(n, 1)
        if c.op.startswith("v_permlane") and vec(p.w) & c.r: n = max(n, 2)
        if "_dpp" in c.op and vec(p.w) & c.r: n = max(n, 2)
        if c.op.startswith(("v_readfirstlane", "v_readlane")) and vec(p.w) & c.r: n = max(n, 1)
        if c.kind == "valu" and sca(p.w) & c.r: n = max(n, 4 if c.op.startswith(("v_readlane", "v_writelane")) else 2)
        if c.kind == "vmem" and sca(p.w) & c.r: n = max(n, 5)
        if c.kind == "salu" and sca(p.w) & c.r: n = max(n, 1)
        if p.op.startswith("v_dot2") and (p.w & (c.r | c.w)):
            if not (c.op == p.op and not (p.w & (set().union(*[regs_of(o) for o in c.ops[1:]])))): n = max(n, 3)
        if ("sdwa" in p.op or "op_sel" in p.mods and not p.op.startswith("v_pk")) and c.kind == "valu" and p.w & (c.r | c.w): n = max(n, 1)
    if p.kind == "vmem" and p.sdata and (p.sdata & c.w): n = max(n, 2)
    if p.kind == "salu" and ("s", "m0") in p.w and c.kind == "vmem" and ("s", "m0") in c.r: n = max(n, 1)
    if p.kind == "salu" and ("s", "exec") in p.w and "_dpp" in c.op: n = max(n, 1)
    return n

def fix_hazards(lines, verbose=False):
    ins = [Ins(l) for l in lines]
    MAXD = 13
    total = 0
    i = 0
    def build(ins):
        lab = {x.text.split(";")[0].strip()[:-1]: k for k, x in enumerate(ins) if x.label}
        br = {}
        for k, x in enumerate(ins):
            if x.op.startswith(("s_cbranch", "s_branch")): br.setdefault(lab[x.ops[0]], []).append(k)
        return br
    changed = True
    while changed:
        changed = False
        br = build(ins)
        out = []
        add = {}
        for i, c in enumerate(ins):
            if c.label or c.directive or c.kind == "other" and not c.op: continue
            worst = 0
            stack = [(i-1, 0)]; seen = set()
            while stack:
                k, d = stack.pop()
                while k >= 0 and d < MAXD:
                    if (k, d) in seen: break
                    seen.add((k, d))
                    p = ins[k]
                    if p.label:
                        for b in br.get(k, []): stack.append((b, d))
                        k -= 1
                        kk = k
                        while kk >= 0 and (ins[kk].directive): kk -= 1
                        if kk >= 0 and ins[kk].op in ("s_branch", "s_endpgm"): break
                        continue
                    if p.directive: k -= 1; continue
                    nn = need(p, c)
                    if nn > d:
                        if nn - d > worst: worst = nn - d; why = p.text
                    d += p.states() + add.get(k, 0)
                    k -= 1
            if worst:
                add[i] = worst
                if verbose: print(f"nop {worst} before [{c.text}] due to [{why}]")
        if add:
            changed = True
            new = []
            for i, c in enumerate(ins):
                if i in add:
                    new.append(Ins(f"s_nop {add[i]-1}")); total += add[i]
                new.append(c)
            ins = new
    return [x.text for x in ins], total


import subprocess, tempfile, os
WIDEN = ("v_mov_b32", "v_add_f32", "v_mul_f32", "v_max_f32", "v_add_u32", "v_subrev_u32", "v_xor_b32", "v_and_b32", "v_or_b32", "v_lshlrev_b32",
         "v_lshrrev_b32", "v_fmac_f32", "v_exp_f32", "v_rcp_f32", "v_rsq_f32", "v_min_u32", "v_max_u32", "v_cndmask_b32", "v_mul_u32_u24")

def sizes_of(lines, prefix):
    src = '.amdgcn_target "amdgcn-amd-amdhsa--gfx950"\n.text\n' + prefix + "\n".join(lines) + "\n"
    d = tempfile.mkdtemp()
    open(d + "/a.s", "w").write(src)
    subprocess.run(["clang", "-x", "assembler", "-target", "amdgcn-amd-amdhsa", "-mcpu=gfx950", "-c", d + "/a.s", "-o", d + "/a.o"], check=True)
    out = subprocess.run(["llvm-objdump", "-d", "--mcpu=gfx950", d + "/a.o"], capture_output=True, text=True).stdout
    sz = [4 * len(l.split("//")[1].split(":")[1].split()) for l in out.splitlines() if "//" in l and l.startswith("\t")]
    it = iter(sz)
    return [0 if l.endswith(":") else next(it) for l in lines]

def align_runs(lines, prefix, minrun=3, nop_run=10, stop=None):
    sz = sizes_of(lines, prefix)
    out = []; osz = []; addr = 0; nw = nn = 0; barrier = 0
    n = len(lines); i = 0
    while i < n:
        if lines[i] == stop:
            out += lines[i:]; break
        if sz[i] == 8 and addr % 8 == 4:
            j = i; cnt = 0
            while j < n and sz[j] in (0, 8):
                cnt += sz[j] == 8 and not lines[j].startswith("v_mfma"); j += 1
            if cnt >= minrun:
                k = len(out) - 1; found = None
                while k >= barrier and osz[k] in (0, 4):
                    op = out[k].split()[0]
                    if osz[k] == 4 and op in WIDEN: found = k; break
                    k -= 1
                if found is not None:
                    p = out[found].split(None, 1); out[found] = p[0] + "_e64 " + p[1]; osz[found] = 8; addr += 4; nw += 1
                elif cnt >= nop_run:
                    out.append("s_nop 0"); osz.append(4); addr += 4; nn += 1
                while i < j:
                    out.append(lines[i]); osz.append(sz[i]); addr += sz[i]; i += 1
                barrier = len(out)
                continue
        out.append(lines[i]); osz.append(sz[i]); addr += sz[i]; i += 1
    return out, nw, nn
```

```python
from collections import deque
import re
from asmlib import *

A = Asm()
OOL = []

class Clock:
    t = 0
    mf = 0
    bgn = 0

CK = Clock()
BG = deque()
SEEN, WAITED, SEENL = set(), set(), set()
V = lambda t: ("v", t)
S = lambda t: ("s", t)
BAR = ("bar",)
WV = lambda t: ("wvm", t)
WL = lambda t: ("wlg", t)
FN = lambda f, c=0: ("fn", f, c)

def opcost(op):
    k = op[0]
    if k == "v":
        t = op[1]
        if t.startswith(("v_exp", "v_rcp", "v_rsq")): return 8
        return 5 if t.startswith(("v_fma_", "v_pk", "v_cvt_pk", "v_max3", "v_accvgpr", "v_lshl_add", "v_add3", "v_bfe", "v_perm", "v_and_or")) else 4
    if k == "fn": return op[2]
    if k == "s": return 4 * (op[1].count("\n") + 1)
    if k == "lds" and op[1].startswith("ds_write_b128"): return COST["w"]
    if k == "vm": return COST["vm"]
    return 4

VT = []
COST = dict(vm=4, w=16, late=24)
LT = {}
import os
TRACE = os.environ.get('TRACE')
DROP = []
def E(op):
    k = op[0]
    if k == "vm" and any(re.fullmatch(d[0] + r"\d*", op[2]) and d[1] in op[1] for d in DROP):
        SEEN.add(op[2]); return
    if k == "M" or k == "m":
        A(op[1])
        t = max(CK.t, CK.mf)
        CK.mf = t + (32 if k == "M" else 16)
        CK.t = t + 8
        return
    n0 = len(A.lines)
    if k in ("s", "v"): A(op[1])
    elif k == "vm":
        if op[2] in WAITED: print("WARNING: vm op issued after its tag was waited:", op)
        SEEN.add(op[2]); A.vmem(op[1], op[2]); VT.append((op[2], CK.t))
    elif k == "lds":
        SEENL.add(op[2]); A.lds(op[1], op[2]); LT[op[2]] = CK.t
    elif k == "wvm":
        tags = [op[1]] if isinstance(op[1], str) else op[1]
        while any(o[0] == "vm" and o[2] in tags for u in BG for o in u["ops"]):
            print("note: forcing background for", tags)
            bg_emit()
        for t_ in tags:
            assert t_ in SEEN or t_ == "all", ("wait on unseen tag", t_)
            WAITED.add(t_)
        n0 = len(A.lines)
        nb = len(A.vm)
        A.wait(vm=op[1])
        if TRACE and len(A.lines) > n0:
            done = VT[len(VT)-nb:len(VT)-len(A.vm)] if nb <= len(VT) else []
            print(f"  t={CK.t} wait {op[1]}: retires", [(a_, CK.t-b_) for a_, b_ in done[-4:]])
    elif k == "wlg":
        assert op[1] in SEENL or op[1] == "all", ("wait on unseen lds tag", op[1])
        A.wait(lg=op[1])
    elif k == "bar": A("s_barrier")
    elif k == "fn": op[1]()
    elif k == "bg":
        for _ in range(op[1]):
            if BG: bg_emit()
        return
    else: raise ValueError(op)
    if k in ("wvm", "wlg") and len(A.lines) == n0: return
    CK.t += opcost(op)

def bg_emit():
    u = BG.popleft()
    for o in u["ops"]: E(o)
    CK.bgn = max(CK.bgn, CK.t - 16) + u["ta"]

def bg_try():
    if BG and CK.t >= CK.bgn: bg_emit()

def bg_force(n=None):
    while BG and (n is None or n > 0):
        bg_emit()
        if n is not None: n -= 1
    CK.t = max(CK.t, CK.bgn - 128)

def bg_now(delay=0): CK.bgn = CK.t + delay

def unit(ops, lines): return dict(ops=ops, ta=lines * 8)

def run(ops, bg=True):
    for o in ops:
        E(o)
        if bg and o[0] in ("v", "M", "m", "lds"): bg_try()

def spread(ops, n=None):
    us = [BG[i]["ta"] for i in range(len(BG) if n is None else min(n, len(BG)))]
    tot = sum((32 if o[0] == "M" else 16 if o[0] == "m" else opcost(o)) for o in ops) or 1
    tta = sum(us) or 1
    done = 0; issued = 0; k = 0
    for o in ops:
        while k < len(us) and issued / tta <= done / tot:
            bg_emit(); issued += us[k]; k += 1
        E(o)
        done += 32 if o[0] == "M" else 16 if o[0] == "m" else opcost(o)
    while k < len(us):
        bg_emit(); k += 1
    CK.t = max(CK.t, CK.bgn - 128)

def cap(fn):
    keep = A.lines; A.lines = []
    fn()
    got = A.lines; A.lines = keep
    out = []
    for l in got:
        if l.startswith(("s_cselect", "s_subb", "s_addc")):
            p = out.pop(); out.append(("s", p[1] + "\n" + l))
        else: out.append(("v", l) if l.startswith("v_") else ("s", l))
    return out

def fuse_cmp(ops):
    out = []
    for o in ops:
        if o[0] == "fn" and o[2] == 4 and out and out[-1][0] == "v" and out[-1][1].startswith("v_cmp"):
            c = out.pop()
            out.append(("fn", (lambda c=c, o=o: (A(c[1]), o[1]())), 12))
        else: out.append(o)
    return out

def weave(main, streams=(), small=False, report=None, autobg=True):
    for s_ in streams: s_["ops"] = fuse_cmp(s_["ops"])
    st = [dict(ops=deque(s_["ops"]), g0=s_["g0"], g1=s_["g1"], greedy=s_.get("greedy", False),
               tot=max(1, sum(opcost(o) for o in s_["ops"])), done=0, end=None) for s_ in streams]
    MEM = ("vm", "lds", "wvm", "wlg", "s", "bar", "bg")
    i = 0; g = 0; n = len(main); tstart = max(CK.t, CK.mf)
    while i < n:
        o = main[i]; E(o); i += 1
        if o[0] not in ("M", "m"): continue
        while i < n and main[i][0] in ("lds", "vm", "bg"):
            E(main[i]); i += 1
        if o[0] == "m" and not small: continue
        if autobg: bg_try()
        g += 1
        j = i; res = 0
        while j < n and main[j][0] not in ("M", "m"):
            res += opcost(main[j]); j += 1
        def behind(s_):
            frac = (g - s_["g0"]) / max(1, s_["g1"] - s_["g0"])
            return s_["done"] < s_["tot"] * frac
        def late(s_):
            frac = (g - s_["g0"]) / max(1, s_["g1"] - s_["g0"])
            return frac >= 1 or s_["done"] < s_["tot"] * frac - COST["late"]
        def ok(s_):
            if not s_["ops"] or g <= s_["g0"]: return False
            h = s_["ops"][0]
            if h[0] == "wlg" and g < s_["g1"] and h[1] in A.lg and CK.t - LT.get(h[1], -999) < 150: return False
            fits = CK.t + opcost(s_["ops"][0]) + res <= CK.mf + 1
            return late(s_) or (fits and (s_["greedy"] or behind(s_)))
        for phase in (0, 1):
            for s_ in st:
                while ok(s_) and ((s_["ops"][0][0] in MEM) if phase == 0 else (s_["ops"][0][0] not in ("vm", "lds") or g >= s_["g1"])):
                    x = s_["ops"].popleft(); E(x); s_["done"] += opcost(x)
                    if not s_["ops"]: s_["end"] = g
    for s_ in st:
        while s_["ops"]: E(s_["ops"].popleft())
    if report: print(f"weave {report}: est {max(CK.t, CK.mf) - tstart} clk, {g} gaps, stream ends {[s_['end'] for s_ in st]}, bg left {len(BG)}")

def M32(d, x, y, zero=False):
    return ("M", f"v_mfma_f32_32x32x16_bf16 {r(d,16)}, {r(x,4)}, {r(y,4)}, {'0' if zero else r(d,16)}")
def M16(d, x, y, zero=False):
    return ("m", f"v_mfma_f32_16x16x32_bf16 {r(d,4)}, {r(x,4)}, {r(y,4)}, {'0' if zero else r(d,4)}")
def off(i): return f" offset:{i}" if i else ""
def DMA(voff, sr, soff, imm, tag):
    return ("vm", f"buffer_load_dwordx4 {v(voff)}, {s(sr,4)}, {soff} offen{off(imm)} lds", tag)
def TR(dst, addr, o, tag): return ("lds", f"ds_read_b64_tr_b16 {r(dst,2)}, {v(addr)}{off(o)}", tag)
def RD128(dst, addr, o, tag): return ("lds", f"ds_read_b128 {r(dst,4)}, {v(addr)}{off(o)}", tag)
def WR128(addr, src, o, tag): return ("lds", f"ds_write_b128 {v(addr)}, {r(src,4)}{off(o)}", tag)

def pkop(name, d, srcs, neg0=False):
    lo = ",".join("1" if m == 1 else "0" for _, m in srcs)
    hi = ",".join("0" if m == 0 else "1" for _, m in srcs)
    t = f"{name} {d}, " + ", ".join(x for x, _ in srcs) + f" op_sel:[{lo}] op_sel_hi:[{hi}]"
    if neg0:
        z = ",".join(["1"] + ["0"] * (len(srcs) - 1))
        t += f" neg_lo:[{z}] neg_hi:[{z}]"
    return V(t)

def max_lines(regs, tmp, first=True):
    out = []
    rest = list(regs)
    if first:
        out.append(f"v_max3_u32 {v(tmp)}, {v(rest[0])}, {v(rest[1])}, {v(rest[min(2, len(rest)-1)])}")
        rest = rest[3:]
    while rest:
        x1 = rest[1] if len(rest) > 1 else rest[0]
        out.append(f"v_max3_u32 {v(tmp)}, {v(tmp)}, {v(rest[0])}, {v(x1)}")
        rest = rest[2:]
    return out

def mix(a_, b_):
    out = []
    a_, b_ = list(a_), list(b_)
    while a_ or b_:
        if a_: out.append(a_.pop(0))
        if b_: out.append(b_.pop(0))
    return out
```

```python
import sys, struct
from sched import *

NAME = "sequential_preLN__linear_attn_block__glu_gated_geglu__prompt"
OPT = dict(ts=0, spin=200000, slp=2, rep=0, rot=1, cm=8, ck=0, w1=0, rw=1, ew='xbf', ep='x012', n0=0, n1=1, nf=4, na=4, ne=0, nb=0, ng=0, n2=5, n3=8, sl=1, so=2, rotd=0, hold=-1, warm=0, ev='x', eg='x', g0=1, na0=99, la=4, lg=6, s3n=12, eq='x37')
for arg in sys.argv[2:]:
    k_, v_ = arg.split("=")
    OPT[k_] = int(v_) if v_.lstrip("-").isdigit() else v_
fh = lambda x: "0x%08x" % struct.unpack("<I", struct.pack("<f", x))[0]
if OPT.get("xdw"): DROP.append(("dw", ""))
if OPT.get("xst"): DROP.append(("gst", ""))
if OPT.get("xpoi"): DROP.extend([("zs", "dwordx2"), ("po", ""), ("ph", "")])
if OPT.get("xcw"): DROP.append(("cw", ""))
for d_ in str(OPT.get("drop", "")).split(","):
    if d_: DROP.append((d_, ""))
REP = lambda n: n if OPT["rep"] else None

KVP = 0
OO = 1 << 20
HH_ = 3 << 20
ST = 5 << 20
FL1 = 0x80000
SL1 = 0xC0000
FL2 = 0xA0000
EPO = 0xA8000
PFL = 0xA9000
HFL = (5 << 20) + (1 << 19)
CSW = 0xB0000
GG = 6 << 20
TSB = 15 << 20
WS_BYTES = 16 << 20

K = 1024
WL0 = 64 * K
WKL = 112 * K
HI = 96 * K
KVX = 120 * K
XB = 128 * K
XIMG = 148 * K
MISC = 156 * K
LDS_BYTES = 160 * K

sUP = 0
sW = 3
sT0, sT1, sT2, sT3 = 4, 5, 6, 7
SX, SQKV, SWO, SWG, SWU, SWD, SOUT, SWS = 8, 12, 16, 20, 24, 28, 32, 36
sTAG, sFL, sDBG, sG1 = 40, 41, 42, 43
sRB, sP, sHEAD, sCB, sFB, sIDLE, sW1K, sC0 = 44, 45, 46, 47, 48, 49, 50, 51
sXB, sW4K, sONES, sSPIN = 52, 53, 54, 55
sL2E, sEPS = 56, 58
sKVPW, sOW, sHW, sSTW = 60, 61, 62, 63
sM = 64
sG2 = 79
sKH = 87
sB0, sB1 = 88, 89
sHF, sGW, sDWK, sCA, sCB2 = 90, 91, 92, 93, 94
sOUTW, sWOL, sW7K = 95, 96, 97
sMK = 98
sTS = 100

vLANE, vL16 = 1, 15
vXO = 2
vWO = 6
vXR = 7
vWR = 11
vRO = 16
vMEAN = 18
vT = 20
vCW = 24
vCR = 26
vBC = 30
vTS = 31
CW = 256
STASH = 256 + 200
SEL = 256 + 224
CSA = 256 + 228
AS = 256 + 236
ACS = 256 + 240


NST = [0]


def fst(group):
    if OPT.get("fine") == group:
        stamp(-1)


def stamp(i):
    if OPT.get("fine") and i != 63:
        if i > 0 and i < OPT.get("from", 0):
            return
        print("stamp", NST[0], "=", i)
        i = NST[0]
        NST[0] += 1
        if i >= 30:
            return
    if OPT.get("jit") and 3 <= i < 30:
        lab = A.label("L_jit")
        A(f"s_mul_i32 {s(sTS)}, s2, {4 if OPT['jit'] == 2 else 1}")
        if OPT["jit"] == 2:
            A(f"s_add_u32 {s(sTS)}, {s(sTS)}, {s(sW)}")
        A(f"s_add_u32 {s(sTS)}, {s(sTS)}, {i*7919}")
        A(f"s_xor_b32 {s(sTS)}, {s(sTS)}, {s(sTAG)}")
        A(f"s_mul_i32 {s(sTS)}, {s(sTS)}, 0x85ebca6b")
        A(f"s_lshr_b32 {s(sTS+1)}, {s(sTS)}, 15")
        A(f"s_xor_b32 {s(sTS)}, {s(sTS)}, {s(sTS+1)}")
        A(f"s_mul_i32 {s(sTS)}, {s(sTS)}, 0xc2b2ae35")
        A(f"s_lshr_b32 {s(sTS)}, {s(sTS)}, 24")
        A(f"s_cmp_lt_u32 {s(sTS)}, {OPT.get('jp', 240)}")
        A(f"s_cbranch_scc1 {lab}")
        A("s_sleep 100")
        A(f"{lab}:")
    if OPT["hold"] == i:
        A(f"s_memrealtime {s(sTS,2)}")
        A.wait(lg="all")
    if not OPT["ts"]:
        return
    A(f"s_memrealtime {s(sTS,2)}")
    A.wait(lg="all")
    A(f"v_writelane_b32 {v(vTS)}, {s(sTS)}, {i}")
    if OPT["ts"] == 2 and i < 30:
        A(f"s_memtime {s(sTS,2)}")
        A.wait(lg="all")
        A(f"v_writelane_b32 {v(vTS)}, {s(sTS)}, {32+i}")


ST_ = lambda i: FN(lambda: stamp(i))
NOOL = [0]


def dbg_mark(name):
    i = NOOL[0]
    NOOL[0] += 1
    if OPT["rep"]:
        print("ool bit", i, name)
    return [f"s_bitset1_b32 {s(sDBG)}, {i}"] if OPT["ts"] else []


def srd(base, nbytes):
    A(f"s_mov_b32 {s(base+2)}, {nbytes}")
    A(f"s_mov_b32 {s(base+3)}, 0x20000")


def spin_tail(loop, back):
    return [f"s_add_u32 {s(sSPIN)}, {s(sSPIN)}, 1", f"s_cmp_lt_u32 {s(sSPIN)}, {OPT['spin']}", f"s_cbranch_scc1 {loop}", f"s_branch {back}"]


def check_ops(tag, regs, reloads, tmp=vT):
    lab = A.label("L_chk")
    back = A.label("L_bk")
    chk = max_lines(regs, tmp) + [f"v_cmp_eq_u32 vcc, -1, {v(tmp)}"]
    ops = [WV(tag)] + [V(c_) for c_ in chk] + [FN(lambda: (A(f"s_cbranch_vccnz {lab}"), A(f"{back}:")), 4)]
    OOL.append([f"{lab}:"] + dbg_mark(tag) + [f"s_mov_b32 {s(sSPIN)}, 0", f"{lab}_t:"] + reloads + ["s_waitcnt vmcnt(0)"] + chk +
               [f"s_cbranch_vccz {back}"] + spin_tail(f"{lab}_t", back))
    return ops


def tag_check(tag, loads, r0, r1):
    lab, back = A.label("L_tg"), A.label("L_tb")
    chk = [f"v_bitop3_b32 {v(r0)}, {s(sTAG)}, {v(r0-1)}, {v(r0)} bitop3:0x96", f"v_bitop3_b32 {v(r1)}, {s(sTAG)}, {v(r1-1)}, {v(r1)} bitop3:0x96", f"v_or_b32 {v(r0)}, {v(r0)}, {v(r1)}", f"v_cmp_ne_u32 vcc, 0, {v(r0)}"]
    OOL.append([f"{lab}:"] + dbg_mark(tag) + [f"s_mov_b32 {s(sSPIN)}, 0", f"{lab}_t:", f"s_sleep {OPT['slp']}"] + loads + ["s_waitcnt vmcnt(0)"] + chk +
               [f"s_cbranch_vccz {back}"] + spin_tail(f"{lab}_t", back))
    return [WV(tag)] + [V(c_) for c_ in chk] + [FN(lambda: (A(f"s_cbranch_vccnz {lab}"), A(f"{back}:")), 4)]


def flag_check(tag, reg, addr, so):
    lab = A.label("L_cc")
    back = A.label("L_cb")
    ld = f"buffer_load_dword {v(reg)}, {v(addr)}, {s(SWS,4)}, {so} offen sc1"
    chk = f"v_cmp_ne_u32 vcc, {s(sTAG)}, {v(reg)}"
    ops = [WV(tag), V(chk), FN(lambda: (A(f"s_cbranch_vccnz {lab}"), A(f"{back}:")), 4)]
    if OPT.get("xfl") and tag in ("f0", "f1", "f2", "f3"):
        ops = [WV(tag), V("v_cmp_ne_u32 vcc, 0, 0"), ops[2]]
    OOL.append([f"{lab}:"] + dbg_mark(tag) + [f"s_mov_b32 {s(sSPIN)}, 0", f"{lab}_t:", ld, "s_waitcnt vmcnt(0)", chk,
                f"s_cbranch_vccz {back}", f"s_sleep {OPT['slp']}"] + spin_tail(f"{lab}_t", back))
    return ("vm", ld, tag), ops


def refresh(name, groups):
    top = A.label("R_top")
    ool = A.label("R_ool")
    done = A.label("R_done")
    blk = [f"{ool}:"] + dbg_mark(name) + [f"s_mov_b32 {s(sSPIN)}, 0", f"{ool}_t:", "s_waitcnt vmcnt(0)", f"s_mov_b32 {s(sM)}, 0"]
    for G in groups:
        skip = A.label("R_s")
        blk += max_lines(G["regs"], vT) + [f"v_cmp_eq_u32 vcc, -1, {v(vT)}", f"s_cbranch_vccz {skip}"] + G["loads"] + [f"s_mov_b32 {s(sM)}, 1", f"{skip}:"]
    blk += [f"s_add_u32 {s(sSPIN)}, {s(sSPIN)}, {s(sM)}", f"s_cmp_eq_u32 {s(sSPIN)}, 0", f"s_cbranch_scc1 {done}",
            f"s_cmp_eq_u32 {s(sM)}, 0", f"s_cbranch_scc1 {top}",
            f"s_cmp_lt_u32 {s(sSPIN)}, {OPT['spin']}", f"s_cbranch_scc1 {ool}_t", "s_waitcnt vmcnt(0)", f"s_branch {done}"]
    OOL.append(blk)
    return ([FN(lambda: A(f"{top}:"))],
            [FN(lambda: (A(f"s_cbranch_vccnz {ool}"), A(f"{done}:")), 4)])


def bad_lines(G):
    if G.get("xor"):
        x = G["regs"]
        return [f"v_add3_u32 {v(vT)}, {v(x[0])}, {v(x[1])}, {s(sTAG)}", f"v_add3_u32 {v(vT)}, {v(vT)}, {v(x[2])}, {v(x[3])}",
                f"v_add3_u32 {v(vT)}, {v(vT)}, {v(x[4])}, {v(x[5])}", f"v_add_u32 {v(vT)}, {v(vT)}, {v(x[6])}", f"v_cmp_ne_u32 vcc, {v(x[7])}, {v(vT)}"]
    return max_lines(G["regs"], vT) + [f"v_cmp_eq_u32 vcc, -1, {v(vT)}"]


def site_check(tag, G, later):
    lab, back = A.label("S_ool"), A.label("S_bk")
    ops = [WV(tag)] + [V(l) for l in bad_lines(G)] + [FN(lambda: (A(f"s_cbranch_vccnz {lab}"), A(f"{back}:")), 4)] + G.get("pre", [])
    blk = [f"{lab}:"] + dbg_mark(tag) + [f"s_mov_b32 {s(sSPIN)}, 0", f"{lab}_t:", "s_waitcnt vmcnt(0)", f"s_mov_b32 {s(sM)}, 0"]
    for X in [G] + later:
        skip = A.label("S_s")
        blk += bad_lines(X) + [f"s_cbranch_vccz {skip}"] + X["loads"] + [f"s_mov_b32 {s(sM)}, 1", f"{skip}:"]
    blk += [f"s_cmp_eq_u32 {s(sM)}, 0", f"s_cbranch_scc1 {back}", f"s_add_u32 {s(sSPIN)}, {s(sSPIN)}, 1", f"s_cmp_lt_u32 {s(sSPIN)}, {OPT['spin']}",
            f"s_cbranch_scc1 {lab}_t", "s_waitcnt vmcnt(0)", f"s_branch {back}"]
    OOL.append(blk)
    return ops


def gather_finish(name, groups, post={}):
    n = len(groups)
    A(f"s_mov_b32 {s(sM)}, {(1 << n) - 1}")
    A(f"s_mov_b32 {s(sSPIN)}, 0")
    top, done, retry = A.label("G_top"), A.label("G_done"), A.label("G_retry")
    A(f"{top}:")
    for g, G in enumerate(groups):
        skip = A.label("G_skip")
        E(WV(f"{name}{g}"))
        for l in bad_lines(G):
            A(l)
        A(f"s_bitcmp0_b32 {s(sM)}, {g}")
        A(f"s_cbranch_scc1 {skip}")
        A(f"s_cbranch_vccnz {skip}")
        for o in G.get("pre", []) + G["compute"]:
            A(o[1])
        A(f"s_bitset0_b32 {s(sM)}, {g}")
        A(f"{skip}:")
        for o in post.get(g, []):
            E(o)
    A(f"s_cmp_lg_u32 {s(sM)}, 0")
    A(f"s_cbranch_scc1 {retry}")
    A(f"{done}:")
    blk = [f"{retry}:"] + dbg_mark(name) + [f"s_sleep {OPT['slp']}", f"s_add_u32 {s(sSPIN)}, {s(sSPIN)}, 1", f"s_cmp_gt_u32 {s(sSPIN)}, {OPT['spin']}", f"s_cbranch_scc1 {done}"]
    for g, G in enumerate(groups):
        skip = A.label("G_rs")
        blk += [f"s_bitcmp0_b32 {s(sM)}, {g}", f"s_cbranch_scc1 {skip}"] + G["loads"] + [f"{skip}:"]
    blk += ["s_waitcnt vmcnt(0)", f"s_branch {top}"]
    OOL.append(blk)


def gather_loads(name, groups):
    return [("vm", t, f"{name}{g}") for g, G in enumerate(groups) for t in G["loads"]]


def prologue():
    if OPT["hold"] >= 0 or OPT["ts"]:
        A(f"s_memrealtime {s(sTS,2)}")
    A(f"s_getpc_b64 {s(sT0,2)}")
    A(f"s_lshr_b32 {s(sT2)}, s2, 3")
    A(f"s_lshl_b32 {s(sT3)}, {s(sT2)}, 10")
    A(f"v_lshl_add_u32 {v(vT)}, v0, 2, {s(sT3)}")
    A(f"s_cmp_ge_u32 {s(sT2)}, 32")
    A("s_cbranch_scc1 L_exit")
    A.vmem(f"global_load_dword v255, {v(vT)}, {s(sT0,2)}", "code")
    for sr_, o_ in ((SX, 0), (SQKV, 8), (SWS, 72), (SWO, 16), (SWG, 32), (SWU, 40), (SWD, 48), (SOUT, 56)):
        A(f"s_load_dwordx2 {s(sr_,2)}, s[0:1], {o_}")
    if OPT["ts"]:
        A(f"v_mov_b32 {v(vTS)}, 0")
        A(f"s_mov_b32 {s(sDBG)}, 0")
    A(f"v_lshrrev_b32 {v(vT+2)}, 6, v0")
    A(f"v_and_b32 {v(vLANE)}, 63, v0")
    A(f"v_readfirstlane_b32 {s(sW)}, {v(vT+2)}")
    A(f"s_and_b32 {s(sP)}, s2, 1")
    A(f"s_bfe_u32 {s(sRB)}, s2, 0x20001")
    A(f"s_lshr_b32 {s(sT3)}, s2, 6")
    A(f"s_lshl2_add_u32 {s(sRB)}, {s(sRB)}, {s(sT3)}")
    A(f"s_and_b32 {s(sT2)}, {s(sT2)}, 7")
    A(f"s_lshl3_add_u32 {s(sHEAD)}, {s(sP)}, {s(sT2)}")
    A(f"s_lshl1_add_u32 {s(sC0)}, {s(sT3)}, {s(sT2)}")
    A(f"s_sub_u32 {s(sT3)}, {s(sC0)}, 7")
    A(f"s_cselect_b32 {s(sC0)}, {s(sC0)}, {s(sT3)}")
    srd(SX, 2048 * 896)
    srd(SQKV, 448 * 2688)
    A(f"s_lshl4_add_u32 {s(sB1)}, {s(sRB)}, {s(sHEAD)}")
    A(f"s_lshl2_add_u32 {s(sB1)}, {s(sB1)}, {s(sW)}")
    A(f"s_mul_i32 {s(sT0)}, {s(sB1)}, {2*896}")
    A(f"v_and_b32 {v(T_)}, 31, {v(vLANE)}")
    A(f"v_lshrrev_b32 {v(T_+1)}, 5, {v(vLANE)}")
    A(f"v_cmp_lt_u32 vcc, 27, {v(T_)}")
    A(f"v_mul_u32_u24 {v(vT+1)}, 896, {v(T_+1)}")
    A(f"v_lshl_add_u32 {v(vT+1)}, {v(T_)}, 4, {v(vT+1)}")
    A(f"v_cndmask_b32 {v(vT)}, {v(vT+1)}, 2.0, vcc")
    A(f"s_mul_i32 {s(sT1)}, {s(sW)}, {16*2688}")
    A(f"s_mul_i32 {s(sT3)}, {s(sHEAD)}, 56")
    A(f"s_add_u32 {s(sT3)}, {s(sT3)}, {s(sT1)}")
    A(f"v_lshrrev_b32 {v(vT+2)}, 2, {v(vLANE)}")
    A(f"v_mul_u32_u24 {v(vT+2)}, 2688, {v(vT+2)}")
    A(f"v_and_b32 {v(vT+3)}, 3, {v(vLANE)}")
    A(f"v_lshlrev_b32 {v(vT+3)}, 4, {v(vT+3)}")
    A(f"v_min_u32 {v(vT+3)}, 40, {v(vT+3)}")
    A(f"v_add3_u32 {v(vWO)}, {v(vT+2)}, {v(vT+3)}, {s(sT3)}")
    A(f"s_lshl_b32 {s(sW1K)}, {s(sW)}, 10")
    A(f"s_lshl_b32 {s(sW4K)}, {s(sW)}, 12")
    A(f"s_lshl2_add_u32 {s(sXB)}, {s(sRB)}, {s(sW)}")
    A(f"s_mul_i32 {s(sXB)}, {s(sXB)}, {32*896}")
    A(f"v_lshrrev_b32 {v(vT+2)}, 3, {v(vLANE)}")
    A(f"v_mul_u32_u24 {v(vT+2)}, 896, {v(vT+2)}")
    A(f"v_add_u32 {v(vT+2)}, {s(sXB)}, {v(vT+2)}")
    A(f"v_lshrrev_b32 {v(vT+3)}, 4, {v(vLANE)}")
    A(f"v_and_b32 {v(vT+1)}, 7, {v(vLANE)}")
    A(f"v_xor_b32 {v(vT+3)}, {v(vT+3)}, {v(vT+1)}")
    A(f"v_lshl_add_u32 {v(vXO)}, {v(vT+3)}, 4, {v(vT+2)}")
    A(f"v_xor_b32 {v(vT+3)}, 4, {v(vT+3)}")
    A(f"v_lshl_add_u32 {v(vXO+1)}, {v(vT+3)}, 4, {v(vT+2)}")
    A(f"v_add_u32 {v(vXO+1)}, {7168-1024}, {v(vXO+1)}")
    A(f"v_add_u32 {v(vXO+2)}, {2*(7168-1024)}, {v(vXO)}")
    A(f"v_add_u32 {v(vXO+3)}, {2*(7168-1024)}, {v(vXO+1)}")
    A(f"s_lshl_b32 {s(sM+8)}, {s(sC0)}, 7")
    A(f"s_mul_i32 {s(sM+1)}, {s(sM+8)}, 1344")
    A.wait(lg="all")
    if OPT["ts"]:
        A(f"v_writelane_b32 {v(vTS)}, {s(sTS)}, 31")
    stamp(0)


NT = lambda op, on: (op[0], op[1].replace(" lds", " nt lds"), op[2]) if on else op


def u_x(t):
    return [unit(([S(f"s_add_u32 m0, {s(sW4K)}, {(t+4 if t < 3 else t-3)*16*K}"), S("s_nop 0")] if i == 0 else []) +
                 [NT(DMA(vXO+i, SX, s(sM+8+t), 1024*i, f"c{t}"), t < OPT.get("xnt", 0))], 8) for i in range(4)]


def u_w(part, t, lines=32):
    m = [f"s_add_u32 m0, {s(sW1K)}, {WKL + t*4096}", f"s_add_u32 m0, {s(sW4K)}, {64*K + (t >> 2)*16*K + (t & 3)*1024}",
         f"s_add_u32 m0, {s(sW4K)}, {32*K + (t >> 2)*16*K + (t & 3)*1024}"][part]
    return unit([S(m), S(f"s_add_u32 {s(sB0)}, {s(sM+1+t)}, {(896, 1792, 0)[part]}"), NT(DMA(vWO, SQKV, s(sB0), 0, "cvq"[part] + str(t)), OPT.get("wnt", 0) >> part & 1)], lines)


XF = 32
SLC = 192
vVR = 144
vKW, vKR, vSO, vWM, vXW, vXR2, vKR2 = 148, 149, 150, 151, 157, 158, 159
vXA = 28
RW = [256 + 160 + 4*i for i in range(8)]
ACK, ACV = 176, 192
PK, PV = 208, 216
BM, BR = 224, 240
vPOI = 256 + 248
vCS = 164
vCC = 166
vCSA, vCSR, vBW, vL8, vFA = 167, 172, 173, 174, 175
sROT, sCWK = sC0, sOUTW
sRC = sIDLE
sSLO, sF1W = sCA, sCB2
sWP = sMK


def phi_ops(acc, cs, mean, rs, dst, tmp):
    o = []
    P = lambda b, i: v(b + 2*i, 2)
    o += [pkop("v_pk_fma_f32", P(acc, i), [mean(i), cs(i), (P(acc, i), None)], neg0=True) for i in range(8)]
    o += [pkop("v_pk_mul_f32", P(acc, i), [(P(acc, i), None), rs(i)]) for i in range(8)]
    if tmp is not None:
        o += [V(f"v_pk_mul_f32 {P(tmp,i)}, {P(acc,i)}, {s(sL2E,2)}") for i in range(8)]
        for i in range(16):
            o += [V(f"v_exp_f32 {v(tmp+i)}, {v(tmp+i)} clamp"), V(f"v_max_f32 {v(acc+i)}, 0, {v(acc+i)}")]
        o += [V(f"v_pk_add_f32 {P(acc,i)}, {P(acc,i)}, {P(tmp,i)}") for i in range(8)]
        o += [V(f"v_pk_add_f32 {P(acc,i)}, {P(acc,i)}, {s(sEPS,2)}") for i in range(8)]
    o += [V(f"v_cvt_pk_bf16_f32 {v(dst+i)}, {v(acc+2*i)}, {v(acc+2*i+1)}") for i in range(8)]
    return o


def cs_sum(dst, b=168):
    return [V(f"v_add_f32 {v(b)}, {v(b)}, {v(b+1)}"), V(f"v_add_f32 {v(b+2)}, {v(b+2)}, {v(b+3)}"), V(f"v_add_f32 {v(dst)}, {v(b)}, {v(b+2)}")]


HORD = [0, 1, 3, 5, 7, 2, 4, 6]
NEARLY = 5
T_ = 152


def setup1():
    for t in range(1, 7):
        A(f"s_add_u32 {s(sM+8+t)}, {s(sM+7+t)}, 128")
        A(f"s_cmp_eq_u32 {s(sM+8+t)}, 896")
        A(f"s_cselect_b32 {s(sM+8+t)}, 0, {s(sM+8+t)}")
        A(f"s_mul_i32 {s(sM+1+t)}, {s(sM+8+t)}, 1344")
    T = T_
    A(f"v_lshlrev_b32 {v(vL16)}, 4, {v(vLANE)}")
    A(f"v_bfe_u32 {v(T+2)}, {v(vLANE)}, 2, 2")
    A(f"v_bfe_u32 {v(T+3)}, {v(vLANE)}, 4, 1")
    A(f"v_and_b32 {v(T+4)}, 3, {v(vLANE)}")
    A(f"v_bfe_u32 {v(vT)}, {v(vLANE)}, 1, 3")
    A(f"v_xor_b32 {v(vT)}, {v(vT)}, {v(T+1)}")
    A(f"v_lshlrev_b32 {v(vT)}, 4, {v(vT)}")
    A(f"v_lshl_add_u32 {v(vT)}, {v(T)}, 7, {v(vT)}")
    A(f"s_add_u32 {s(sT0)}, {s(sW4K)}, 0x10000")
    A(f"v_add_u32 {v(vT)}, {s(sT0)}, {v(vT)}")
    A(f"v_lshl_add_u32 {v(vT+1)}, {v(T+1)}, 3, {v(T+2)}")
    A(f"v_lshlrev_b32 {v(vT+1)}, 6, {v(vT+1)}")
    A(f"v_lshl_add_u32 {v(vT+2)}, {v(T+3)}, 2, {v(T+4)}")
    A(f"v_cmp_lt_u32 vcc, 5, {v(vT+2)}")
    A(f"v_xor_b32 {v(vT+3)}, 1, {v(vT+2)}")
    A(f"s_mov_b32 {s(sONES)}, 0x3f803f80")
    A(f"v_cndmask_b32 {v(vT+2)}, {v(vT+2)}, {v(vT+3)}, vcc")
    A(f"v_lshl_add_u32 {v(vT+1)}, {v(vT+2)}, 3, {v(vT+1)}")
    A(f"v_add_u32 {v(vT+2)}, {32*K}, {v(vT+1)}")
    A(f"v_add_u32 {v(vT+1)}, {WKL}, {v(vT+1)}")
    for i in range(4):
        A(f"s_add_u32 {s(sT0)}, {s(sW)}, {i}")
        A(f"s_and_b32 {s(sT0)}, {s(sT0)}, 3")
        A(f"s_lshl_b32 {s(sT1)}, {s(sT0)}, 5")
        A(f"v_xor_b32 {v(vXR+i)}, {s(sT1)}, {v(vT)}")
        A(f"v_lshl_add_u32 {v(vWR+i)}, {s(sT0)}, 10, {v(vT+1)}")
        A(f"v_lshl_add_u32 {v(vVR+i)}, {s(sT0)}, 12, {v(vT+2)}")
    A("s_mov_b32 vcc_lo, 0xf0f00f0f")
    A("s_mov_b32 vcc_hi, 0xf0f00f0f")
    A(f"v_mov_b32 {v(vT)}, {s(sONES)}")
    A(f"v_cndmask_b32 {v(vT)}, 0, {v(vT)}, vcc")
    for k in range(4):
        A(f"v_accvgpr_write_b32 {r(SEL+k)}, {v(vT)}")
        A(f"v_accvgpr_write_b32 {r(vPOI+k)}, -1")
    srd(SWS, WS_BYTES)
    A(f"v_lshlrev_b32 {v(vL8)}, 3, {v(vLANE)}")
    A(f"s_lshl2_add_u32 {s(sG1)}, {s(sHEAD)}, {s(sW)}")
    A(f"s_lshl_b32 {s(sG1)}, {s(sG1)}, 13")
    A(f"s_lshl_b32 {s(sT0)}, {s(sRB)}, 9")
    A(f"s_add_u32 {s(sKVPW)}, {s(sG1)}, {s(sT0)}")
    A(f"s_lshl_b32 {s(sB1)}, {s(sB1)}, 7")
    A(f"s_add_u32 {s(sB1)}, {s(sB1)}, {SL1}")
    A(f"v_lshlrev_b32 {v(vSO)}, 4, {v(T+4)}")
    A(f"v_lshl_add_u32 {v(vSO)}, {v(T+1)}, 6, {v(vSO)}")
    if OPT["warm"]:
        A(f"s_cmp_eq_u32 {s(sW)}, 1")
        A(f"s_cselect_b64 {s(sWP,2)}, {s(SWU,2)}, {s(SWG,2)}")
        A(f"s_cmp_eq_u32 {s(sW)}, 2")
        A(f"s_cselect_b64 {s(sWP,2)}, {s(SWD,2)}, {s(sWP,2)}")
        A(f"s_cmp_eq_u32 {s(sW)}, 3")
        A(f"s_cselect_b64 {s(sWP,2)}, {s(SWO,2)}, {s(sWP,2)}")
        A(f"s_cselect_b32 {s(sT0)}, 63, -1")
        A(f"s_and_b32 {s(sT0)}, {s(sT0)}, s2")
        A(f"s_mul_i32 {s(sT0)}, {s(sT0)}, 49")
        A(f"s_add_u32 {s(sT0)}, {s(sT0)}, 21")
        A(f"v_min_u32 {v(vWM)}, 6, {v(vLANE)}")
        A(f"v_add_lshl_u32 {v(vWM)}, {v(vWM)}, {s(sT0)}, 7")


def setup2():
    T = T_
    A(f"s_lshl4_add_u32 {s(sT0)}, {s(sHEAD)}, {s(sRB)}")
    A(f"s_lshl_b32 {s(sT0)}, {s(sT0)}, 7")
    A(f"s_add_u32 {s(sF1W)}, {s(sT0)}, {FL1}")
    A(f"s_lshl2_add_u32 {s(sT0)}, {s(sHEAD)}, {s(sW)}")
    A(f"s_lshl_b32 {s(sT0)}, {s(sT0)}, 9")
    A(f"s_add_u32 {s(sFL)}, {s(sT0)}, {FL1}")
    A(f"v_lshlrev_b32 {v(vFA)}, 7, {v(T+4)}")
    A(f"s_lshl2_add_u32 {s(sT0)}, {s(sRB)}, {s(sW)}")
    A(f"s_lshl_b32 {s(sT0)}, {s(sT0)}, 11")
    A(f"s_add_u32 {s(sSLO)}, {s(sT0)}, {SL1}")
    A(f"v_lshlrev_b32 {v(vSO)}, 6, {v(T)}")
    A(f"v_lshlrev_b32 {v(vCSR)}, 4, {v(T)}")
    A(f"v_add_u32 {v(vCSR)}, {MISC + 1024}, {v(vCSR)}")
    A(f"v_lshl_add_u32 {v(vCSA)}, {s(sW)}, 2, {v(vCSR)}")
    A(f"s_lshl_b32 {s(sT2)}, {s(sW)}, 8")
    A(f"s_add_u32 {s(sT2)}, {s(sT2)}, {MISC}")
    A(f"v_lshl_add_u32 {v(vBC)}, {v(T+1)}, 4, {s(sT2)}")
    A(f"v_lshl_add_u32 {v(vBW)}, {v(vLANE)}, 2, {s(sT2)}")
    A(f"s_mov_b32 {s(sUP)}, 0")
    A(f"s_mov_b32 {s(sUP+1)}, -1")
    A(f"s_and_b32 {s(sT2)}, {s(sHEAD)}, 7")
    A(f"s_mul_i32 {s(sT3)}, {s(sP)}, 7")
    A(f"s_cmp_eq_u32 {s(sT2)}, {s(sT3)}")
    A(f"s_cselect_b32 {s(sIDLE)}, 0x100, 0")
    A(f"s_cmp_gt_u32 {s(sT2)}, {s(sT3)}")
    A(f"s_cselect_b32 {s(sT3)}, 1, 0")
    A(f"s_sub_u32 {s(sCB)}, {s(sT2)}, {s(sT3)}")
    A(f"s_min_u32 {s(sCB)}, {s(sCB)}, 6")
    A(f"s_and_b32 {s(sT3)}, {s(sRB)}, 3")
    A(f"s_and_b32 {s(sT2)}, s2, {dict([(16, 7), (8, 3), (4, 1)])[OPT['cm']]}")
    A(f"s_lshl2_add_u32 {s(sT3)}, {s(sT2)}, {s(sT3)}")
    A(f"s_mul_i32 {s(sT3)}, {s(sT3)}, 7")
    A(f"s_add_u32 {s(sT3)}, {s(sT3)}, {s(sCB)}")
    A(f"s_lshr_b32 {s(sFB)}, {s(sT3)}, {dict([(16, 4), (8, 3), (4, 2)])[OPT['cm']]}")
    A(f"s_and_b32 {s(sT3)}, {s(sT3)}, {OPT['cm'] - 1}")
    A(f"s_and_b32 {s(sT2)}, {s(sRB)}, {16 - OPT['cm']}")
    A(f"s_or_b32 {s(sT3)}, {s(sT3)}, {s(sT2)}")
    A(f"s_or_b32 {s(sRC)}, {s(sRC)}, {s(sT3)}")
    A(f"s_and_b32 {s(sKH)}, {s(sW)}, 1")
    srd(SWG, 448 * 3584)
    srd(SWU, 448 * 3584 + 1024)
    A(f"s_sub_u32 {s(SWU)}, {s(SWU)}, 1024")
    A(f"s_subb_u32 {s(SWU+1)}, {s(SWU+1)}, 0")
    A(f"s_lshl2_add_u32 {s(sT0)}, {s(sFB)}, {s(sW)}")
    A(f"s_lshl_b32 {s(sT1)}, {s(sT0)}, 6")
    A(f"v_lshrrev_b32 {v(vT)}, 2, {v(vLANE)}")
    A(f"v_mul_u32_u24 {v(vT)}, 3584, {v(vT)}")
    A(f"v_and_b32 {v(vT+1)}, 0x30, {v(vL16)}")
    A(f"v_add3_u32 {v(vCW)}, {v(vT)}, {v(vT+1)}, {s(sT1)}")
    A(f"v_xor_b32 {v(vCW+1)}, 32, {v(vCW)}")
    A(f"s_mul_i32 {s(sGW)}, {s(sT3)}, 224")
    A(f"s_add_u32 {s(sGW)}, {s(sGW)}, {s(sT0)}")
    A(f"s_lshl_b32 {s(sGW)}, {s(sGW)}, 11")
    A(f"s_add_u32 {s(sGW)}, {s(sGW)}, {GG}")
    if OPT["rot"]:
        sh = dict([(16, 4), (8, 3), (4, 2)])[OPT["cm"]]
        A(f"s_and_b32 {s(sT0)}, {s(sT3)}, {OPT['cm'] - 1}")
        A(f"s_lshl_b32 {s(sT0)}, {s(sT0)}, {4 - sh}")
        A(f"s_lshr_b32 {s(sT1)}, {s(sT3)}, {sh}")
        A(f"s_add_u32 {s(sT0)}, {s(sT0)}, {s(sT1)}")
        if OPT["rot"] > 1:
            A(f"s_andn2_b32 {s(sT0)}, {s(sT0)}, {OPT['rot'] - 1}")
        A(f"s_mul_i32 {s(sT0)}, {s(sT0)}, 7")
        A(f"s_lshr_b32 {s(sROT)}, {s(sT0)}, {3 if OPT.get('two') else 2}")
    else:
        A(f"s_mov_b32 {s(sROT)}, 0")
    A(f"s_mul_i32 {s(sCWK)}, {s(sROT)}, {16*3584}")


def setup3():
    T = T_
    A(f"s_lshl_b32 {s(sT0)}, {s(sRB)}, 2")
    A(f"s_add_u32 {s(sOW)}, {s(sT0)}, {s(sW)}")
    A(f"s_lshl4_add_u32 {s(sOW)}, {s(sOW)}, {s(sHEAD)}")
    A(f"s_lshl_b32 {s(sOW)}, {s(sOW)}, 11")
    A(f"s_add_u32 {s(sOW)}, {s(sOW)}, {OO}")
    A(f"v_lshrrev_b32 {v(vT)}, 3, {v(vLANE)}")
    A(f"s_and_b32 {s(sT1)}, {s(sW)}, 2")
    A(f"s_add_u32 {s(sT1)}, {s(sT1)}, {s(sP)}")
    A(f"s_add_u32 {s(sT1)}, {s(sT1)}, {s(sT0)}")
    A(f"s_lshl1_add_u32 {s(sT3)}, {s(sCB)}, {s(sKH)}")
    A(f"s_mul_i32 {s(sSTW)}, {s(sT1)}, 14")
    A(f"s_add_u32 {s(sSTW)}, {s(sSTW)}, {s(sT3)}")
    A(f"v_mul_u32_u24 {v(vT)}, 896, {v(vT)}")
    A(f"s_lshl_b32 {s(sHW)}, {s(sSTW)}, 11")
    A(f"s_add_u32 {s(sHW)}, {s(sHW)}, {HH_}")
    A(f"s_lshl_b32 {s(sSTW)}, {s(sSTW)}, 8")
    A(f"s_add_u32 {s(sSTW)}, {s(sSTW)}, {ST}")
    A(f"s_lshl1_add_u32 {s(sT1)}, {s(sT1)}, {s(sKH)}")
    A(f"s_mul_i32 {s(sXB)}, {s(sT1)}, {16*896}")
    A(f"v_and_b32 {v(vT+1)}, 0x70, {v(vL16)}")
    A(f"s_lshl_b32 {s(sT1)}, {s(sT1)}, 3")
    A(f"s_sub_u32 {s(sT1)}, {s(sT1)}, {s(sKH)}")
    A(f"s_lshl_b32 {s(sT1)}, {s(sT1)}, 11")
    for i in range(8):
        A(f"s_add_u32 {s(sG2+i)}, {s(sT1)}, {OO + HORD[i]*2048}")
    A(f"s_lshl_b32 {s(sT2)}, {s(sKH)}, 14")
    A(f"s_add_u32 {s(sG2)}, {s(sG2)}, {s(sT2)}")
    A(f"v_lshlrev_b32 {v(vT+2)}, 6, {v(T+3)}")
    A(f"s_mov_b32 {s(sL2E)}, 0x3fb8aa3b")
    A(f"s_mov_b32 {s(sL2E+1)}, 0x3fb8aa3b")
    A(f"s_mov_b32 {s(sEPS)}, 0x358637bd")
    A(f"s_mov_b32 {s(sEPS+1)}, 0x358637bd")
    A(f"v_xor_b32 {v(vT+1)}, {v(vT+1)}, {v(vT+2)}")
    A(f"s_lshl_b32 {s(sT0)}, {s(sCB)}, 7")
    A(f"v_add3_u32 {v(vRO)}, {v(vT)}, {v(vT+1)}, {s(sT0)}")
    A(f"v_add_u32 {v(vRO+1)}, {7168-1024}, {v(vRO)}")
    srd(SWO, 448 * 896)
    srd(SWD, 1792 * 896)
    srd(SOUT, 2048 * 896)
    A(f"v_lshl_add_u32 {v(vT)}, {v(T+1)}, 2, {v(T+2)}")
    A(f"v_lshlrev_b32 {v(vT)}, 6, {v(vT)}")
    A(f"v_mul_u32_u24 {v(vT+1)}, {1024+32}, {v(T+3)}")
    A(f"v_lshlrev_b32 {v(vT+2)}, 3, {v(T+4)}")
    A(f"v_add3_u32 {v(vT)}, {v(vT)}, {v(vT+1)}, {v(vT+2)}")
    A(f"v_add_u32 {v(vCR)}, {s(sW4K)}, {v(vT)}")
    A(f"v_xor_b32 {v(vCR+1)}, 32, {v(vCR)}")
    A(f"s_mul_i32 {s(sW7K)}, {s(sW)}, {7*K}")
    A(f"s_mul_i32 {s(sDWK)}, {s(sW)}, {112*896}")
    A(f"s_mul_i32 {s(sWOL)}, {s(sW)}, {14*K}")
    A(f"s_add_u32 {s(sWOL)}, {s(sWOL)}, {WL0}")
    A(f"v_bfe_u32 {v(vXA)}, {v(vLANE)}, 1, 3")
    A(f"s_lshl_b32 {s(sT0)}, {s(sKH)}, 2")
    A(f"v_xor_b32 {v(vXA)}, {s(sT0)}, {v(vXA)}")
    A(f"v_lshlrev_b32 {v(vXA)}, 4, {v(vXA)}")
    A(f"v_lshl_add_u32 {v(vXA)}, {v(T)}, 7, {v(vXA)}")
    A(f"v_lshl_add_u32 {v(vXA)}, {v(T+1)}, 3, {v(vXA)}")
    A(f"s_lshr_b32 {s(sT0)}, {s(sW)}, 1")
    A(f"s_lshl_b32 {s(sT0)}, {s(sT0)}, 12")
    A(f"s_add_u32 {s(sT0)}, {s(sT0)}, {XIMG}")
    A(f"v_add_u32 {v(vXA)}, {s(sT0)}, {v(vXA)}")
    A(f"v_add_u32 {v(vKW)}, {96*K}, {v(vL16)}")
    A(f"v_add_u32 {v(vKW)}, {s(sW4K)}, {v(vKW)}")
    A(f"v_lshrrev_b32 {v(vT)}, 4, {v(vLANE)}")
    A(f"v_and_b32 {v(vT+1)}, 0xf0, {v(vL16)}")
    A(f"v_lshl_add_u32 {v(vT)}, {v(vT)}, 9, {v(vT+1)}")
    A(f"s_lshr_b32 {s(sT0)}, {s(sW)}, 1")
    A(f"s_lshl_b32 {s(sT1)}, {s(sT0)}, 8")
    A(f"s_add_u32 {s(sT1)}, {s(sT1)}, {96*K}")
    A(f"v_add_u32 {v(vKR)}, {s(sT1)}, {v(vT)}")
    A(f"s_lshl_b32 {s(sT1)}, {s(sKH)}, 8")
    A(f"s_add_u32 {s(sT1)}, {s(sT1)}, {96*K + 2048}")
    A(f"v_add_u32 {v(vKR2)}, {s(sT1)}, {v(vT)}")
    A(f"v_add_u32 {v(vXR2)}, {KVX}, {v(vL16)}")
    A(f"v_and_b32 {v(vT+1)}, 7, {v(vLANE)}")
    A(f"v_lshl_add_u32 {v(vT+1)}, {v(vT+1)}, 1, {v(T+1)}")
    A(f"v_lshl_add_u32 {v(vT+1)}, {s(sKH)}, 4, {v(vT+1)}")
    A(f"v_max_u32 {v(vT)}, 24, {v(vT+1)}")
    A(f"v_lshlrev_b32 {v(vT)}, 2, {v(vT)}")
    A(f"s_mov_b32 {s(sT1)}, 0x30415533")
    A(f"v_bfe_u32 {v(vT)}, {s(sT1)}, {v(vT)}, 4")
    A(f"v_add_u32 {v(vT)}, {v(vT)}, {v(vT+1)}")
    A(f"v_bfe_u32 {v(vT+1)}, {v(vLANE)}, 3, 1")
    A(f"v_lshl_add_u32 {v(vT)}, {v(vT+1)}, 5, {v(vT)}")
    A(f"v_lshlrev_b32 {v(vT)}, 4, {v(vT)}")
    A(f"v_lshl_add_u32 {v(vT)}, {v(T+3)}, 3, {v(vT)}")
    A(f"s_lshl_b32 {s(sT0)}, {s(sT0)}, 10")
    A(f"s_add_u32 {s(sT0)}, {s(sT0)}, {KVX - 48}")
    A(f"v_add_u32 {v(vXW)}, {s(sT0)}, {v(vT)}")
    A(f"s_bitcmp1_b32 {s(sRC)}, 8")
    A(f"s_cselect_b32 {s(sHW)}, {WS_BYTES}, {s(sHW)}")
    A(f"s_cselect_b32 {s(sSTW)}, {WS_BYTES}, {s(sSTW)}")
    A(f"s_cmp_lt_u32 {s(sW)}, 2")
    A(f"s_cselect_b32 {s(sHF)}, {s(sHW)}, {WS_BYTES}")


def setup4():
    T = T_
    A(f"s_mov_b32 {s(sMK)}, 0x3f80")
    A(f"s_mov_b32 {s(sMK+1)}, 0x3f800000")
    A(f"s_lshl2_add_u32 {s(sT0)}, {s(sRB)}, {s(sW)}")
    A(f"s_mul_i32 {s(sT0)}, {s(sT0)}, {32*896}")
    A(f"s_lshl_b32 {s(sT1)}, {s(sCB)}, 7")
    A(f"s_add_u32 {s(sXB)}, {s(sXB)}, {s(sT1)}")
    A(f"v_subrev_u32 {v(160)}, {s(sT0)}, {v(vXO)}")
    A(f"v_subrev_u32 {v(161)}, {s(sT0)}, {v(vXO+1)}")
    A(f"v_lshrrev_b32 {v(4)}, 1, {v(T+2)}")
    A(f"v_xor_b32 {v(4)}, {s(sKH)}, {v(4)}")
    A(f"v_lshlrev_b32 {v(4)}, 6, {v(4)}")
    A(f"v_lshl_add_u32 {v(4)}, {v(T+2)}, 7, {v(4)}")
    A(f"v_lshl_add_u32 {v(4)}, {v(T+3)}, 5, {v(4)}")
    A(f"v_lshl_add_u32 {v(4)}, {v(T+4)}, 3, {v(4)}")
    A(f"s_mul_i32 {s(sT0)}, {s(sKH)}, {15*28*128}")
    A(f"s_add_u32 {s(sT0)}, {s(sT0)}, {WL0}")
    A(f"v_add_u32 {v(4)}, {s(sT0)}, {v(4)}")
    A(f"v_lshl_add_u32 {v(2)}, {v(T+1)}, 9, {v(4)}")
    A(f"v_mul_u32_u24 {v(3)}, {256+64}, {v(T+1)}")
    A(f"v_xor_b32 {v(4)}, {v(3)}, {v(4)}")
    A(f"v_xor_b32 {v(5)}, 64, {v(4)}")
    A(f"v_xor_b32 {v(3)}, 64, {v(2)}")
    if OPT.get("rw"):
        A(f"s_and_b32 {s(sT0)}, {s(sRB)}, 3")
        A(f"s_lshl_b32 {s(sT0)}, {s(sT0)}, 1")
    else:
        A(f"s_and_b32 {s(sT0)}, s2, 7")
        A(f"s_min_u32 {s(sT0)}, {s(sT0)}, 6")
    A(f"s_lshl_b32 {s(sM+8)}, {s(sT0)}, 7")
    for t in range(1, 7):
        A(f"s_add_u32 {s(sM+8+t)}, {s(sM+7+t)}, 128")
        A(f"s_cmp_eq_u32 {s(sM+8+t)}, 896")
        A(f"s_cselect_b32 {s(sM+8+t)}, 0, {s(sM+8+t)}")


def flag_set(d, l8):
    lab = A.label("L_cnt")
    A(f"s_cmp_lg_u32 {s(sW)}, 3")
    A(f"s_cbranch_scc1 {lab}")
    A(f"v_mov_b32 {v(d)}, {s(sTAG)}")
    A(f"v_mov_b32 {v(d+1)}, {s(sTAG)}")
    A("s_mov_b64 exec, 0xffff")
    A(f"buffer_store_dwordx2 {v(d,2)}, {v(l8)}, {s(SWS,4)}, {s(sF1W)} offen sc1")
    A("s_mov_b64 exec, -1")
    A(f"{lab}:")


st4 = lambda so, imm, tag: ("vm", f"buffer_store_dwordx4 {r(vPOI,4)}, {v(vL16)}, {s(SWS,4)}, {so} offen{off(imm)} sc1", tag)


def u_cw(ks, pace=16):
    sl = ks % 8
    pre = [WL(f"cr{ks-8}")] if ks >= 8 else []
    adv = [S(f"s_add_u32 {s(sCWK)}, {s(sCWK)}, {16*3584}"), S(f"s_cmp_eq_u32 {s(sCWK)}, {448*3584}"), S(f"s_cselect_b32 {s(sCWK)}, 0, {s(sCWK)}")] if ks else [S("s_nop 0")]
    if OPT.get("two") and ks:
        lo = 0 if ks < 14 else 224*3584
        adv = [S(f"s_add_u32 {s(sCWK)}, {s(sCWK)}, {16*3584 + (224*3584 if ks == 14 else 0)}"), S(f"s_cmp_eq_u32 {s(sCWK)}, {lo + 224*3584}"),
               S(f"s_cselect_b32 {s(sCWK)}, {lo}, {s(sCWK)}")]
    if not OPT["rot"]:
        adv = [S(f"s_mov_b32 {s(sCWK)}, {ks*16*3584}")]
    return unit(pre + [S(f"s_add_u32 m0, {s(sW4K)}, {(sl >> 1)*16*K + (sl & 1)*2048}")] + adv +
                [NT(DMA(vCW, SWG, s(sCWK), 0, f"cw{ks}"), ks < OPT.get("cnt", 0)), NT(DMA(vCW+1, SWU, s(sCWK), 1024, f"cw{ks}"), ks < OPT.get("cnt", 0))], pace)


def cw_read(a_, b_):
    o = []
    for ks in range(a_, b_):
        sl = ks % 8
        o += [WV(f"cw{ks}")] + [TR(CW + (ks*2+t)*4 + rd*2, vCR + t, (sl >> 1)*16*K + (sl & 1)*2048 + rd*512, f"cr{ks}") for t in range(2) for rd in range(2)]
    return o


LAG = 6
CWN = [0]


def pump(n, pace=16):
    us = []
    for ks in range(CWN[0], min(28, CWN[0] + n)):
        u = u_cw(ks, pace)
        u["ops"] = u["ops"] + (cw_read(ks - LAG, ks - LAG + 1) if ks >= LAG else [])
        us.append(u)
    CWN[0] += len(us)
    return us


def pump1():
    assert CWN[0] < 4
    u = pump(1)[0]
    run(u["ops"], bg=False)
    CK.bgn = max(CK.bgn, CK.t) + u["ta"]


PUMP1 = FN(pump1)


def cw_cs(a_, b_):
    o = []
    for ks in range(a_, b_):
        o += [WL(f"cr{ks}")] + [M16(CSA + 4*t, SEL, CW + (ks*2+t)*4, ks == 0) for t in range(2)]
    return o


def wgemm(part, acc, swap, cso, bars, first, extra={}):
    nm = "kvq"[part]
    LG = OPT.get("lg", 4)

    def reads(n):
        t, i = divmod(n, 4)
        oo = [WV(bars[n]), BAR] if n in bars else []
        return oo + [TR(RW[(first + n) % 8] + rd*2, vVR + i, (2 - part)*32*K + (t >> 2)*16*K + (t & 3)*1024 + rd*256, f"{nm}r{n}") for rd in range(2)]
    main = []
    for n in range(28):
        w_ = RW[(first + n) % 8]
        nxt = reads(n + LG) if n + LG < 28 else []
        main += [o_ for o_ in nxt if o_[0] != "lds"]
        if n % 2 == 0:
            main.append(WL(f"{nm}r{n+1}"))
        if n % 4 == 0:
            main.append(M16(ACS + 4*(part % 2), SEL, w_, n == 0))
        main.append(M32(acc, w_, XF + n*4, n == 0) if swap else M32(acc, XF + n*4, w_, n == 0))
        main += [o_ for o_ in nxt if o_[0] == "lds"]
        if n == 26:
            main.append(("lds", f"ds_write_b32 {v(vCSA)}, {r(ACS + 4*(part % 2))}{off(cso)}", "csw"))
        main += extra.get(n, [])
    head = []
    for n in range(LG):
        head += reads(n)
    return head, main


G1G = [dict(loads=[f"buffer_load_dwordx4 {v(224+4*g,4)}, {v(vL16)}, {s(SWS,4)}, {s(sG1) if g < 4 else s(sM+1)} offen{off((g % 4)*1024)} sc1"],
            regs=list(range(224+4*g, 224+4*g+4))) for g in range(8)]
G1L = gather_loads("ga", G1G)


def phaseA():
    UP, LK = OPT.get("up", 2), OPT.get("lk", 4)
    for j in range(2):
        E(("vm", f"buffer_load_dwordx4 {v(SLC+4*j,4)}, {v(vT)}, {s(SX,4)}, {s(sT0)} offen{off(448*j)}", "sl"))
    A(f"s_mov_b32 {s(sT0)}, {EPO}")
    A(f"s_load_dword {s(sTAG)}, {s(SWS,2)}, {s(sT0)}")
    chunk = lambda t: [u_w(0, t, 16)] + u_x(t)
    BG.extend(chunk(0))
    bg_force()
    o1 = cap(setup1)
    run(o1[:18], bg=False)
    for t in range(1, UP):
        BG.extend(chunk(t))
    spread(o1[18:])
    for t in range(UP, LK):
        BG.extend(chunk(t))
    S0 = SLC + 8
    o = [V(f"v_mov_b32 {v(S0)}, 0"), V(f"v_mov_b32 {v(S0+2)}, 0"), WV("sl"), ST_(1)]
    for k in range(8):
        o += [V(f"v_dot2c_f32_bf16 {v(S0)}, {s(sONES)}, {v(SLC+k)}"), V(f"v_dot2c_f32_bf16 {v(S0+2)}, {v(SLC+k)}, {v(SLC+k)}")]
    for pat in ("quad_perm:[1,0,3,2]", "quad_perm:[2,3,0,1]", "row_half_mirror", "row_mirror"):
        o += [V(f"v_add_f32_dpp {v(S0+k)}, {v(S0+k)}, {v(S0+k)} {pat} row_mask:0xf bank_mask:0xf") for k in (0, 2)]
    o += [V(f"v_mov_b32 {v(S0+1+k)}, {v(S0+k)}") for k in (0, 2)]
    o += [V(f"v_permlane16_swap_b32 {v(S0+k)}, {v(S0+1+k)}") for k in (0, 2)]
    o += [V(f"v_add_f32 {v(S0+k)}, {v(S0+k)}, {v(S0+1+k)}") for k in (0, 2)]
    o += [V(f"v_mul_f32 {v(S0)}, 0x3b124925, {v(S0)}"), V(f"v_mul_f32 {v(S0+2)}, 0x3b124925, {v(S0+2)}"),
          V(f"v_fma_f32 {v(S0+2)}, -{v(S0)}, {v(S0)}, {v(S0+2)}"), V(f"v_max_f32 {v(S0+2)}, 0, {v(S0+2)}"),
          V(f"v_add_f32 {v(S0+2)}, 0x3727c5ac, {v(S0+2)}"), V(f"v_rsq_f32 {v(S0+2)}, {v(S0+2)}"), WL("all"),
          S(f"s_mul_i32 {s(sTAG)}, {s(sTAG)}, 0x9e3779b1"), S(f"s_add_u32 {s(sTAG)}, {s(sTAG)}, 0x7f4a7c15"),
          V(f"v_xor_b32 {v(S0+1)}, {s(sTAG)}, {v(S0)}"), V(f"v_xor_b32 {v(S0+3)}, {s(sTAG)}, {v(S0+2)}"),
          FN(lambda: run([S("s_mov_b32 exec_lo, 15"), S("s_mov_b32 exec_hi, 15"),
                          ("vm", f"buffer_store_dwordx4 {v(S0,4)}, {v(vSO)}, {s(SWS,4)}, {s(sB1)} offen sc1", "zs"), S("s_mov_b64 exec, -1")], bg=False)),
          ("vm", f"buffer_store_dwordx2 {r(vPOI,2)}, {v(vL8)}, {s(SWS,4)}, {s(sKVPW)} offen sc1", "zs")]
    run(o[:4], bg=False)
    spread(o[4:] + cap(setup2))
    stamp(2)

    def kreads(n):
        t, i = divmod(n, 4)
        oo = []
        if i == 0:
            oo += [WV([f"c{t}", "zs"] if t == 5 else f"c{t}"), BAR]
            if t == 5:
                oo.append(FN(lambda: flag_set(vCS, vL8), 8))
        if t == 3:
            oo.append(V(f"v_subrev_u32 {v(vXR+i)}, 0x10000, {v(vXR+i)}"))
        oo.append(RD128(XF + n*4, vXR + i, (t if t < 3 else t-3)*16*K, f"k{n}"))
        oo += [TR(RW[n % 8] + rd*2, vWR + i, t*4096 + rd*256, f"k{n}") for rd in range(2)]
        return oo
    SV = SLC
    sld = f"buffer_load_dwordx4 {v(SV,4)}, {v(vSO)}, {s(SWS,4)}, {s(sSLO)} offen sc1"
    body = {t: (chunk(t + LK) if t + LK < 7 else []) for t in range(7)}
    vq = [u_w(1, t) for t in range(7)]
    free = [t for t in range(7) if not body[t]]
    plan = [int(c_) for c_ in str(OPT.get('plan', 'p1121'))[1:]]
    assert len(plan) == len(free)
    for t, c_ in zip(free, plan):
        for _ in range(c_):
            body[t].append(vq.pop(0))
    body[OPT.get("sb", 3)].append(unit([("vm", sld, "sv")], 4))
    if OPT["warm"]:
        for t in range(7):
            body[t].append(unit([("vm", f"global_load_dword a255, {v(vWM)}, {s(sWP,2)} offset:{896*(t-3)}", "warm")], 7))
    LA = OPT.get('la', 3)
    run(sum([kreads(n) for n in range(LA)], []), bg=False)
    bodies = [[] for _ in range(7)]
    s3 = cap(setup3)
    per = -(-len(s3) // OPT.get('s3n', 16))
    s4 = cap(setup4)
    per4 = -(-len(s4) // 8)
    assert LK >= 3 and not OPT["warm"]
    for n in range(28):
        t, i = divmod(n, 4)
        nxt = kreads(n + LA) if n + LA < 28 else []
        main = bodies[t]
        main += [o_ for o_ in nxt if o_[0] != "lds"]
        main.append(WL(f"k{n}"))
        if i == 0:
            main.append(M16(ACS, SEL, RW[n % 8], n == 0))
        main.append(M32(ACK, XF + n*4, RW[n % 8], n == 0))
        main += [o_ for o_ in nxt if o_[0] == "lds"]
        main += s3[n*per:(n+1)*per]
        if n >= 16:
            main += s4[(n-16)*per4:(n-15)*per4]
        if n == 26:
            main.append(("lds", f"ds_write_b32 {v(vCSA)}, {r(ACS)}", "csw"))
    lab, back = A.label("L_sv"), A.label("L_svb")
    schk = [f"v_bitop3_b32 {v(SV+1)}, {s(sTAG)}, {v(SV)}, {v(SV+1)} bitop3:0x96", f"v_bitop3_b32 {v(SV+3)}, {s(sTAG)}, {v(SV+2)}, {v(SV+3)} bitop3:0x96", f"v_or_b32 {v(SV+1)}, {v(SV+1)}, {v(SV+3)}",
            f"v_cmp_ne_u32 vcc, 0, {v(SV+1)}"]
    OOL.append([f"{lab}:"] + dbg_mark("sv") + [f"s_mov_b32 {s(sSPIN)}, 0", f"{lab}_t:", f"s_sleep {OPT['slp']}", sld, "s_waitcnt vmcnt(0)"] + schk +
               [f"s_cbranch_vccz {back}"] + spin_tail(f"{lab}_t", back))
    stt = [WV("sv")] + [V(c_) for c_ in schk] + [FN(lambda: (A(f"s_cbranch_vccnz {lab}"), A(f"{back}:")), 4),
           V(f"v_mov_b32 {v(vMEAN)}, {v(SV)}"), V(f"v_mov_b32 {v(vMEAN+1)}, {v(SV+2)}"),
           V(f"v_cndmask_b32 {v(SV)}, {v(SV)}, {v(SV+2)}, {s(sUP,2)}"), ("lds", f"ds_write_b32 {v(vBW)}, {v(SV)}", "st")]
    stt += [RD128(BM + 4*q, vBC, 32*q, "bm") for q in range(4)] + [RD128(BR + 4*q, vBC, 128 + 32*q, "br") for q in range(4)]
    for t in range(6):
        BG.extend(body[t])
        fst("K")
        spread(bodies[t])
    BG.extend(body[6])
    fst("K")
    bg_now()
    weave(bodies[6], [dict(ops=stt, g0=0, g1=3)])
    bg_force()
    stamp(3)
    BG.extend(vq)
    ccl, ccops = flag_check("cc", vCC, vFA, s(sFL))
    hv, mv = wgemm(1, ACV, False, 512, {1: {0: "v1", 8: "v3", 16: "v5", 24: "v6"}, 2: {0: "v2", 12: "v4", 20: "v6"}, 3: {0: "v2", 12: "v5", 24: "v6"}, 4: {0: "v1", 8: "v3", 16: "v4", 20: "v5", 24: "v6"}, 5: {0: "v1", 8: "v4", 20: "v6"}}[OPT.get("vb", 5)], 28,
                   extra={**{int(c_, 36): [PUMP1] for c_ in OPT["ev"][1:]}, 25: [ccl],
                          27: [WL("csw"), BAR, RD128(168, vCSR, 512, "csr2")]})
    pre = [S("s_mov_b32 vcc_lo, 0x30000000"), S("s_mov_b32 vcc_hi, 0x30000000"), V(f"v_mov_b32 {v(vT+1)}, {s(sONES)}")]
    if OPT.get("wv", 1):
        PT = PV
        ph = [WL("csr")] + cs_sum(vCS) + [V(f"v_xor_b32 {v(vCS)}, 0x80000000, {v(vCS)}"), V(f"v_mov_b32 {v(vT)}, {fh(-1e-6*1.4426950408889634)}")]
        for b in range(0, 16, 4):
            R4 = range(b, b + 4)
            tt = lambda i: PT + (i % 8)
            ph += [V(f"v_fmac_f32 {v(ACK+i)}, {v(BM+i)}, {v(vCS)}") for i in R4]
            ph += [V(f"v_fma_f32 {v(ACK+i)}, {v(ACK+i)}, {v(BR+i)}, {s(sEPS)}") for i in R4]
            ph += [V(f"v_fma_f32 {v(tt(i))}, {v(ACK+i)}, {s(sL2E)}, {v(vT)}") for i in R4]
            for i in R4:
                ph += [V(f"v_exp_f32 {v(tt(i))}, {v(tt(i))} clamp"), V(f"v_max_f32 {v(ACK+i)}, {s(sEPS)}, {v(ACK+i)}")]
            ph += [V(f"v_add_f32 {v(ACK+i)}, {v(ACK+i)}, {v(tt(i))}") for i in R4]
            ph += [V(f"v_cvt_pk_bf16_f32 {v(PK+i//2)}, {v(ACK+i)}, {v(ACK+i+1)}") for i in (b, b + 2)]
        ph += [WR128(vKW, PK + 4*j, j*1024, "pw") for j in range(2)]
        run([WL("csw")] + hv[:2] + [RD128(168, vCSR, 0, "csr")] + hv[2:] + [("bg", 1)] + pre, bg=False)
        stamp(4)
        BG.extend([u_w(2, t) for t in range(7)])
        weave(mv, [dict(ops=ph, g0=0, g1=OPT.get("pe", 24), greedy=True)], report=REP("V"))
    else:
        ph = phi_ops(ACK, lambda i: (v(vCS, 2), 0), lambda i: (v(BM+2*i, 2), None), lambda i: (v(BR+2*i, 2), None), PK, PK)
        o = [WL("csw"), BAR, RD128(168, vCSR, 0, "csr"), ("bg", 1), WL("csr")] + cs_sum(vCS) + ph[:36] + [("bg", 1)] + ph[36:70] + [("bg", 1)] + hv + ph[70:]
        run(o, bg=False)
        stamp(4)
        BG.extend([u_w(2, t) for t in range(7)])
        bg_now(OPT.get("dq", 100))
        weave(mv, [dict(ops=pre + [WR128(vKW, PK + 4*j, j*1024, "pw") for j in range(2)], g0=0, g1=24)], report=REP("V"))
    stamp(5)
    o = [RD128(ACK + 4*w, vKR, w*4096, "pr") for w in range(4)] + [("bg", 1), WL("csr2")] + cs_sum(vCS)
    pv = phi_ops(ACV, lambda i: (v(vCS, 2), 0), lambda i: (v(BM+2*i, 2), None), lambda i: (v(BR+2*i, 2), None), PV, None)
    for j in range(2):
        o += pv[4*j:4*j+4] + pv[8+4*j:12+4*j] + pv[16+4*j:20+4*j]
        o += [V(f"v_cndmask_b32 {v(PV+i)}, {v(PV+i)}, {v(vT+1)}, vcc") for i in range(4*j, 4*j+4)]
        o += [WR128(vKW, PV + 4*j, 2048 + j*1024, "kw")]
    o += [WL("kw"), BAR]
    o += [RD128(ACV + 4*w, vKR2, w*4096, f"kr{w}") for w in range(4)] + [("bg", 1)]
    for w in range(4):
        o += [WL(f"kr{w}"), M16(PK, ACK + 4*w, ACV + 4*w, w == 0)]
    o += [V(f"v_cvt_pk_bf16_f32 {v(PK)}, {v(PK)}, {v(PK+1)}"), V(f"v_cvt_pk_bf16_f32 {v(PK+1)}, {v(PK+2)}, {v(PK+3)}")]
    o += [("vm", f"buffer_store_dwordx2 {v(PK,2)}, {v(vL8)}, {s(SWS,4)}, {s(sKVPW)} offen sc1", "kvst")]
    run(o, bg=False)
    stamp(6)
    bg_force()
    PH = [st4(s(sHF), 0, "ph"), st4(s(sHF), 1024, "ph"), S("s_mov_b64 exec, 0xffff"), st4(s(sSTW), 0, "ph"), S("s_mov_b64 exec, -1")]
    hq, mq = wgemm(2, ACK, True, 1024, {0: "q3", 16: "q5", 24: "q6"}, 0,
                   extra={**{int(c_, 36): [PUMP1] for c_ in OPT["eq"][1:]}, **{int(c_, 36): [("bg", 1)] for c_ in OPT["ew"][1:]},
                          **{int(c_, 36): G1L[2*j:2*j+2] for j, c_ in enumerate(OPT["eg"][1:])},
                          **{int(c_, 36): x for c_, x in zip(OPT["ep"][1:], (PH[:1], PH[1:2], PH[2:]))},
                          27: [WL("csw"), BAR, RD128(168, vCSR, 1024, "csr3")]})
    run(ccops + hq + [V(f"v_mov_b32 {v(7+j)}, {v(160+j)}") for j in range(2)] + [V(f"v_xor_b32 {v(8+q)}, {16*q}, {v(vXA)}") for q in range(1, 4)], bg=False)
    stamp(7)
    BG.extend([u_wo(g_) for g_ in range(7)] + [u_xres()])
    for _ in range(OPT.get("ck", 0)):
        pump1()
    E(("bg", OPT.get("w1", 0)))
    bg_now(OPT.get("dwo", 0))
    weave(mq, [dict(ops=[S(f"s_add_u32 {s(sM+1)}, {s(sG1)}, 4096"), S(f"s_mul_i32 {s(sT2)}, {s(sKH)}, {8*28*128}")], g0=6, g1=12)], report=REP("Q"), autobg=False)
    stamp(8)


def u_wo(g):
    return unit([S(f"s_lshl4_add_u32 m0, {s(sM+8+g)}, {s(sWOL)}"), S(f"s_mul_i32 {s(sB0)}, {s(sM+8+g)}, 112"), S(f"s_add_u32 {s(sB0)}, {s(sB0)}, {s(sDWK)}"),
                 DMA(vRO, SWO, s(sB0), 0, "wo"), DMA(vRO+1, SWO, s(sB0), 1024, "wo")], OPT.get("pw", 19))


def u_xres():
    return unit([S(f"s_lshl_b32 {s(sB0)}, {s(sW)}, 11"), S(f"s_add_u32 m0, {s(sB0)}, {XIMG}"), S("s_nop 0"),
                 DMA(7, SX, s(sXB), 0, "wo"), DMA(8, SX, s(sXB), 1024, "wo")], 16)


WOF = 32
G2 = 160
ACB = 224


def phaseQ():
    ACQ, QB, QT, PQ, KS, G1 = 176, 192, 208, 160, 168, 224
    G, lg_ = G1G, G1L[2*len(OPT['eg'][1:]):]
    rest = list(BG)
    BG.clear()
    print("wo units left after q:", len(rest)) if OPT["rep"] else None
    BG.extend([unit(lg_[2*g:2*g+2], 16) for g in range(len(lg_)//2)] + rest)
    bg_now(OPT.get("dg1", 60))
    o = [("bg", OPT.get("g0", 0)), WL("csr3")] + cs_sum(168) + [("lds", f"ds_write_b32 {v(vBW)}, {v(168)}", "st")]
    o += [RD128(QB + 4*q, vBC, 32*q, "bm") for q in range(4)] + [("bg", OPT.get("g0", 0)), FN(lambda: None, 60), WL("bm")]
    o += phi_ops(ACQ, lambda i: (v(QB+2*i, 2), None), lambda i: (v(vMEAN, 2), 0), lambda i: (v(vMEAN, 2), 1), PQ, QT)
    o += [V(f"v_cndmask_b32 {v(PQ+i)}, {v(PQ+i)}, 0, {s(sUP,2)}") for i in (6, 7)]
    run(o)
    BG.extend(pump(OPT.get("n0", 1)))
    print("units before g1:", len(BG)) if OPT["rep"] else None
    bg_force(OPT.get("nf"))
    stamp(9)
    BG.extend(pump(OPT.get("n1", 4)))
    top, end = refresh("g1", G)
    o = top + [V(f"v_mov_b32 {v(KS+k)}, 0") for k in range(8)]
    for g in range(8):
        o.append(WV(f"ga{g}"))
        for k in range(4):
            o += [V(f"v_dot2c_f32_bf16 {v(KS+2*k)}, {s(sMK)}, {v(G1+4*g+k)}"), V(f"v_dot2c_f32_bf16 {v(KS+2*k+1)}, {s(sMK+1)}, {v(G1+4*g+k)}")]
    o += [V(f"v_permlane32_swap_b32 {v(KS+k)}, {v(KS+4+k)}") for k in range(4)]
    o += [V(f"v_pk_add_f32 {v(KS+k,2)}, {v(KS+k,2)}, {v(KS+4+k,2)}") for k in (0, 2)]
    o += [V(f"v_cmp_u_f32 vcc, {v(KS)}, {v(KS+2)}"),
          V(f"v_cvt_pk_bf16_f32 {v(KS)}, {v(KS)}, {v(KS+1)}"), V(f"v_cvt_pk_bf16_f32 {v(KS+1)}, {v(KS+2)}, {v(KS+3)}")] + end
    o += [ST_(10), ("lds", f"ds_write_b64 {v(vXW)}, {v(KS,2)}", "kf"), ("bg", 1), WV("ph"), WL("kf"), BAR,
          RD128(QT, vXR2, 0, "k0"), RD128(QT + 4, vXR2, 1024, "k1"), ("bg", 1),
          WL("k0"), M32(ACQ, QT, PQ, True), WL("k1"), M32(ACQ, QT + 4, PQ + 4), ("bg", 1),
          V(f"v_add_f32 {v(vT)}, {s(sEPS)}, {v(ACQ+14)}"), V(f"v_rcp_f32 {v(vT)}, {v(vT)}")]
    X3 = lambda d, a_, b_, c_: V(f"v_add3_u32 {d}, {a_}, {b_}, {c_}")
    for hf in range(2):
        R_ = range(4*hf, 4 + 3*hf)
        o += [V(f"v_pk_mul_f32 {v(ACQ+2*i,2)}, {v(ACQ+2*i,2)}, {v(vT,2)} op_sel_hi:[1,0]") for i in R_]
        o += [V(f"v_cvt_pk_bf16_f32 {v(PQ+i)}, {v(ACQ+2*i)}, {v(ACQ+2*i+1)}") for i in R_]
        if hf:
            o += [X3(v(PQ+7), v(PQ), v(PQ+1), s(sTAG)), X3(v(PQ+7), v(PQ+7), v(PQ+2), v(PQ+3)), X3(v(PQ+7), v(PQ+7), v(PQ+4), v(PQ+5)),
                  V(f"v_add_u32 {v(PQ+7)}, {v(PQ+7)}, {v(PQ+6)}")]
        o += [("vm", f"buffer_store_dwordx4 {v(PQ+4*hf,4)}, {v(vL16)}, {s(SWS,4)}, {s(sOW)} offen{off(1024*hf)} sc1", "ost")]
    run(o, bg=False)
    stamp(11)
    A(f"s_bitcmp1_b32 {s(sRC)}, 8")
    A("s_cbranch_scc1 L_helper")
    A(f"s_mul_i32 {s(sT0)}, {s(sP)}, 7")
    A(f"s_add_u32 {s(sT0)}, {s(sT0)}, {s(sCB)}")
    A(f"s_lshl4_add_u32 {s(sT0)}, {s(sRB)}, {s(sT0)}")
    A(f"s_lshl_b32 {s(sT0)}, {s(sT0)}, 7")
    A(f"s_add_u32 {s(sF1W)}, {s(sT0)}, {FL2}")
    A(f"v_lshrrev_b32 {v(6)}, 1, {v(vL16)}")
    flag_set(vT, 6)
    bg_force()


def helper():
    L = ["L_helper:"]
    a_ = L.append
    SH = SQKV
    a_(f"s_getpc_b64 {s(sL2E,2)}")
    a_("L_hpc:")
    a_(f"s_sub_u32 {s(sL2E)}, {s(sL2E)}, L_hpc-{NAME}_kernel")
    a_(f"s_subb_u32 {s(sL2E+1)}, {s(sL2E+1)}, 0")
    a_(f"v_lshlrev_b32 {v(160)}, 7, v0")
    ctouch = f"global_load_dword {v(161)}, {v(160)}, {s(sL2E,2)} sc1"
    if OPT.get("ct", 0) & 1:
        a_(ctouch)
    a_(f"s_lshl1_add_u32 {s(sT0)}, {s(sRB)}, {s(sP)}")
    a_(f"s_lshl2_add_u32 {s(sT0)}, {s(sT0)}, {s(sW)}")
    a_(f"s_cmp_ge_u32 {s(sT0)}, 112")
    a_("s_cbranch_scc1 L_help2")
    a_(f"s_lshr_b32 {s(sT1)}, {s(sT0)}, 1")
    a_(f"s_lshl_b32 {s(sT2)}, {s(sT1)}, 7")
    a_(f"s_sub_u32 {s(sT3)}, {s(sT2)}, {28*128 - 1024}")
    a_(f"s_cmp_ge_u32 {s(sT1)}, 28")
    a_(f"s_cselect_b64 {s(SH,2)}, {s(SWU,2)}, {s(SWG,2)}")
    a_(f"s_cselect_b32 {s(SH+2)}, {s(SWU+2)}, {s(SWG+2)}")
    a_(f"s_cselect_b32 {s(sT2)}, {s(sT3)}, {s(sT2)}")
    a_(f"s_mul_i32 {s(sT3)}, {s(sKH)}, {224*3584}")
    a_(f"s_add_u32 {s(sT2)}, {s(sT2)}, {s(sT3)}")
    a_(f"v_lshrrev_b32 {v(vT)}, 3, {v(vLANE)}")
    a_(f"v_and_b32 {v(vT+1)}, 7, {v(vLANE)}")
    a_(f"v_lshl_add_u32 {v(vT+2)}, {v(vT+1)}, 3, {v(vT)}")
    a_(f"v_lshlrev_b32 {v(vT+2)}, 3, {v(vT+2)}")
    a_(f"v_mul_u32_u24 {v(vT)}, 3584, {v(vT)}")
    a_(f"v_lshl_add_u32 {v(vT)}, {v(vT+1)}, 4, {v(vT)}")
    for i in range(28):
        if not OPT.get("xhc"):
            a_(f"buffer_load_dwordx4 {v(32+4*i,4)}, {v(vT)}, {s(SH,4)}, {s(sT2)} offen" + (" nt" if OPT.get("hnt") else ""))
        a_(f"s_add_u32 {s(sT2)}, {s(sT2)}, {8*3584}")
    AC = 144
    for k in range(8):
        a_(f"v_mov_b32 {v(AC+k)}, 0")
    for i in range(28):
        if i % 4 == 0:
            a_(f"s_waitcnt vmcnt({24-i})")
        for k in range(4):
            a_(f"v_dot2c_f32_bf16 {v(AC+2*k)}, {s(sMK)}, {v(32+4*i+k)}")
            a_(f"v_dot2c_f32_bf16 {v(AC+2*k+1)}, {s(sMK+1)}, {v(32+4*i+k)}")
    for j in range(4):
        a_(f"v_permlane32_swap_b32 {v(AC+j)}, {v(AC+4+j)}")
    for j in range(4):
        a_(f"v_add_f32 {v(AC+j)}, {v(AC+j)}, {v(AC+4+j)}")
    for j in range(2):
        a_(f"v_permlane16_swap_b32 {v(AC+j)}, {v(AC+2+j)}")
    for j in range(2):
        a_(f"v_add_f32 {v(AC+j)}, {v(AC+j)}, {v(AC+2+j)}")
    for j in range(2):
        a_(f"v_add_f32_dpp {v(AC+j)}, {v(AC+j)}, {v(AC+j)} row_ror:8 row_mask:0xf bank_mask:0xf")
    a_("s_mov_b32 vcc_lo, 0xff00ff00")
    a_("s_mov_b32 vcc_hi, 0xff00ff00")
    a_(f"v_cndmask_b32 {v(AC)}, {v(AC)}, {v(AC+1)}, vcc")
    a_(f"v_xor_b32 {v(AC+1)}, {s(sTAG)}, {v(AC)}")
    a_(f"s_mul_i32 {s(sT3)}, {s(sKH)}, 56")
    a_(f"s_add_u32 {s(sT1)}, {s(sT1)}, {s(sT3)}")
    a_(f"s_lshl_b32 {s(sT1)}, {s(sT1)}, 9")
    a_(f"s_add_u32 {s(sT1)}, {s(sT1)}, {CSW}")
    a_(f"buffer_store_dwordx2 {v(AC,2)}, {v(vT+2)}, {s(SWS,4)}, {s(sT1)} offen sc1")
    a_("L_help2:")
    if OPT.get("hw", 1):
        a_(f"s_mul_i32 {s(sT0)}, {s(sT0)}, {98*128}")
        a_(f"v_min_u32 {v(vT)}, 48, {v(vLANE)}")
        a_(f"v_lshlrev_b32 {v(vT)}, 8, {v(vT)}")
        a_(f"buffer_load_dword {v(32)}, {v(vT)}, {s(SWD,4)}, {s(sT0)} offen")
        a_(f"buffer_load_dword {v(33)}, {v(vT)}, {s(SWD,4)}, {s(sT0)} offen offset:128")
    a_(f"s_lshl3_add_u32 {s(sB0)}, {s(sRB)}, {s(sP)}")
    a_(f"s_lshl2_add_u32 {s(sB0)}, {s(sB0)}, {s(sW)}")
    a_(f"s_mul_i32 {s(sB0)}, {s(sB0)}, {14*K}")
    a_(f"s_add_u32 {s(sB0)}, {s(sB0)}, {GG + 224*K}")
    a_(f"s_lshl1_add_u32 {s(sB1)}, {s(sRB)}, {s(sP)}")
    a_(f"s_lshl_b32 {s(sB1)}, {s(sB1)}, 7")
    a_(f"s_add_u32 {s(sB1)}, {s(sB1)}, {PFL}")
    for k in range(4):
        a_(f"v_mov_b32 {v(152+k)}, {s(sTAG)}")
    a_(f"s_mov_b32 {s(sT2)}, 0")
    a_("L_help3:")
    if OPT.get("ct", 0) & 2:
        a_(ctouch)
    for i in range(14):
        if not OPT.get("xhp"):
            a_(f"buffer_store_dwordx4 {r(vPOI,4)}, {v(vL16)}, {s(SWS,4)}, {s(sB0)} offen sc1")
        a_(f"s_add_u32 {s(sB0)}, {s(sB0)}, {(112-13)*K if i == 13 else K}")
    a_("s_waitcnt vmcnt(0)")
    a_("s_barrier")
    a_(f"s_cmp_lg_u32 {s(sW)}, 0")
    a_("s_cbranch_scc1 L_help4")
    a_("s_mov_b64 exec, 0xff")
    a_(f"buffer_store_dwordx4 {v(152,4)}, {v(vL16)}, {s(SWS,4)}, {s(sB1)} offen sc1")
    a_("s_mov_b64 exec, -1")
    a_("L_help4:")
    a_(f"s_add_u32 {s(sB1)}, {s(sB1)}, 4096")
    a_(f"s_add_u32 {s(sT2)}, {s(sT2)}, 1")
    a_(f"s_cmp_lt_u32 {s(sT2)}, 2")
    a_("s_cbranch_scc1 L_help3")
    if OPT.get("ct", 0) & 4:
        a_(ctouch)
    a_("s_branch L_fin")
    OOL.insert(0, L)


def phaseB():
    def grp(i):
        b = G2 + i*8
        return dict(loads=[f"buffer_load_dwordx4 {v(b+4*st,4)}, {v(vL16)}, {s(SWS,4)}, {s(sG2+i)} offen{off(1024*st)} sc1" for st in range(2)],
                    regs=list(range(b, b+8)), xor=True, pre=[V(f"v_mov_b32 {v(b+7)}, 0")],
                    compute=[M32(ACB + 16*nt, WOF + ((i*2+st)*2+nt)*4, b + 4*st, i == 0 and st == 0 and nt == 1) for st in range(2) for nt in (1, 0)])
    GE = [grp(i) for i in range(NEARLY)]
    GL = [grp(i) for i in range(NEARLY, 8)]
    P2 = OPT.get("p2", 18)
    NA = OPT.get("na", 2)
    le = gather_loads("ge", GE)
    ll = gather_loads("gl", GL)
    BG.extend(pump(NA, P2))
    o = [V(f"v_add_u32 {v(vT+2)}, {s(sW4K)}, {v(vL16)}"), V(f"v_add_u32 {v(vT+2)}, {XB}, {v(vT+2)}"), V(f"v_xor_b32 {v(vT+3)}, 4096, {v(vT+2)}"),
         V(f"v_and_b32 {v(12)}, 3, {v(vLANE)}"), V(f"v_lshl_add_u32 {v(12)}, {s(sW)}, 2, {v(12)}"), V(f"v_min_u32 {v(12)}, 13, {v(12)}"),
         V(f"v_lshlrev_b32 {v(12)}, 7, {v(12)}"), S(f"s_lshl_b32 {s(sFL)}, {s(sRC)}, 11"), S(f"s_add_u32 {s(sFL)}, {s(sFL)}, {FL2}")]
    c2l, c2ops = flag_check("fo", vT + 1, 12, s(sFL))
    spread(o, 1)
    fst("W2")
    run([WV("wo"), BAR], bg=False)
    fst("W2")
    NG = OPT.get("ng", 4)
    o = [("lds", f"ds_read_b64 {v(ACB+16+2*q,2)}, {v(8+q if q else vXA)}", "xr") for q in range(4)]
    for i in range(8):
        for st in range(2):
            for nt in range(2):
                for rd in range(2):
                    o += [TR(WOF + ((i*2+st)*2+nt)*4 + rd*2, (4 if (st == 1 and rd == 1) else 2) + nt, (28*HORD[i] + 16*st + 8*rd)*128, "wr" if i < NEARLY else "wl"), FN(lambda: None, 4)]
        if i == 0:
            o += [V(f"v_subrev_u32 {v(2+j)}, {s(sT2)}, {v(2+j)}") for j in range(4)]
    nw = 8 + 16*OPT.get("nwr", 8)
    wlate = [x for x in o[nw:] if x[0] == "lds"]
    o = o[:nw] + [WL("xr")]
    for k in range(8):
        o += [V(f"v_lshlrev_b32 {v(ACB+2*k)}, 16, {v(ACB+16+k)}"), V(f"v_and_b32 {v(ACB+2*k+1)}, 0xffff0000, {v(ACB+16+k)}")]
    BG.extend([unit([x], 8) for x in le[:OPT.get("ne", 4)]])
    spread(o)
    fst("W2")
    BG.extend([unit([x], 8) for x in le[OPT.get("ne", 4):]] + pump(OPT.get("nb", 1)) + [unit([x], 8) for x in ll[:NG]])
    bg_force()
    stamp(12)
    BG.extend([unit([x], 8) for x in ll[NG:]] + pump(OPT.get("n2", 4)))
    GA = GE + GL
    tags = [f"ge{i}" for i in range(NEARLY)] + [f"gl{i}" for i in range(3)]
    later = lambda i: GA[i+1:NEARLY] if i < NEARLY else GA[i+1:]
    run([WL("wl")] + site_check(tags[0], GA[0], later(0)), bg=False)
    bg_now()
    main, streams = [], [dict(ops=[c2l], g0=24, g1=25)]
    for i, G in enumerate(GA):
        main += G["compute"]
        if i + 1 < 8:
            streams.append(dict(ops=site_check(tags[i+1], GA[i+1], later(i+1)), g0=4*i + 1, g1=4*i + 4))
    weave(main, streams, report=REP("g2"))
    bg_force()
    stamp(13)
    BG.extend(pump(OPT.get("nt", 2)))
    T0, HP, S0 = G2, G2 + 16, G2 + 24
    o = [("bg", 1)] + [WR128(vT + 2, ACB + 16 + 4*q, q*1024, "bw") for q in range(4)]
    o += [WL("bw"), BAR]
    o += [RD128(T0 + 4*q, vT + 3, q*1024, f"br{q >> 1}") for q in range(4)] + [("bg", 1)]
    o += [V(f"v_mov_b32 {v(S0+k)}, 0") for k in range(2)]
    for st in range(2):
        o += [WL(f"br{st}")]
        o += [V(f"v_pk_add_f32 {v(ACB+8*st+2*k,2)}, {v(ACB+8*st+2*k,2)}, {v(T0+8*st+2*k,2)}") for k in range(4)]
        o += [V(f"v_cvt_pk_bf16_f32 {v(HP+4*st+k)}, {v(ACB+8*st+2*k)}, {v(ACB+8*st+2*k+1)}") for k in range(4)]
        o += [("vm", f"buffer_store_dwordx4 {v(HP+4*st,4)}, {v(vL16)}, {s(SWS,4)}, {s(sHF if OPT.get('dh') else sHW)} offen{off(1024*st)} sc1", "hst")]
    o += [ST_(14)]
    run(o, bg=False)
    o = fuse_cmp(c2ops)
    for k in range(8):
        o += [V(f"v_dot2c_f32_bf16 {v(S0)}, {s(sONES)}, {v(HP+k)}"), V(f"v_dot2c_f32_bf16 {v(S0+1)}, {v(HP+k)}, {v(HP+k)}")]
    o += [V(f"v_mov_b32 {v(S0+2+k)}, {v(S0+k)}") for k in range(2)]
    o += [V(f"v_permlane32_swap_b32 {v(S0+k)}, {v(S0+2+k)}") for k in range(2)]
    o += [V(f"v_pk_add_f32 {v(S0,2)}, {v(S0,2)}, {v(S0+2,2)}")]
    if OPT.get("dh"):
        late = [S(f"s_cmp_lt_u32 {s(sW)}, 2\ns_cselect_b32 {s(sHW)}, {WS_BYTES}, {s(sHW)}")]
        late += [("vm", f"buffer_store_dwordx4 {v(HP+4*st,4)}, {v(vL16)}, {s(SWS,4)}, {s(sHW)} offen{off(1024*st)} sc1", "hst") for st in range(2)]
        o = o + late if OPT["dh"] == 2 else late + o
    return o, FN(lambda: run([WV("hst"), S("s_mov_b32 exec_hi, 0"),
                              ("vm", f"buffer_store_dwordx2 {v(S0,2)}, {v(6)}, {s(SWS,4)}, {s(sSTW)} offen sc1", "sst"), S("s_mov_b64 exec, -1")], bg=False))


AC0, AC1 = 32, 64
CS = 96
BRG = 128
SC = 152
ET = 160
RES = 168
SP = 176
vL8c = 6
vHR = 7
vDO = 2
vDX, vDY = 10, 16
vCL = SP + 60
vRS = 14
vTAG, vHF, vGO = 24, 25, 26
TLO = {0: HI, 1: HI + 32*K, 2: 32*K, 3: 0}
DWE = [256 + 224, 256 + 240] + [SP + 16*i for i in range(5)]
DW = DWE + [256 + 112 + 16*i for i in range(7)]
DSL = {0: 64, 1: 80, 2: 96, 3: 112, 4: 64, 5: 80, 6: 96, 7: 128, 8: 112, 9: 64, 10: 80, 11: 32, 12: 48, 13: 96}


sHT, sDT, sGT, sSO = sM + 1, sM + 8, sG2, sG2 + 7


def u_dw(m):
    return [unit([S(f"s_add_u32 m0, {s(sW4K)}, {DSL[m]*K}"), S(f"s_add_u32 {s(sB0)}, {s(sDWK)}, {m*32*896}"),
                  DMA(vDO, SWD, s(sB0), 0, f"dw{m}")], OPT.get("pd", 9))] + \
        [unit([DMA(vDO+i, SWD, s(sB0), 1024*i, f"dw{m}")], OPT.get("pd", 9)) for i in range(1, 4)]


def dw_read(m):
    ad, o_ = (vDX, (DSL[m]-32)*K) if DSL[m] < 96 else (vDY, (DSL[m]-96)*K)
    return [WV(f"dw{m}")] + [TR(DW[m] + nt*4 + rd*2, ad + nt, o_ + rd*1024, f"dr{m}") for nt in range(4) for rd in range(2)]


def dw_next(wait, ms):
    return [WL(wait), FN(lambda: [BG.extend(u_dw(m)) for m in ms])]


def need_waited(tag):
    assert tag in WAITED, tag


def hh_store(acc, t, rt):
    return ("vm", f"buffer_store_dwordx4 {v(acc+16*t,4)}, {v(vL16)}, {s(SWS,4)}, {s(sT3)} offen{off(1024*t)} sc1", f"gst{rt}")


def hf_set(stage, rt):
    return [WV(f"gst{rt}"), S(f"s_add_u32 {s(sT2)}, {s(sHF)}, {stage*131072}"),
            FN(lambda: (A("s_mov_b32 exec_hi, 0"), E(("vm", f"buffer_store_dword {v(vTAG)}, {v(vL8c)}, {s(SWS,4)}, {s(sT2)} offen sc1", "hf")), A("s_mov_b64 exec, -1")), 8)]


def epilogue_ops(acc, rt):
    c = SC + 4*(rt & 1)
    mean, k1, k2, vp = c, c + 1, c + 2, c + 3
    ops = [S(f"s_add_u32 {s(sT3)}, {s(sGW)}, {rt*112*K}")]
    for t in range(2):
        for half in range(2):
            idx = [4*half + i for i in range(4)]
            g = [acc + 16*t + i for i in idx]
            u = [acc + 16*t + 8 + i for i in idx]
            cg = [CS + 16*t + i for i in idx]
            cu = [CS + 16*t + 8 + i for i in idx]
            T = [ET + 4*half + i for i in range(4)]
            ops += [V(f"v_fmac_f32 {v(g[i])}, {v(mean)}, {v(cg[i])}") for i in range(4)]
            ops += [V(f"v_mul_f32 {v(T[i])}, {v(g[i])}, {v(g[i])}") for i in range(4)]
            ops += [V(f"v_fma_f32 {v(T[i])}, {v(T[i])}, {v(k2)}, {v(k1)}") for i in range(4)]
            ops += [V(f"v_mul_f32 {v(T[i])}, {v(T[i])}, {v(g[i])}") for i in range(4)]
            for i in range(4):
                ops += [V(f"v_exp_f32 {v(T[i])}, {v(T[i])}"), V(f"v_fmac_f32 {v(u[i])}, {v(mean)}, {v(cu[i])}")]
            ops += [V(f"v_fma_f32 {v(T[i])}, {v(T[i])}, {v(vp)}, {v(vp)}") for i in range(4)]
            for i in range(4):
                ops += [V(f"v_rcp_f32 {v(T[i])}, {v(T[i])}"), V(f"v_mul_f32 {v(u[i])}, {v(u[i])}, {v(g[i])}")]
            ops += [V(f"v_mul_f32 {v(u[i])}, {v(u[i])}, {v(T[i])}") for i in range(4)]
            ops += [V(f"v_cvt_pk_bf16_f32 {v(acc+16*t+2*half+i)}, {v(u[2*i])}, {v(u[2*i+1])}") for i in range(2)]
        ops += [hh_store(acc, t, rt)] + ([FN(lambda: need_waited(f'p{rt}'))] if rt >= 2 else [])
    return ops


def epilogue_pk(acc, rt):
    c = SC + 4*(rt & 1)
    c01, c23 = v(c, 2), v(c + 2, 2)
    ops = [S(f"s_add_u32 {s(sT3)}, {s(sGW)}, {rt*112*K}")]
    N = None
    for t in range(2):
        g = [v(acc + 16*t + 2*i, 2) for i in range(4)]
        u = [v(acc + 16*t + 8 + 2*i, 2) for i in range(4)]
        cg = [v(CS + 16*t + 2*i, 2) for i in range(4)]
        cu = [v(CS + 16*t + 8 + 2*i, 2) for i in range(4)]
        T = [v(ET + 2*i, 2) for i in range(4)]
        ops += [pkop("v_pk_fma_f32", g[i], [(c01, 0), (cg[i], N), (g[i], N)]) for i in range(4)]
        ops += [pkop("v_pk_mul_f32", T[i], [(g[i], N), (g[i], N)]) for i in range(4)]
        ops += [pkop("v_pk_fma_f32", T[i], [(T[i], N), (c23, 0), (c01, 1)]) for i in range(4)]
        ops += [pkop("v_pk_mul_f32", T[i], [(T[i], N), (g[i], N)]) for i in range(4)]
        ops += [V(f"v_exp_f32 {v(ET+i)}, {v(ET+i)}") for i in range(8)]
        ops += [pkop("v_pk_fma_f32", u[i], [(c01, 0), (cu[i], N), (u[i], N)]) for i in range(4)]
        ops += [pkop("v_pk_fma_f32", T[i], [(T[i], N), (c23, 1), (c23, 1)]) for i in range(4)]
        ops += [V(f"v_rcp_f32 {v(ET+i)}, {v(ET+i)}") for i in range(8)]
        ops += [pkop("v_pk_mul_f32", u[i], [(u[i], N), (g[i], N)]) for i in range(4)]
        ops += [pkop("v_pk_mul_f32", u[i], [(u[i], N), (T[i], N)]) for i in range(4)]
        ops += [V(f"v_cvt_pk_bf16_f32 {v(acc+16*t+i)}, {v(acc+16*t+8+2*i)}, {v(acc+16*t+9+2*i)}") for i in range(4)]
        ops += [hh_store(acc, t, rt)] + ([FN(lambda: need_waited(f'p{rt}'))] if rt >= 2 else [])
    return ops


RING_D = [256 + 4*i for i in range(28)]
NRD = len(RING_D)


def d_load(n):
    o = [V(f"v_add_u32 {v(vGO)}, {112*K}, {v(vGO)}")] if (n % 14 == 0 and n) else []
    o.append(("vm", f"buffer_load_dwordx4 {r(RING_D[n % NRD],4)}, {v(vGO)}, {s(SWS,4)}, {s(sGT + (n % 14)//2)} offen{off((n % 2)*2048)} sc1", f"d{n}"))
    return o


def epoch():
    lab = A.label("L_ep")
    A(f"s_xor_b32 {s(sT0)}, s2, 1")
    A(f"s_or_b32 {s(sT0)}, {s(sT0)}, {s(sW)}")
    A(f"s_cbranch_scc1 {lab}")
    A(f"s_mov_b32 {s(sT0)}, {EPO}")
    A(f"v_mov_b32 {v(vT)}, {s(sTAG)}")
    A("s_mov_b64 exec, 1")
    A(f"buffer_store_dword {v(vT)}, off, {s(SWS,4)}, {s(sT0)} sc1")
    A("s_mov_b64 exec, -1")
    A(f"{lab}:")


def phaseC(stcalc, ststore):
    def addrh():
        A(f"v_add_u32 {v(vHR)}, {HI}, {v(vL16)}")
        A(f"v_add_u32 {v(vHR+1)}, {s(sW7K)}, {v(vHR)}")
        A(f"s_mul_i32 {s(sT0)}, {s(sRC)}, {112*K}")
        A(f"s_add_u32 {s(sT0)}, {s(sT0)}, {HH_}")
        A(f"s_lshl_b32 {s(sT1)}, {s(sROT)}, 10")
        if OPT.get("two"):
            A(f"s_mul_i32 {s(sT2)}, {s(sKH)}, {7*K}")
            A(f"s_add_u32 {s(sT1)}, {s(sT1)}, {s(sT2)}")
            A(f"s_sub_u32 {s(sT2)}, {s(sW7K)}, {s(sT2)}")
            A(f"s_add_u32 {s(sT0)}, {s(sT0)}, {s(sT2)}")
        else:
            A(f"s_add_u32 {s(sT1)}, {s(sT1)}, {s(sW7K)}")
        for c in range(7):
            A(f"s_add_u32 {s(sT2)}, {s(sT1)}, {c*K}")
            A(f"s_sub_u32 {s(sT3)}, {s(sT2)}, {(14 if OPT.get('two') else 28)*K}")
            A(f"s_cselect_b32 {s(sT2)}, {s(sT2)}, {s(sT3)}")
            A(f"s_add_u32 {s(sHT+c)}, {s(sT2)}, {s(sT0)}")
            if c < 6:
                A(f"s_sub_u32 {s(sT0)}, {s(sT0)}, {1024 if c != 3 else -3072}")

    def addrd():
        A(f"s_mul_i32 {s(sDWK)}, {s(sW)}, {448*896}")
        A(f"s_lshl_b32 {s(sT0)}, {s(sRB)}, 4")
        A(f"s_add_u32 {s(sT0)}, {s(sT0)}, {s(sW)}")
        A(f"s_mul_i32 {s(sT0)}, {s(sT0)}, {28*K}")
        A(f"s_lshl_b32 {s(sT1)}, {s(sP)}, 8")
        A(f"s_add_u32 {s(sT0)}, {s(sT0)}, {s(sT1)}")
        A(f"s_add_u32 {s(sT0)}, {s(sT0)}, {GG}")
        for j in range(7):
            A(f"s_add_u32 {s(sGT+j)}, {s(sT0)}, {j*4096}")
        A(f"v_lshrrev_b32 {v(vDO)}, 3, {v(vLANE)}")
        A(f"v_mul_u32_u24 {v(vDO)}, 896, {v(vDO)}")
        A(f"v_and_b32 {v(vDO+1)}, 0x70, {v(vL16)}")
        A(f"v_lshrrev_b32 {v(vDO+2)}, 4, {v(vLANE)}")
        A(f"v_lshlrev_b32 {v(vDO+2)}, 5, {v(vDO+2)}")
        A(f"v_xor_b32 {v(vDO+1)}, {v(vDO+1)}, {v(vDO+2)}")
        A(f"s_lshl_b32 {s(sT0)}, {s(sCB)}, 7")
        A(f"v_add3_u32 {v(vDO)}, {v(vDO)}, {v(vDO+1)}, {s(sT0)}")
        for i in range(1, 4):
            A(f"v_add_u32 {v(vDO+i)}, {i*(7168-1024)}, {v(vDO)}")
    def addr0():
        A(f"s_lshl2_add_u32 {s(sT0)}, {s(sRC)}, {s(sW)}")
        A(f"s_mul_i32 {s(sT0)}, {s(sT0)}, {14*256}")
        A(f"s_add_u32 {s(sSO)}, {s(sT0)}, {ST}")
        A(f"v_and_b32 {v(vT+2)}, 31, {v(vLANE)}")
        A(f"s_lshl_b32 {s(sT0)}, {s(sW)}, 8")
        A(f"s_add_u32 {s(sT0)}, {s(sT0)}, {MISC}")
        A(f"v_lshl_add_u32 {v(9)}, {v(vLANE)}, 2, {s(sT0)}")
        A(f"v_bfe_u32 {v(vCL)}, {v(vLANE)}, 4, 1")
        A(f"v_mul_u32_u24 {v(vCL)}, 14336, {v(vCL)}")
        A(f"v_lshrrev_b32 {v(vDX)}, 5, {v(vLANE)}")
        A(f"v_lshl_add_u32 {v(vCL)}, {v(vDX)}, 7, {v(vCL)}")
        A(f"v_and_b32 {v(vDX)}, 15, {v(vLANE)}")
        A(f"v_lshl_add_u32 {v(vCL)}, {v(vDX)}, 3, {v(vCL)}")
        A(f"s_lshl2_add_u32 {s(sT0)}, {s(sFB)}, {s(sW)}")
        A(f"s_lshl_b32 {s(sT0)}, {s(sT0)}, 8")
        A(f"s_add_u32 {s(sKVPW)}, {s(sT0)}, {CSW}")
        A(f"s_add_u32 {s(sOW)}, {s(sT0)}, {CSW + 28672}")
        A(f"v_lshlrev_b32 {v(vT+2)}, 4, {v(vT+2)}")
        A(f"v_add_u32 {v(vT+2)}, {MISC + 2048}, {v(vT+2)}")
        A(f"v_and_b32 {v(vT+3)}, 15, {v(vLANE)}")
        A(f"v_lshrrev_b32 {v(vDX)}, 5, {v(vLANE)}")
        A(f"v_lshl_add_u32 {v(vT+3)}, {v(vT+3)}, 1, {v(vDX)}")
        A(f"s_lshl_b32 {s(sT0)}, {s(sW)}, 9")
        A(f"s_add_u32 {s(sT0)}, {s(sT0)}, {MISC + 2048}")
        A(f"v_lshl_add_u32 {v(vT+3)}, {v(vT+3)}, 4, {s(sT0)}")
        A(f"v_bfe_u32 {v(vRS)}, {v(vLANE)}, 2, 2")
        A(f"v_lshlrev_b32 {v(vRS)}, 10, {v(vRS)}")
        A(f"v_and_b32 {v(vDX)}, 1, {v(vLANE)}")
        A(f"v_lshl_add_u32 {v(vRS)}, {v(vDX)}, 9, {v(vRS)}")
        A(f"v_and_b32 {v(vDX)}, 0x30, {v(vLANE)}")
        A(f"v_add_u32 {v(vRS)}, {v(vDX)}, {v(vRS)}")
        A(f"v_and_b32 {v(vDX)}, 2, {v(vLANE)}")
        A(f"v_lshl_add_u32 {v(vRS)}, {v(vDX)}, 2, {v(vRS)}")
        A(f"s_mul_i32 {s(sT0)}, {s(sRB)}, 28")
        A(f"s_add_u32 {s(sT0)}, {s(sT0)}, {s(sCB)}")
        A(f"s_lshl4_add_u32 {s(sT0)}, {s(sT0)}, {s(sP)}")
        A(f"s_lshl2_add_u32 {s(sT0)}, {s(sT0)}, {s(sW)}")
        A(f"s_lshl_b32 {s(sT0)}, {s(sT0)}, 6")
        A(f"v_add_u32 {v(vRS)}, {s(sT0)}, {v(vRS)}")
        A(f"v_bfe_u32 {v(vDX)}, {v(vLANE)}, 2, 3")
        A(f"v_lshrrev_b32 {v(vDX+1)}, 5, {v(vLANE)}")
        A(f"v_lshl_add_u32 {v(vDX)}, {v(vDX+1)}, 4, {v(vDX)}")
        A(f"v_lshlrev_b32 {v(vDX)}, 7, {v(vDX)}")
        A(f"v_bfe_u32 {v(vDX+1)}, {v(vLANE)}, 3, 2")
        A(f"v_lshl_add_u32 {v(vDX)}, {v(vDX+1)}, 5, {v(vDX)}")
        A(f"v_and_b32 {v(vDX+1)}, 3, {v(vLANE)}")
        A(f"v_lshl_add_u32 {v(vDX)}, {v(vDX+1)}, 3, {v(vDX)}")
        A(f"s_add_u32 {s(sT0)}, {s(sW4K)}, {32*K}")
        A(f"v_add_u32 {v(vDX)}, {s(sT0)}, {v(vDX)}")
        for i in range(1, 4):
            A(f"v_xor_b32 {v(vDX+i)}, {32*i}, {v(vDX)}")
        for i in range(4):
            A(f"v_add_u32 {v(vDY+i)}, 0x10000, {v(vDX+i)}")
    n0 = CWN[0]
    N3 = OPT.get("n3", 8)
    BG.extend(pump(N3))
    a0 = cap(addr0)
    NA0 = OPT.get('na0', 17)
    spread(stcalc + [FN(epoch, 8)] + cap(addrh) + [BAR] + a0[:NA0] + ([] if OPT.get('sl') else [ststore]) + (cap(addrd) if NA0 > 17 else []) +
           [V(f"v_add_u32 {v(28)}, {28*K}, {v(vL16)}"), V(f"v_add_u32 {v(29)}, {56*K}, {v(vL16)}")])
    stamp(15)
    HB = {0: AC0, 1: AC1}
    HV = {0: vL16, 1: 28, 2: 29, 3: 28}
    STR = SP + 64

    PH = OPT.get("ph", 9)
    hd = lambda rt, c: [f"s_add_u32 m0, {s(sW7K)}, {TLO[rt] + (c & 4)*1024}", "s_nop 0", f"buffer_load_dwordx4 {v(HV[rt])}, {s(SWS,4)}, {s(sHT+c)} offen{off((c & 3)*1024)} sc1 lds"]
    hdma = lambda rt, per=False: [unit(([S(hd(rt, c)[0]), S(hd(rt, c)[1])] if c % 4 == 0 else []) + [("vm", hd(rt, c)[2], f"h{rt}_{c}" if per else f"h{rt}")], PH) for c in range(7)]

    def lds_check(rt, tmp):
        lab, back = A.label("L_hc"), A.label("L_hb")
        rdb = lambda c: RD128(HB[rt] + 4*c, vHR + 1, TLO[rt] - HI + c*1024, f"hr{rt}_{c}")
        regs = lambda c: list(range(HB[rt]+4*c, HB[rt]+4*c+4))
        ops = []
        for c in range(7):
            ops += [WV(f"h{rt}_{c}"), rdb(c)]
            if c >= 2:
                ops += [WL(f"hr{rt}_{c-2}")] + [V(l) for l in max_lines(regs(c-2), tmp, c == 2)]
        for c in (5, 6):
            ops += [WL(f"hr{rt}_{c}")] + [V(l) for l in max_lines(regs(c), tmp, False)]
        ops += [V(f"v_cmp_eq_u32 vcc, -1, {v(tmp)}"), FN(lambda: (A(f"s_cbranch_vccnz {lab}"), A(f"{back}:")), 4)]
        blk = [f"{lab}:"] + dbg_mark(f"h{rt}") + [f"s_mov_b32 {s(sG1)}, m0", f"s_mov_b32 {s(sSPIN)}, 0", f"{lab}_t:"]
        for c in range(7):
            skip = A.label("L_hs")
            blk += max_lines(regs(c), tmp) + [f"v_cmp_eq_u32 vcc, -1, {v(tmp)}", f"s_cbranch_vccz {skip}"] + hd(rt, c) + [f"{skip}:"]
        blk += ["s_waitcnt vmcnt(0)"] + [rdb(c)[1] for c in range(7)] + [f"s_mov_b32 m0, {s(sG1)}", "s_waitcnt lgkmcnt(0)"]
        blk += max_lines(list(range(HB[rt], HB[rt]+28)), tmp) + [f"v_cmp_eq_u32 vcc, -1, {v(tmp)}", f"s_cbranch_vccz {back}"] + spin_tail(f"{lab}_t", back)
        OOL.append(blk)
        return ops
    stl = [f"buffer_load_dwordx4 {v(STR+4*i,4)}, {v(vL16)}, {s(SWS,4)}, {s(sSO)} offen{off(min(1024*i, 2560))} sc1" for i in range(4)]
    n1 = CWN[0]
    if OPT.get("sl"):
        E(ststore)
    h1u = hdma(1, True)
    NH1 = OPT.get("nh1", 6)
    BG.extend(hdma(0, True) + h1u[:NH1])
    bg_force()
    BG.extend(h1u[NH1:] + pump(min(OPT.get("n4", 2), 28 - n1)))
    n2 = CWN[0]
    assert n2 >= 24
    print("cw issued before C:", n0, n1, n2) if OPT["rep"] else None
    lc = fuse_cmp(lds_check(0, vT + 1))
    run(lc[:4], bg=False)
    spread(lc[4:-7])
    run(lc[-7:] + [BAR], bg=False)
    stamp(16)

    sc_read = lambda rt: [("lds", f"ds_read_b128 {v(SC+4*(rt & 1),4)}, {v(vT+2)} offset:{rt*512}", f"sc{rt}")]
    resu = [unit([S(f"s_mov_b32 {s(sB1)}, {HH_ + rt*28*K}"), ("vm", f"buffer_load_dwordx2 {v(RES+2*rt,2)}, {v(vRS)}, {s(SWS,4)}, {s(sB1)} offen sc1", f"rs{rt}")], 10) for rt in range(4)]

    CD = SP + 56
    cld = [f"buffer_load_dwordx2 {v(CD+2*j,2)}, {v(vCL)}, {s(SWS,4)}, {s((sKVPW, sOW)[j])} offen sc1" for j in range(2)]
    sc_ = tag_check("cl", cld, CD + 1, CD + 3) + [V(f"v_add_f32 {v(CD)}, {v(CD)}, {v(CD+2)}"), ("lds", f"ds_write_b32 {v(9)}, {v(CD)}", "cw_")]
    sc_ += [RD128(CS + 16*t + 4*q, vBC, 128*t + 32*q, "csb") for t in range(2) for q in range(4)]
    sb = check_ops("stl", list(range(STR, STR+16)), stl)
    sb += [V(f"v_cndmask_b32 {v(STR+12+k)}, 0, {v(STR+12+k)}, {s(sUP,2)}") for k in range(4)]
    for a_, b_ in ((0, 8), (4, 12), (0, 4)):
        sb += [V(f"v_add_f32 {v(STR+a_+k)}, {v(STR+a_+k)}, {v(STR+b_+k)}") for k in range(4)]
    sb += [V(f"v_permlane32_swap_b32 {v(STR+k)}, {v(STR+2+k)}") for k in range(2)]
    sb += [V(f"v_add_f32 {v(STR+k)}, {v(STR+k)}, {v(STR+2+k)}") for k in range(2)]
    sb += [V(f"v_mov_b32 {v(STR+2+k)}, {v(STR+k)}") for k in range(2)]
    sb += [V(f"v_permlane16_swap_b32 {v(STR+k)}, {v(STR+2+k)}") for k in range(2)]
    sb += [V(f"v_add_f32 {v(STR+k)}, {v(STR+k)}, {v(STR+2+k)}") for k in range(2)]
    C1 = -2.0 * 0.7978845608028654 * 1.4426950408889634
    d = STR + 4
    sb += [V(f"v_mul_f32 {v(d)}, 0xbb124925, {v(STR)}"), V(f"v_mul_f32 {v(d+3)}, 0x3b124925, {v(STR+1)}"),
           V(f"v_fma_f32 {v(d+3)}, -{v(d)}, {v(d)}, {v(d+3)}"), V(f"v_max_f32 {v(d+3)}, 0, {v(d+3)}"),
           V(f"v_add_f32 {v(d+3)}, 0x3727c5ac, {v(d+3)}"), V(f"v_rsq_f32 {v(d+1)}, {v(d+3)}"),
           V(f"v_mul_f32 {v(d+2)}, {v(d+1)}, {v(d+1)}"), V(f"v_mul_f32 {v(d+2)}, {v(d+2)}, {v(d+1)}"),
           V(f"v_mul_f32 {v(d+2)}, {fh(C1*0.044715)}, {v(d+2)}"), V(f"v_mul_f32 {v(d+1)}, {fh(C1)}, {v(d+1)}"),
           WR128(vT + 3, d, 0, "hw")]
    def addr3():
        A(f"s_lshl_b32 {s(sT0)}, {s(sRB)}, 13")
        A(f"s_add_u32 {s(sFL)}, {s(sT0)}, {HFL}")
        A(f"s_add_u32 {s(sHW)}, {s(sT0)}, {HFL + 131072}")
        A(f"s_lshl2_add_u32 {s(sT0)}, {s(sFB)}, {s(sW)}")
        A(f"s_lshl_b32 {s(sT0)}, {s(sT0)}, 7")
        A(f"s_lshl_b32 {s(sHF)}, {s(sRC)}, 13")
        A(f"s_add_u32 {s(sHF)}, {s(sHF)}, {s(sT0)}")
        A(f"s_add_u32 {s(sHF)}, {s(sHF)}, {HFL}")
        A(f"s_mul_i32 {s(sT0)}, {s(sW)}, 14")
        A(f"v_min_u32 {v(vHF)}, 13, {v(vLANE)}")
        A(f"v_add_lshl_u32 {v(vHF)}, {v(vHF)}, {s(sT0)}, 7")
        A(f"v_mov_b32 {v(vTAG)}, {s(sTAG)}")
        A(f"v_lshlrev_b32 {v(vL8c)}, 2, {v(vLANE)}")
        A(f"s_mov_b32 {s(sKVPW)}, {PFL}")
        A(f"s_mov_b32 {s(sOW)}, {PFL + 4096}")
        A(f"v_mov_b32 {v(9)}, {s(sRB)}")
        A(f"v_mov_b32 {v(8)}, {s(sRC)}")
        A(f"v_cndmask_b32 {v(9)}, {v(9)}, {v(8)}, {s(sUP,2)}")
        A(f"v_and_b32 {v(8)}, 1, {v(vLANE)}")
        A(f"v_lshl_add_u32 {v(9)}, {v(9)}, 1, {v(8)}")
        A(f"v_lshlrev_b32 {v(9)}, 7, {v(9)}")
        A(f"v_lshrrev_b32 {v(vGO)}, 4, {v(vLANE)}")
        A(f"v_and_b32 {v(vGO+1)}, 0xf0, {v(vL16)}")
        A(f"v_lshl_add_u32 {v(vGO)}, {v(vGO)}, 9, {v(vGO+1)}")
    f0l, f0c = flag_check("f0", vT + 3, vHF, s(sFL))
    f1l, f1c = flag_check("f1", vT + 3, vHF, s(sHW))
    p2l, p2c = flag_check("p2", vT + 1, 9, s(sKVPW))
    p3l, p3c = flag_check("p3", vT + 1, 9, s(sOW))
    PC = OPT.get("pc", 10)
    dun = lambda a_, b_: [unit(d_load(n), PC) for n in range(a_, b_)]
    ADD = lambda us: FN(lambda: BG.extend(us))
    def split(u):
        return [dict(ops=u["ops"][:-1], ta=64), dict(ops=u["ops"][-1:], ta=64)]
    lateu = sum([split(u_cw(ks)) for ks in range(n2, 28)], [])
    small = [unit([("vm", x, "stl")], 8) for x in stl] + [unit([("vm", x, "cl")], 8) for x in cld]
    run(cw_read(n2 - LAG, 20) + [WL("all")], bg=False) if n2 - LAG < 20 and False else None
    SO = OPT.get("so", 0)
    BG.extend(lateu[:SO] + small + lateu[SO:] + u_dw(0) + u_dw(1))

    WS_ = OPT.get("ws", 4)
    RB = [BRG + 4*i for i in range(6)] + ([RES, RES + 4] if WS_ == 4 else [])
    NB_ = len(RB)
    LB = NB_ - 2

    def rd(N):
        rt, n = divmod(N, 28)
        return RD128(RB[N % NB_], vHR if rt < 2 else vL16, TLO[rt] - (HI if rt < 2 else 0) + n*1024, f"b{N}")
    run([rd(N) for N in range(LB)], bg=False)
    bg_now()
    after_bar = {0: [V(f"v_add_u32 {v(28)}, {84*K}, {v(vL16)}"),  ADD(hdma(2) + u_dw(2) + u_dw(3))], 1: [ADD(hdma(3) + u_dw(7))], 2: [ADD(u_dw(11) + u_dw(12))]}
    main = []
    for N in range(112):
        rt, n = divmod(N, 28)
        acc = AC0 if rt % 2 == 0 else AC1
        if n == 25 and rt < 3:
            main += ([WV(f"h{rt+1}")] if rt else []) + [WL("all"), BAR] + after_bar[rt]
        elif N == 0:
            main.append(WL("b0"))
        elif WS_ == 2 and N % 2 == 1:
            main.append(WL(f"b{min(N+1, 111)}"))
        elif WS_ == 4 and n == 0:
            main.append(WL(f"b{N}"))
        elif WS_ == 4 and n % 4 == 1:
            main.append(WL(f"b{min(N+3, 111)}"))

        if 16 <= N < 28:
            main.append(WL(f"cr{N}"))
        if n == 0 and rt:
            main.append(ST_(16 + rt))
        elif N < 34 and N % 2 == 0:
            main.append(FN(lambda: fst("C0")))
        main.append(M32(acc, CW + (n*2)*4, RB[N % NB_], n == 0))
        if N + LB < 112 and not (28 - LB <= n < 25):
            if n == 25:
                main += [rd(N + j) for j in range(3, LB)]
            main.append(rd(N + LB))
        main.append(M32(acc + 16, CW + (n*2+1)*4, RB[N % NB_], n == 0))
    D_ = lambda ops, g0, g1, gr=False: dict(ops=ops, g0=g0, g1=g1, greedy=gr)
    L0 = 4*(28 - n2)
    ND = OPT.get("nd", 6)
    F0 = OPT.get("f0", 180)
    streams = [D_((cap(addrd) if NA0 <= 17 else []) + a0[NA0:], 0, 26, True), D_(cw_read(n2 - LAG, n2 - 2), 0, 8), D_(cw_read(n2 - 2, n2), 16, 24), D_(lds_check(1, ET), 10, 30),
               D_(sb, 30 + 2*SO, 48), D_(sc_[:8], 35 + 2*SO, 38 + 2*SO), D_(sc_[8:], 39 + 2*SO, 57)]
    streams += [D_(cw_read(ks, ks + 1), 2*ks - 9, 2*ks - 5) for ks in range(n2, 28)]
    streams += [D_(sc_read(0), 51, 52),
               D_([WL("csb"), WL("sc0")] + epilogue_ops(AC0, 0), 58, 111, True),
               D_(dw_read(0) + dw_read(1) + dw_next("dr1", (4, 5)), 70, 82),
               D_(sc_read(1), 107, 110),
               D_(dw_read(2) + dw_read(3) + dw_next("dr3", (6, 8)), 106, 122), D_(dw_read(4) + dw_read(5) + dw_next("dr5", (9, 10)), 130, 146),
               D_([WL("sc1")] + epilogue_ops(AC1, 1), 114, 167, True),
               D_(sc_read(2), 163, 166), D_(dw_read(6) + dw_next("dr6", (13,)), 166, 174),
               D_(cap(addr3), 100, 128),
               D_(hf_set(0, 0), 134, 135), D_([f0l], F0, F0 + 1), D_(f0c + [ADD(dun(0, ND))], F0 + 24, F0 + 25),
               D_(hf_set(1, 1), 190, 191), D_([p2l], 156, 157), D_(p2c, 181, 182), D_([p3l], 198, 199), D_(p3c, 222, 223),
               D_([WL("sc2")] + epilogue_ops(AC0, 2) + sc_read(3), 170, 216, True)]
    streams += [D_(dw_read(m), 168 + 36 + 4*(m-7), 168 + 40 + 4*(m-7)) for m in range(7, 12)]
    COST.update(vm=OPT.get("cv", 4), late=OPT.get("cl8", 24))
    weave(main, streams, report=REP("C"))
    COST.update(vm=4, late=24)
    bg_force()
    stamp(20)
    NPRE = ND + OPT.get("npre", 6)
    BG.extend([unit(d_load(n) + d_load(n+1), 24) for n in range(ND, NPRE, 2)])
    bg_now()
    ep = epilogue_pk(AC1, 3)
    run([WL("sc3")] + ep[:OPT.get("c1", 20)] + [f1l] + ep[OPT.get("c1", 20):])
    bg_force()
    stamp(21)
    return NPRE, f1c, resu


def phaseD(NPRE, f1c, resu):
    ACD = [32, 48]
    WA, RA, vOO = 64, 66, 67
    X, TT = 68, 72

    def addr():
        A(f"v_and_b32 {v(WA)}, 15, {v(vLANE)}")
        A(f"v_lshrrev_b32 {v(RA)}, 4, {v(vLANE)}")
        A(f"v_mul_u32_u24 {v(vOO)}, 896, {v(RA)}")
        A(f"v_lshl_add_u32 {v(vOO)}, {v(WA)}, 3, {v(vOO)}")
        A(f"v_and_b32 {v(X)}, 7, {v(vLANE)}")
        A(f"v_xor_b32 {v(X)}, {v(X)}, {v(RA)}")
        A(f"v_lshlrev_b32 {v(X)}, 4, {v(X)}")
        A(f"v_lshl_add_u32 {v(RA)}, {s(sW)}, 2, {v(RA)}")
        A(f"v_and_b32 {v(X+1)}, 7, {v(RA)}")
        A(f"v_xor_b32 {v(X+1)}, {v(X+1)}, {v(WA)}")
        A(f"v_lshlrev_b32 {v(X+1)}, 4, {v(X+1)}")
        A(f"v_lshl_add_u32 {v(RA)}, {v(RA)}, 8, {v(X+1)}")
        A(f"v_lshl_add_u32 {v(WA)}, {v(WA)}, 8, {v(X)}")
        A(f"v_add_u32 {v(WA)}, {s(sW4K)}, {v(WA)}")
        A(f"v_xor_b32 {v(WA+1)}, 64, {v(WA)}")
        A(f"s_lshl_b32 {s(sT0)}, {s(sRB)}, 3")
        A(f"s_add_u32 {s(sT0)}, {s(sT0)}, {s(sP)}")
        A(f"s_lshl_b32 {s(sT0)}, {s(sT0)}, 2")
        A(f"s_add_u32 {s(sT0)}, {s(sT0)}, {s(sW)}")
        A(f"s_mul_i32 {s(sOUTW)}, {s(sT0)}, {4*896}")
        A(f"s_lshl_b32 {s(sT0)}, {s(sCB)}, 7")
        A(f"s_add_u32 {s(sOUTW)}, {s(sOUTW)}, {s(sT0)}")

    def reduce_ops(rt, pk):
        buf = (rt & 1) * 16 * K
        acc = ACD[rt & 1]
        o = [WR128(WA + (nt & 1), acc + 4*nt, buf + 128*(nt >> 1), "dwr") for nt in range(4)]
        if not pk:
            o = sum([[x, FN(lambda: None, 12)] for x in o], [])
        o += [WV(f"rs{rt}"), V(f"v_lshlrev_b32 {v(X)}, 16, {v(RES+2*rt)}"), V(f"v_and_b32 {v(X+1)}, 0xffff0000, {v(RES+2*rt)}"),
              V(f"v_lshlrev_b32 {v(X+2)}, 16, {v(RES+2*rt+1)}"), V(f"v_and_b32 {v(X+3)}, 0xffff0000, {v(RES+2*rt+1)}"),
              S(f"s_add_u32 {s(sT1)}, {s(sOUTW)}, {rt*32*896}")]
        o += [WL("dwr"), BAR]
        o += [RD128(TT + 4*w, RA, buf + w*4096, f"rr{w}") for w in range(4)]
        if pk:
            for w in range(4):
                o += [WL(f"rr{w}")] + [V(f"v_pk_add_f32 {v(X+2*k,2)}, {v(X+2*k,2)}, {v(TT+4*w+2*k,2)}") for k in range(2)]
        else:
            o += [FN(lambda: None, 40), WL("rr3")]
            o += [V(f"v_add_f32 {v(X+k)}, {v(X+k)}, {v(TT+4*w+k)}") for w in range(4) for k in range(4)]
        o += [V(f"v_cvt_pk_bf16_f32 {v(X+k)}, {v(X+2*k)}, {v(X+2*k+1)}") for k in range(2)]
        o += [("vm", f"buffer_store_dwordx2 {v(X,2)}, {v(vOO)}, {s(SOUT,4)}, {s(sT1)} offen" + (" sc1" if rt < OPT.get("os", 4) else ""), "out")]
        return o
    def nan_check(rt):
        lab, back = A.label("L_nn"), A.label("L_nb")
        acc = ACD[rt & 1]
        blk = [f"{lab}:"] + dbg_mark(f"nan{rt}") + [f"s_mov_b32 {s(sSPIN)}, 0", f"v_subrev_u32 {v(vGO+1)}, {112*K if rt < 3 else 0}, {v(vGO)}", f"{lab}_t:"]
        for m in range(14):
            blk.append(f"buffer_load_dwordx4 {r(RING_D[(14*rt+m) % NRD],4)}, {v(vGO+1)}, {s(SWS,4)}, {s(sGT + m//2)} offen{off((m % 2)*2048)} sc1")
        blk.append(f"v_mov_b32 {v(vT)}, 0")
        for m in range(14):
            b_ = RING_D[(14*rt+m) % NRD]
            blk.append(f"s_waitcnt vmcnt({13-m})")
            for k in (0, 2):
                blk += [f"v_accvgpr_read_b32 {v(vT+1)}, {r(b_+k)}", f"v_accvgpr_read_b32 {v(vT+2)}, {r(b_+k+1)}", f"v_max3_u32 {v(vT)}, {v(vT)}, {v(vT+1)}, {v(vT+2)}"]
            blk += [M16(acc + 4*nt, DW[m] + 4*nt, b_, m == 0)[1] for nt in range(4)]
        blk += [f"v_cmp_eq_u32 vcc, -1, {v(vT)}", f"s_cbranch_vccz {back}"] + spin_tail(f"{lab}_t", back)
        OOL.append(blk)
        return [V(f"v_cmp_u_f32 vcc, {v(acc)}, {v(acc)}"), FN(lambda: (A(f"s_cbranch_vccnz {lab}"), A(f"{back}:")), 4)]
    T2, T3 = OPT.get("t2", 16), OPT.get("t3", 30)
    assert T3 >= T2 + 14 and NPRE <= 14 and 28 - NPRE <= T2
    when = {}
    for n in range(NPRE, 28):
        when[n - NPRE] = n
    for i in range(14):
        when[T2 + i] = 28 + i
        when[T3 + i] = 42 + i
    main = []
    for n in range(56):
        rt, m = divmod(n, 14)
        b = RING_D[n % NRD]
        if n % 14 == 0 and n:
            main.append(ST_(21 + n//14))
        if n == 43:
            main += nan_check(2)
        if when.get(n) == 14:
            main += f1c
        if n == 7:
            main.append(WL("dr13"))
        ld = d_load(when[n]) if n in when else []
        main += ([WV(f"d{n+1}")] if n % 2 == 0 else []) + ld[:-1]
        main.append(M16(ACD[rt & 1], DW[m], b, m == 0))
        main += ld[-1:]
        main.append(M16(ACD[rt & 1] + 4, DW[m] + 4, b, m == 0))
        if m == 3:
            main[-1:-1] = resu[rt]["ops"][:1]
            main.append(resu[rt]["ops"][1])
        main += [M16(ACD[rt & 1] + 4*nt, DW[m] + 4*nt, b, m == 0) for nt in (2, 3)]
    streams = [dict(ops=dw_read(12) + dw_read(13), g0=0, g1=20), dict(ops=cap(addr) + [BAR], g0=20, g1=50)]
    for rt in range(3):
        streams.append(dict(ops=reduce_ops(rt, False), g0=56*(rt+1) + 5, g1=56*(rt+1) + 50))
    weave(main, streams, small=True, report=REP("D"))
    stamp(25)
    run(nan_check(3) + reduce_ops(3, True), bg=False)
    stamp(26)


def finish():
    if OPT["ts"]:
        stamp(63)
        A(f"v_writelane_b32 {v(vTS)}, {s(sDBG)}, 62")
        A(f"s_lshl_b32 {s(sT0)}, s2, 2")
        A(f"s_add_u32 {s(sT0)}, {s(sT0)}, {s(sW)}")
        A(f"s_lshl_b32 {s(sT0)}, {s(sT0)}, 8")
        A(f"s_add_u32 {s(sT0)}, {s(sT0)}, {TSB}")
        A(f"v_lshlrev_b32 {v(vT)}, 2, {v(vLANE)}")
        A(f"buffer_store_dword {v(vTS)}, {v(vT)}, {s(SWS,4)}, {s(sT0)} offen")
    A("s_waitcnt vmcnt(0) lgkmcnt(0)")
    if OPT["hold"] >= 0:
        A(f"s_add_u32 {s(sTS)}, {s(sTS)}, 5000")
        A("L_hold:")
        A("s_memrealtime s[4:5]")
        A("s_waitcnt lgkmcnt(0)")
        A(f"s_sub_u32 s4, s4, {s(sTS)}")
        A("s_cmp_lt_i32 s4, 0")
        A("s_cbranch_scc1 L_hold")
    A("s_endpgm")


def main():
    prologue()
    phaseA()
    phaseQ()
    helper()
    npre = phaseC(*phaseB())
    phaseD(*npre)
    A("L_fin:")
    finish()
    for blk in OOL:
        for l in blk:
            A(l)
    A("L_exit:")
    A("s_endpgm")
    lines, nn = fix_hazards(A.lines, verbose=bool(OPT.get("v")))
    if OPT.get("al", 0):
        lines, nw, np_ = align_runs(lines, f"{NAME}_kernel:\n", OPT["al"], OPT.get("an", 10), "L_fin:")
        print("alignment: widened", nw, "nops", np_)
    hdr = open("cdna_kernels/" + NAME + ".s.ref").read().split("; Override launch")[0]
    out = hdr + f"; @launch grid=(256,1,1) block=(256,1,1) lds={LDS_BYTES}\n"
    out += '.amdgcn_target "amdgcn-amd-amdhsa--gfx950"\n.text\n'
    out += f".globl {NAME}_kernel\n.p2align 8\n.type {NAME}_kernel,@function\n{NAME}_kernel:\n"
    out += "\n".join(("" if l.endswith(":") else "    ") + l for l in lines) + "\n"
    out += f"L_code_end:\n.if (L_code_end - {NAME}_kernel) < 33024\n.fill (33024 - (L_code_end - {NAME}_kernel)) / 4, 4, 0xbf810000\n.endif\n"
    out += f'.section .rodata,"a"\n.p2align 6\n.amdhsa_kernel {NAME}_kernel\n'
    out += "  .amdhsa_next_free_vgpr 512\n  .amdhsa_next_free_sgpr 102\n  .amdhsa_accum_offset 256\n"
    out += "  .amdhsa_group_segment_fixed_size 0\n  .amdhsa_kernarg_size 80\n  .amdhsa_user_sgpr_count 2\n"
    out += "  .amdhsa_user_sgpr_kernarg_segment_ptr 1\n  .amdhsa_system_sgpr_workgroup_id_x 1\n"
    out += "  .amdhsa_float_denorm_mode_32 3\n.end_amdhsa_kernel\n"
    open(sys.argv[1], "w").write(out)
    print(f"wrote {sys.argv[1]}: {len(lines)} lines, {nn} nop states inserted")


main()
```
